```python
import torch

def _softmax(x, axis=-1):
    return torch.softmax(x, dim=axis)
def _gelu(x):
    return torch.nn.functional.gelu(x, approximate="tanh")
def _silu(x):
    return torch.nn.functional.silu(x)
def _sigmoid(x):
    return torch.sigmoid(x)
def _layernorm(x, axis=-1, eps=1e-5):
    m = x.mean(dim=axis, keepdim=True)
    v = x.var(dim=axis, keepdim=True, unbiased=False)
    return (x - m) / torch.sqrt(v + eps)
def _scatter_add(tgt, idx, src, axis=0):
    return tgt.clone().index_add_(axis, idx, src)
def _segment_sum(src, seg, n):
    out = torch.zeros((n,) + src.shape[1:], dtype=src.dtype)
    return out.index_add_(0, seg, src)
def _pad(x, pw):
    flat = tuple(v for pair in reversed(pw) for v in pair)
    return torch.nn.functional.pad(x, flat)

kernel_name = 'gated_mix__sliding_local_dilated__spectral_fnet__prompt'

def setup_inputs():

    _w = (lambda a: (lambda t: t.to(torch.bfloat16) if t.is_floating_point() else t)(torch.as_tensor(a)))
    def _A_setup():
        B, S, D = 1, 2048, 640
        return {
            "x": _w((lambda *s: torch.randn(*s, dtype=torch.bfloat16) * 0.05)(B, S, D)),
            "wqkv": _w((lambda *s: torch.randn(*s, dtype=torch.bfloat16) * 1.6)(D, 3 * D)),
            "wo": _w((lambda *s: torch.randn(*s, dtype=torch.bfloat16) * 0.2)(D, D)),
        }
    _A_in = _A_setup()

    def _B_setup():
        B, S, D = 1, 2048, 640
        ns = torch.arange(S)[:, None] * torch.arange(S)[None, :]
        nd = torch.arange(D)[:, None] * torch.arange(D)[None, :]
        Ws_re = torch.cos(-2.0 * torch.pi * ns / S).to(float)
        Ws_im = torch.sin(-2.0 * torch.pi * ns / S).to(float)
        Wd_re = torch.cos(-2.0 * torch.pi * nd / D).to(float)
        Wd_im = torch.sin(-2.0 * torch.pi * nd / D).to(float)
        return {
            "x": _w((lambda *s: torch.randn(*s, dtype=torch.bfloat16) * 0.05)(B, S, D)),
            "dft_seq_re": _w(Ws_re),
            "dft_seq_im": _w(Ws_im),
            "dft_hid_re": _w(Wd_re),
            "dft_hid_im": _w(Wd_im),
        }
    _B_in = _B_setup()

    return {
        "A_x": _A_in["x"],
        "A_wqkv": _A_in["wqkv"],
        "A_wo": _A_in["wo"],
        "B_x": _B_in["x"],
        "B_dft_seq_re": _B_in["dft_seq_re"],
        "B_dft_seq_im": _B_in["dft_seq_im"],
        "B_dft_hid_re": _B_in["dft_hid_re"],
        "B_dft_hid_im": _B_in["dft_hid_im"],
        "gate_w": _w((lambda *s: torch.randn(*s, dtype=torch.bfloat16) * 0.05)(640) * 16.0),
    }

def reference(A_x, A_wqkv, A_wo, B_x, B_dft_seq_re, B_dft_seq_im, B_dft_hid_re, B_dft_hid_im, gate_w):
    def _A_ref(x, wqkv, wo):
        B, S, D = x.shape
        H = 32; Dh = D // H
        W, dil = 8, 2
        qkv = (lambda x, *d: x.permute(*d))((x @ wqkv).reshape(B, S, 3, H, Dh), 2, 0, 3, 1, 4)
        q, k, v = qkv[0], qkv[1], qkv[2]
        scale = Dh ** -0.5
        pos = torch.arange(S)
        off = torch.arange(W) * dil
        idx = pos[:, None] - off[None, :]
        mask = idx >= 0
        idx_c = torch.where(mask, idx, 0).reshape(-1)
        kg = k[:, :, idx_c, :].reshape(B, H, S, W, Dh)
        vg = v[:, :, idx_c, :].reshape(B, H, S, W, Dh)
        logits = torch.einsum("bhsd,bhswd->bhsw", q, kg) * scale
        logits = torch.where(mask[None, None, :, :], logits, -1e9)
        attn = _softmax(logits, axis=-1)
        o = torch.einsum("bhsw,bhswd->bhsd", attn, vg)
        return (lambda x, *d: x.permute(*d))(o, 0, 2, 1, 3).reshape(B, S, D) @ wo

    def _B_ref(x, dft_seq_re, dft_seq_im, dft_hid_re, dft_hid_im):
        a = torch.einsum("bsd,ed->bse", x, dft_hid_re)
        b = torch.einsum("bsd,ed->bse", x, dft_hid_im)
        y = torch.einsum("ts,bse->bte", dft_seq_re, a) - torch.einsum("ts,bse->bte", dft_seq_im, b)
        return y

    x = A_x
    g = _sigmoid((x * gate_w).sum(-1, keepdims=True))
    a = _A_ref(x, A_wqkv, A_wo)
    b = _B_ref(x, B_dft_seq_re, B_dft_seq_im, B_dft_hid_re, B_dft_hid_im)
    return g * a + (1 - g) * b
```

```python
NAME = "gated_mix__sliding_local_dilated__spectral_fnet__prompt"
class Asm:
    def __init__(self):
        self.l = []
    def __call__(self, s=""):
        for x in s.split("\n"):
            self.l.append(x)
    def text(self):
        return "\n".join(self.l) + "\n"

def kd(name, vgpr, sgpr=102, accum=None):
    if accum is None:
        accum = min(256, (vgpr + 3) // 4 * 4)
    return f""".amdhsa_kernel {name}
  .amdhsa_next_free_vgpr {vgpr}
  .amdhsa_next_free_sgpr {sgpr}
  .amdhsa_accum_offset {accum}
  .amdhsa_group_segment_fixed_size 0
  .amdhsa_kernarg_size 96
  .amdhsa_user_sgpr_count 2
  .amdhsa_user_sgpr_kernarg_segment_ptr 1
  .amdhsa_system_sgpr_workgroup_id_x 1
.end_amdhsa_kernel
"""
def khead(name):
    return f""".globl {name}
.p2align 8
.type {name},@function
{name}:"""
```

```python
import sys
from asmlib import *
WT = 0
WOT = WT + 1920*640*2
QKV = 0x400000
AT = 0xC00000
BT = 0x1000000
O = 0x1400000
YA = 0x1800000
YB = 0x2000000
SZ = {0:2621440, 8:2457600, 16:819200, 24:2621440, 32:8388608, 40:8388608, 48:819200, 56:819200, 64:1280, 72:2621440, 88:0x10000000}
def srd(a, r, slot):
    a(f"s_load_dwordx2 s[{r}:{r+1}], s[0:1], {slot}")
def srd2(a, r, slot):
    a(f"s_mov_b32 s{r+2}, {SZ[slot]}\ns_mov_b32 s{r+3}, 0x20000")

def k_tr(a, name, slot, K, N, dst):
    a(khead(name))
    a(f"s_cmp_ge_u32 s2, {N*K//640}\ns_cbranch_scc1 {name}_end")
    srd(a, 4, slot); srd(a, 8, 88); a("s_waitcnt lgkmcnt(0)"); srd2(a, 4, slot); srd2(a, 8, 88)
    a(f"""v_mul_u32_u24 v1, {N*2}, v0
    s_lshl_b32 s12, s2, 1
    buffer_load_ushort v2, v1, s[4:7], s12 offen
    v_lshlrev_b32 v3, 1, v0
    s_mul_i32 s13, s2, {K*2}
    s_add_u32 s13, s13, {dst}
    s_waitcnt vmcnt(0)
    buffer_store_short v2, v3, s[8:11], s13 offen
{name}_end:
    s_endpgm""")

def k_gemm(a, name, terms, M, N, K, dst, f32, neg=False):
    nb = N // 32
    nwg = (M // 32) * nb
    a(khead(name))
    a(f"s_cmp_ge_u32 s2, {nwg}\ns_cbranch_scc1 {name}_end")
    srd(a, 12, 88)
    a(f"""s_mov_b32 s20, {(2**32 + nb - 1)//nb}
    s_mul_hi_u32 s21, s2, s20
    s_mul_i32 s22, s21, {nb}
    s_sub_u32 s22, s2, s22
    v_and_b32 v1, 15, v0
    v_lshrrev_b32 v2, 4, v0
    v_mul_u32_u24 v3, {K*2}, v1
    v_lshl_add_u32 v3, v2, 4, v3
    v_add_u32 v4, {16*K*2}, v3""")
    for i in range(16): a(f"v_mov_b32 v{32+i}, 0")
    for ti, (sa, oa, sb, ob) in enumerate(terms):
        srd(a, 4, sa); srd(a, 8, sb); a("s_waitcnt lgkmcnt(0)"); srd2(a, 4, sa); srd2(a, 8, sb)
        a(f"""s_mul_i32 s24, s21, {32*K*2}
        s_add_u32 s24, s24, {oa}
        s_mul_i32 s25, s22, {32*K*2}
        s_add_u32 s25, s25, {ob}
        s_mov_b32 s26, {K//32}
{name}_l{ti}:
        buffer_load_dwordx4 v[8:11], v3, s[4:7], s24 offen
        buffer_load_dwordx4 v[12:15], v4, s[4:7], s24 offen
        buffer_load_dwordx4 v[16:19], v3, s[8:11], s25 offen
        buffer_load_dwordx4 v[20:23], v4, s[8:11], s25 offen
        s_add_u32 s24, s24, 64
        s_add_u32 s25, s25, 64
        s_sub_u32 s26, s26, 1
        s_cmp_lg_u32 s26, 0
        s_waitcnt vmcnt(0)
        v_mfma_f32_16x16x32_bf16 v[32:35], v[8:11], v[16:19], v[32:35]
        v_mfma_f32_16x16x32_bf16 v[36:39], v[8:11], v[20:23], v[36:39]
        v_mfma_f32_16x16x32_bf16 v[40:43], v[12:15], v[16:19], v[40:43]
        v_mfma_f32_16x16x32_bf16 v[44:47], v[12:15], v[20:23], v[44:47]
        s_nop 7
        s_cbranch_scc1 {name}_l{ti}""")
    srd2(a, 12, 88)
    es = 4 if f32 else 2
    a(f"""s_nop 7
    v_lshlrev_b32 v5, 2, v2
    v_mul_u32_u24 v5, {N*es}, v5
    v_mad_u32_u24 v5, v1, {es}, v5
    s_mul_i32 s24, s21, {32*N*es}
    s_mul_i32 s25, s22, {32*es}
    s_add_u32 s24, s24, s25
    s_add_u32 s24, s24, {dst}""")
    for t in range(4):
        for r in range(4):
            off = ((t >> 1) * 16 + r) * N * es + (t & 1) * 16 * es
            v = 32 + 4 * t + r
            a(f"s_add_u32 s25, s24, {off}")
            if f32:
                a(f"buffer_store_dword v{v}, v5, s[12:15], s25 offen")
            else:
                n = "-" if neg else ""
                a(f"v_cvt_pk_bf16_f32 v{v}, {n}v{v}, {n}v{v}\nbuffer_store_short v{v}, v5, s[12:15], s25 offen")
    a(f"{name}_end:\ns_endpgm")
    return nwg

def k_attn(a, name):
    a(khead(name))
    a(f"s_cmp_ge_u32 s2, 256\ns_cbranch_scc1 {name}_end")
    srd(a, 4, 88); a("s_waitcnt lgkmcnt(0)"); srd2(a, 4, 88)
    a(f"""v_lshrrev_b32 v1, 5, v0
    s_lshl_b32 s8, s2, 3
    v_add_u32 v1, s8, v1          ; row
    v_and_b32 v2, 31, v0
    v_mul_u32_u24 v2, 40, v2
    v_mul_u32_u24 v3, 3840, v1
    v_add_u32 v3, v3, v2
    s_mov_b32 s9, {QKV}""")
    def ld(dst, vo, off):
        for i in range(5):
            a(f"buffer_load_dwordx2 v[{dst+2*i}:{dst+2*i+1}], {vo}, s[4:7], s9 offen offset:{off+8*i}")
    def unpack(dst, src):
        for i in range(10):
            a(f"v_lshlrev_b32 v{dst+2*i}, 16, v{src+i}\nv_and_b32 v{dst+2*i+1}, 0xffff0000, v{src+i}")
    ld(10, "v3", 0); a("s_waitcnt vmcnt(0)"); unpack(20, 10)
    for w in range(8):
        a(f"""v_subrev_u32 v4, {2*w}, v1
        v_cmp_le_i32 vcc, 0, v4
        v_max_i32 v4, 0, v4
        v_mul_u32_u24 v4, 3840, v4
        v_add_u32 v{90+w}, v4, v2""")
        ld(10, f"v{90+w}", 1280); a("s_waitcnt vmcnt(0)"); unpack(40, 10)
        a(f"v_mov_b32 v5, 0")
        for i in range(20): a(f"v_fmac_f32 v5, v{20+i}, v{40+i}")
        a(f"v_mul_f32 v5, {0.22360679774997896*1.4426950408889634!r}, v5\nv_mov_b32 v6, 0xce6e6b28\nv_cndmask_b32 v{80+w}, v6, v5, vcc")
    a("v_max3_f32 v5, v80, v81, v82\nv_max3_f32 v5, v5, v83, v84\nv_max3_f32 v5, v5, v85, v86\nv_max_f32 v5, v5, v87\nv_mov_b32 v6, 0")
    for w in range(8):
        a(f"v_sub_f32 v{80+w}, v{80+w}, v5\nv_exp_f32 v{80+w}, v{80+w}\ns_nop 0\nv_add_f32 v6, v6, v{80+w}")
    a("v_rcp_f32 v6, v6")
    for i in range(20): a(f"v_mov_b32 v{60+i}, 0")
    for w in range(8):
        ld(10, f"v{90+w}", 2560); a("s_waitcnt vmcnt(0)"); unpack(40, 10)
        for i in range(20): a(f"v_fmac_f32 v{60+i}, v{80+w}, v{40+i}")
    for i in range(20): a(f"v_mul_f32 v{60+i}, v6, v{60+i}")
    for i in range(10): a(f"v_cvt_pk_bf16_f32 v{10+i}, v{60+2*i}, v{61+2*i}")
    a(f"v_mul_u32_u24 v3, 1280, v1\nv_add_u32 v3, v3, v2\ns_mov_b32 s9, {O}")
    for i in range(5):
        a(f"buffer_store_dwordx2 v[{10+2*i}:{11+2*i}], v3, s[4:7], s9 offen offset:{8*i}")
    a(f"{name}_end:\ns_endpgm")

def k_final(a, name):
    a(khead(name))
    a(f"s_cmp_ge_u32 s2, 2048\ns_cbranch_scc1 {name}_end")
    srd(a, 4, 0); srd(a, 8, 64); srd(a, 12, 88); srd(a, 16, 72); a("s_waitcnt lgkmcnt(0)")
    srd2(a, 4, 0); srd2(a, 8, 64); srd2(a, 12, 88); srd2(a, 16, 72)
    a(f"""v_lshlrev_b32 v1, 2, v0
    v_lshlrev_b32 v2, 3, v0
    s_mul_i32 s20, s2, 1280
    s_mul_i32 s21, s2, 2560
    s_add_u32 s22, s21, {YB}
    s_add_u32 s21, s21, {YA}""")
    for i in range(5):
        a(f"""buffer_load_dword v{10+i}, v1, s[4:7], s20 offen offset:{256*i}
        buffer_load_dword v{16+i}, v1, s[8:11], 0 offen offset:{256*i}
        buffer_load_dwordx2 v[{24+2*i}:{25+2*i}], v2, s[12:15], s21 offen offset:{512*i}
        buffer_load_dwordx2 v[{36+2*i}:{37+2*i}], v2, s[12:15], s22 offen offset:{512*i}""")
    a("s_waitcnt vmcnt(0)\nv_mov_b32 v5, 0")
    for i in range(5):
        a(f"""v_lshlrev_b32 v6, 16, v{10+i}
        v_lshlrev_b32 v7, 16, v{16+i}
        v_fmac_f32 v5, v6, v7
        v_and_b32 v6, 0xffff0000, v{10+i}
        v_and_b32 v7, 0xffff0000, v{16+i}
        v_fmac_f32 v5, v6, v7""")
    for m in (1, 2, 4, 8, 16, 32):
        a(f"v_xor_b32 v6, {m}, v0\nv_lshlrev_b32 v6, 2, v6\nds_bpermute_b32 v7, v6, v5\ns_waitcnt lgkmcnt(0)\nv_add_f32 v5, v5, v7")
    a("""v_mul_f32 v5, -1.4426950408889634, v5
    v_exp_f32 v5, v5
    s_nop 0
    v_add_f32 v5, 1.0, v5
    v_rcp_f32 v5, v5
    s_nop 0
    v_sub_f32 v6, 1.0, v5""")
    for i in range(10):
        a(f"v_mul_f32 v{24+i}, v5, v{24+i}\nv_fmac_f32 v{24+i}, v6, v{36+i}")
    for i in range(5):
        a(f"v_cvt_pk_bf16_f32 v{10+i}, v{24+2*i}, v{25+2*i}\nbuffer_store_dword v{10+i}, v1, s[16:19], s20 offen offset:{256*i}")
    a(f"{name}_end:\ns_endpgm")

def k_empty(a, name):
    a(khead(name)); a("s_endpgm")

def k_chain(a, name, slot, n, stride):
    a(khead(name))
    a(f"s_cmp_ge_u32 s2, 1\ns_cbranch_scc1 {name}_end")
    srd(a, 4, slot); a("s_waitcnt lgkmcnt(0)"); srd2(a, 4, slot)
    a(f"""v_mov_b32 v1, 0
    s_mov_b32 s8, {n}
    s_mov_b32 s9, 0
{name}_l:
    buffer_load_dword v2, v1, s[4:7], s9 offen
    s_add_u32 s9, s9, {stride}
    s_sub_u32 s8, s8, 1
    s_cmp_lg_u32 s8, 0
    s_waitcnt vmcnt(0)
    s_cbranch_scc1 {name}_l
{name}_end:
    s_endpgm""")

def gen(fn, nempty=0, chain=None, emptygrid=256):
    b = Asm(); L = []
    if chain:
        k_chain(b, "ch_kernel", *chain); L.append(("ch_kernel", 1, 64, 8))
    if nempty:
        k_empty(b, "em_kernel"); L += [("em_kernel", emptygrid, 256, 8)] * nempty
    k_tr(b, "t1_kernel", 8, 640, 1920, WT); L.append(("t1_kernel", 1920, 640, 8))
    k_tr(b, "t2_kernel", 16, 640, 640, WOT); L.append(("t2_kernel", 640, 640, 8))
    n = k_gemm(b, "g1_kernel", [(0, 0, 88, WT)], 2048, 1920, 640, QKV, False); L.append(("g1_kernel", n, 64, 48))
    n = k_gemm(b, "g2_kernel", [(48, 0, 0, 0)], 640, 2048, 640, AT, False); L.append(("g2_kernel", n, 64, 48))
    n = k_gemm(b, "g3_kernel", [(56, 0, 0, 0)], 640, 2048, 640, BT, False, neg=True); L.append(("g3_kernel", n, 64, 48))
    k_attn(b, "at_kernel"); L.append(("at_kernel", 256, 256, 104))
    n = k_gemm(b, "g4_kernel", [(88, O, 88, WOT)], 2048, 640, 640, YA, True); L.append(("g4_kernel", n, 64, 48))
    n = k_gemm(b, "g5_kernel", [(32, 0, 88, AT), (40, 0, 88, BT)], 2048, 640, 2048, YB, True); L.append(("g5_kernel", n, 64, 48))
    k_final(b, "fi_kernel"); L.append(("fi_kernel", 2048, 64, 48))
    a = Asm()
    for (k, g, bl, _) in L:
        a(f"; @launch kernel={k} grid=({g},1,1) block=({bl},1,1) lds=0")
    a('.amdgcn_target "amdgcn-amd-amdhsa--gfx950"\n.text')
    a(b.text())
    a('.section .rodata,"a"')
    seen = set()
    for (k, g, bl, v) in L:
        if k in seen: continue
        seen.add(k)
        a(".p2align 6"); a(kd(k, v, 40))
    open(fn, "w").write(a.text())
gen("naive0.s")
gen("naive_e100.s", nempty=100)
gen("naive_chx.s", chain=(0, 400, 4096+128))
gen("naive_chb.s", chain=(24, 400, 4096+128))
gen("naive_chw.s", chain=(88, 400, 4096+128))
```

```python
import sys
from asmlib import *
WT = 0
WOT = WT + 1920*640*2
QKV = 0x400000
AT = 0xC00000
BT = 0x1000000
O = 0x1400000
YA = 0x1800000
YB = 0x2000000
SZ = {0:2621440, 8:2457600, 16:819200, 24:2621440, 32:8388608, 40:8388608, 48:819200, 56:819200, 64:1280, 72:2621440, 88:0x10000000}
def srd(a, r, slot):
    a(f"s_load_dwordx2 s[{r}:{r+1}], s[0:1], {slot}")
def srd2(a, r, slot):
    a(f"s_mov_b32 s{r+2}, {SZ[slot]}\ns_mov_b32 s{r+3}, 0x20000")

def k_tr(a, name, slot, K, N, dst):
    a(khead(name))
    a(f"s_cmp_ge_u32 s2, {N*K//640}\ns_cbranch_scc1 {name}_end")
    srd(a, 4, slot); srd(a, 8, 88); a("s_waitcnt lgkmcnt(0)"); srd2(a, 4, slot); srd2(a, 8, 88)
    a(f"""v_mul_u32_u24 v1, {N*2}, v0
    s_lshl_b32 s12, s2, 1
    buffer_load_ushort v2, v1, s[4:7], s12 offen
    v_lshlrev_b32 v3, 1, v0
    s_mul_i32 s13, s2, {K*2}
    s_add_u32 s13, s13, {dst}
    s_waitcnt vmcnt(0)
    buffer_store_short v2, v3, s[8:11], s13 offen
{name}_end:
    s_endpgm""")

def k_gemm(a, name, terms, M, N, K, dst, f32, neg=False):
    nb = N // 32
    nwg = (M // 32) * nb
    a(khead(name))
    a(f"s_cmp_ge_u32 s2, {nwg}\ns_cbranch_scc1 {name}_end")
    srd(a, 12, 88)
    a(f"""s_mov_b32 s20, {(2**32 + nb - 1)//nb}
    s_mul_hi_u32 s21, s2, s20
    s_mul_i32 s22, s21, {nb}
    s_sub_u32 s22, s2, s22
    v_and_b32 v1, 15, v0
    v_lshrrev_b32 v2, 4, v0
    v_mul_u32_u24 v3, {K*2}, v1
    v_lshl_add_u32 v3, v2, 4, v3
    v_add_u32 v4, {16*K*2}, v3""")
    for i in range(16): a(f"v_mov_b32 v{32+i}, 0")
    for ti, (sa, oa, sb, ob) in enumerate(terms):
        srd(a, 4, sa); srd(a, 8, sb); a("s_waitcnt lgkmcnt(0)"); srd2(a, 4, sa); srd2(a, 8, sb)
        a(f"""s_mul_i32 s24, s21, {32*K*2}
        s_add_u32 s24, s24, {oa}
        s_mul_i32 s25, s22, {32*K*2}
        s_add_u32 s25, s25, {ob}
        s_mov_b32 s26, {K//32}
{name}_l{ti}:
        buffer_load_dwordx4 v[8:11], v3, s[4:7], s24 offen
        buffer_load_dwordx4 v[12:15], v4, s[4:7], s24 offen
        buffer_load_dwordx4 v[16:19], v3, s[8:11], s25 offen
        buffer_load_dwordx4 v[20:23], v4, s[8:11], s25 offen
        s_add_u32 s24, s24, 64
        s_add_u32 s25, s25, 64
        s_sub_u32 s26, s26, 1
        s_cmp_lg_u32 s26, 0
        s_waitcnt vmcnt(0)
        v_mfma_f32_16x16x32_bf16 v[32:35], v[8:11], v[16:19], v[32:35]
        v_mfma_f32_16x16x32_bf16 v[36:39], v[8:11], v[20:23], v[36:39]
        v_mfma_f32_16x16x32_bf16 v[40:43], v[12:15], v[16:19], v[40:43]
        v_mfma_f32_16x16x32_bf16 v[44:47], v[12:15], v[20:23], v[44:47]
        s_nop 7
        s_cbranch_scc1 {name}_l{ti}""")
    srd2(a, 12, 88)
    es = 4 if f32 else 2
    a(f"""s_nop 7
    v_lshlrev_b32 v5, 2, v2
    v_mul_u32_u24 v5, {N*es}, v5
    v_mad_u32_u24 v5, v1, {es}, v5
    s_mul_i32 s24, s21, {32*N*es}
    s_mul_i32 s25, s22, {32*es}
    s_add_u32 s24, s24, s25
    s_add_u32 s24, s24, {dst}""")
    for t in range(4):
        for r in range(4):
            off = ((t >> 1) * 16 + r) * N * es + (t & 1) * 16 * es
            v = 32 + 4 * t + r
            a(f"s_add_u32 s25, s24, {off}")
            if f32:
                a(f"buffer_store_dword v{v}, v5, s[12:15], s25 offen")
            else:
                n = "-" if neg else ""
                a(f"v_cvt_pk_bf16_f32 v{v}, {n}v{v}, {n}v{v}\nbuffer_store_short v{v}, v5, s[12:15], s25 offen")
    a(f"{name}_end:\ns_endpgm")
    return nwg

def k_attn(a, name):
    a(khead(name))
    a(f"s_cmp_ge_u32 s2, 256\ns_cbranch_scc1 {name}_end")
    srd(a, 4, 88); a("s_waitcnt lgkmcnt(0)"); srd2(a, 4, 88)
    a(f"""v_lshrrev_b32 v1, 5, v0
    s_lshl_b32 s8, s2, 3
    v_add_u32 v1, s8, v1          ; row
    v_and_b32 v2, 31, v0
    v_mul_u32_u24 v2, 40, v2
    v_mul_u32_u24 v3, 3840, v1
    v_add_u32 v3, v3, v2
    s_mov_b32 s9, {QKV}""")
    def ld(dst, vo, off):
        for i in range(5):
            a(f"buffer_load_dwordx2 v[{dst+2*i}:{dst+2*i+1}], {vo}, s[4:7], s9 offen offset:{off+8*i}")
    def unpack(dst, src):
        for i in range(10):
            a(f"v_lshlrev_b32 v{dst+2*i}, 16, v{src+i}\nv_and_b32 v{dst+2*i+1}, 0xffff0000, v{src+i}")
    ld(10, "v3", 0); a("s_waitcnt vmcnt(0)"); unpack(20, 10)
    for w in range(8):
        a(f"""v_subrev_u32 v4, {2*w}, v1
        v_cmp_le_i32 vcc, 0, v4
        v_max_i32 v4, 0, v4
        v_mul_u32_u24 v4, 3840, v4
        v_add_u32 v{90+w}, v4, v2""")
        ld(10, f"v{90+w}", 1280); a("s_waitcnt vmcnt(0)"); unpack(40, 10)
        a(f"v_mov_b32 v5, 0")
        for i in range(20): a(f"v_fmac_f32 v5, v{20+i}, v{40+i}")
        a(f"v_mul_f32 v5, {0.22360679774997896*1.4426950408889634!r}, v5\nv_mov_b32 v6, 0xce6e6b28\nv_cndmask_b32 v{80+w}, v6, v5, vcc")
    a("v_max3_f32 v5, v80, v81, v82\nv_max3_f32 v5, v5, v83, v84\nv_max3_f32 v5, v5, v85, v86\nv_max_f32 v5, v5, v87\nv_mov_b32 v6, 0")
    for w in range(8):
        a(f"v_sub_f32 v{80+w}, v{80+w}, v5\nv_exp_f32 v{80+w}, v{80+w}\ns_nop 0\nv_add_f32 v6, v6, v{80+w}")
    a("v_rcp_f32 v6, v6")
    for i in range(20): a(f"v_mov_b32 v{60+i}, 0")
    for w in range(8):
        ld(10, f"v{90+w}", 2560); a("s_waitcnt vmcnt(0)"); unpack(40, 10)
        for i in range(20): a(f"v_fmac_f32 v{60+i}, v{80+w}, v{40+i}")
    for i in range(20): a(f"v_mul_f32 v{60+i}, v6, v{60+i}")
    for i in range(10): a(f"v_cvt_pk_bf16_f32 v{10+i}, v{60+2*i}, v{61+2*i}")
    a(f"v_mul_u32_u24 v3, 1280, v1\nv_add_u32 v3, v3, v2\ns_mov_b32 s9, {O}")
    for i in range(5):
        a(f"buffer_store_dwordx2 v[{10+2*i}:{11+2*i}], v3, s[4:7], s9 offen offset:{8*i}")
    a(f"{name}_end:\ns_endpgm")

def k_final(a, name):
    a(khead(name))
    a(f"s_cmp_ge_u32 s2, 2048\ns_cbranch_scc1 {name}_end")
    srd(a, 4, 0); srd(a, 8, 64); srd(a, 12, 88); srd(a, 16, 72); a("s_waitcnt lgkmcnt(0)")
    srd2(a, 4, 0); srd2(a, 8, 64); srd2(a, 12, 88); srd2(a, 16, 72)
    a(f"""v_lshlrev_b32 v1, 2, v0
    v_lshlrev_b32 v2, 3, v0
    s_mul_i32 s20, s2, 1280
    s_mul_i32 s21, s2, 2560
    s_add_u32 s22, s21, {YB}
    s_add_u32 s21, s21, {YA}""")
    for i in range(5):
        a(f"""buffer_load_dword v{10+i}, v1, s[4:7], s20 offen offset:{256*i}
        buffer_load_dword v{16+i}, v1, s[8:11], 0 offen offset:{256*i}
        buffer_load_dwordx2 v[{24+2*i}:{25+2*i}], v2, s[12:15], s21 offen offset:{512*i}
        buffer_load_dwordx2 v[{36+2*i}:{37+2*i}], v2, s[12:15], s22 offen offset:{512*i}""")
    a("s_waitcnt vmcnt(0)\nv_mov_b32 v5, 0")
    for i in range(5):
        a(f"""v_lshlrev_b32 v6, 16, v{10+i}
        v_lshlrev_b32 v7, 16, v{16+i}
        v_fmac_f32 v5, v6, v7
        v_and_b32 v6, 0xffff0000, v{10+i}
        v_and_b32 v7, 0xffff0000, v{16+i}
        v_fmac_f32 v5, v6, v7""")
    for m in (1, 2, 4, 8, 16, 32):
        a(f"v_xor_b32 v6, {m}, v0\nv_lshlrev_b32 v6, 2, v6\nds_bpermute_b32 v7, v6, v5\ns_waitcnt lgkmcnt(0)\nv_add_f32 v5, v5, v7")
    a("""v_mul_f32 v5, -1.4426950408889634, v5
    v_exp_f32 v5, v5
    s_nop 0
    v_add_f32 v5, 1.0, v5
    v_rcp_f32 v5, v5
    s_nop 0
    v_sub_f32 v6, 1.0, v5""")
    for i in range(10):
        a(f"v_mul_f32 v{24+i}, v5, v{24+i}\nv_fmac_f32 v{24+i}, v6, v{36+i}")
    for i in range(5):
        a(f"v_cvt_pk_bf16_f32 v{10+i}, v{24+2*i}, v{25+2*i}\nbuffer_store_dword v{10+i}, v1, s[16:19], s20 offen offset:{256*i}")
    a(f"{name}_end:\ns_endpgm")

def k_empty(a, name):
    a(khead(name)); a("s_endpgm")

def k_chain(a, name, slot, n, stride):
    a(khead(name))
    a(f"s_cmp_ge_u32 s2, 1\ns_cbranch_scc1 {name}_end")
    srd(a, 4, slot); a("s_waitcnt lgkmcnt(0)"); srd2(a, 4, slot)
    a(f"""v_mov_b32 v1, 0
    s_mov_b32 s8, {n}
    s_mov_b32 s9, 0
{name}_l:
    buffer_load_dword v2, v1, s[4:7], s9 offen
    s_add_u32 s9, s9, {stride}
    s_sub_u32 s8, s8, 1
    s_cmp_lg_u32 s8, 0
    s_waitcnt vmcnt(0)
    s_cbranch_scc1 {name}_l
{name}_end:
    s_endpgm""")

def k_rd(a, name, nwg, aux, base):
    a(khead(name))
    a(f"s_cmp_ge_u32 s2, {nwg}\ns_cbranch_scc1 {name}_end")
    srd(a, 4, 88); a("s_waitcnt lgkmcnt(0)"); srd2(a, 4, 88)
    a(f"v_lshlrev_b32 v1, 4, v0\ns_lshl_b32 s8, s2, 15\ns_add_u32 s8, s8, {base}")
    for i in range(8):
        a(f"buffer_load_dwordx4 v[{4+4*i}:{7+4*i}], v1, s[4:7], s8 offen {aux}\ns_add_u32 s8, s8, 4096")
    a(f"s_waitcnt vmcnt(0)\n{name}_end:\ns_endpgm")

def gen(fn, nempty=0, chain=None, emptygrid=256, rd=None):
    b = Asm(); L = []
    if rd:
        k_rd(b, "rd_kernel", *rd); L.append(("rd_kernel", rd[0], 256, 40))
    if chain:
        k_chain(b, "ch_kernel", *chain); L.append(("ch_kernel", 1, 64, 8))
    if nempty:
        k_empty(b, "em_kernel"); L += [("em_kernel", emptygrid, 256, 8)] * nempty
    k_tr(b, "t1_kernel", 8, 640, 1920, WT); L.append(("t1_kernel", 1920, 640, 8))
    k_tr(b, "t2_kernel", 16, 640, 640, WOT); L.append(("t2_kernel", 640, 640, 8))
    n = k_gemm(b, "g1_kernel", [(0, 0, 88, WT)], 2048, 1920, 640, QKV, False); L.append(("g1_kernel", n, 64, 48))
    n = k_gemm(b, "g2_kernel", [(48, 0, 0, 0)], 640, 2048, 640, AT, False); L.append(("g2_kernel", n, 64, 48))
    n = k_gemm(b, "g3_kernel", [(56, 0, 0, 0)], 640, 2048, 640, BT, False, neg=True); L.append(("g3_kernel", n, 64, 48))
    k_attn(b, "at_kernel"); L.append(("at_kernel", 256, 256, 104))
    n = k_gemm(b, "g4_kernel", [(88, O, 88, WOT)], 2048, 640, 640, YA, True); L.append(("g4_kernel", n, 64, 48))
    n = k_gemm(b, "g5_kernel", [(32, 0, 88, AT), (40, 0, 88, BT)], 2048, 640, 2048, YB, True); L.append(("g5_kernel", n, 64, 48))
    k_final(b, "fi_kernel"); L.append(("fi_kernel", 2048, 64, 48))
    a = Asm()
    for (k, g, bl, _) in L:
        a(f"; @launch kernel={k} grid=({g},1,1) block=({bl},1,1) lds=0")
    a('.amdgcn_target "amdgcn-amd-amdhsa--gfx950"\n.text')
    a(b.text())
    a('.section .rodata,"a"')
    seen = set()
    for (k, g, bl, v) in L:
        if k in seen: continue
        seen.add(k)
        a(".p2align 6"); a(kd(k, v, 40))
    open(fn, "w").write(a.text())
gen("naive0.s")
gen("naive_e100.s", nempty=100)
gen("naive_chx.s", chain=(0, 400, 4096+128))
gen("naive_chb.s", chain=(24, 400, 4096+128))
gen("naive_chw.s", chain=(88, 400, 4096+128))

gen("naive_rd64.s", rd=(2048, "", 0x4000000))
gen("naive_rd64nt.s", rd=(2048, "nt", 0x4000000))
gen("naive_rd64hi.s", rd=(2048, "", 0xC000000))
gen("naive_rd128.s", rd=(4096, "", 0x4000000))
```

```python
import re
NAME = "gated_mix__sliding_local_dilated__spectral_fnet__prompt"

class Asm:
    def __init__(self):
        self.l = []
    def __call__(self, s=""):
        for x in s.split("\n"):
            x = x.strip()
            if x: self.l.append(x)
    def ext(self, other):
        self.l += other.l if isinstance(other, Asm) else list(other)
    def text(self):
        return "\n".join(self.l) + "\n"

def v(i, n=1): return f"v{i}" if n == 1 else f"v[{i}:{i+n-1}]"
def s(i, n=1): return f"s{i}" if n == 1 else f"s[{i}:{i+n-1}]"

def interleave(main, fill, per=1, start=0):
    out = []; fill = list(fill)
    for i, m in enumerate(main):
        out.append(m)
        if i >= start:
            for _ in range(per):
                if fill: out.append(fill.pop(0))
    return out + fill

_REG = re.compile(r"\b([vsa])(?:(\d+)|\[(\d+):(\d+)\])")
def regs(tok):
    out = set()
    for m in _REG.finditer(tok):
        k = m.group(1)
        if m.group(2) is not None: out.add((k, int(m.group(2))))
        else: out |= {(k, i) for i in range(int(m.group(3)), int(m.group(4)) + 1)}
    if re.search(r"\bvcc\b", tok): out |= {("s", "vcc")}
    if re.search(r"\bm0\b", tok): out |= {("s", "m0")}
    if re.search(r"\bexec(_lo|_hi)?\b", tok): out |= {("s", "exec")}
    return out

TRANS = ("v_exp_", "v_log_", "v_rcp_", "v_rsq_", "v_sqrt_", "v_sin_", "v_cos_")
class Ins:
    def __init__(self, line):
        self.line = line
        t = line.split(";")[0].strip()
        self.real = bool(t) and not t.endswith(":") and not t.startswith(".")
        self.label = t.endswith(":")
        if not self.real: return
        p = t.split(None, 1); op = self.op = p[0]
        ops = [x.strip() for x in (p[1].split(",") if len(p) > 1 else [])]
        self.ops = ops
        self.mfma = op.startswith("v_mfma")
        self.valu = op.startswith("v_") and not self.mfma
        self.trans = op.startswith(TRANS)
        self.ds = op.startswith("ds_")
        self.vmem = op.startswith(("buffer_", "global_"))
        self.salu = op.startswith("s_")
        self.dpp = "dpp" in op or "row_" in t or "quad_perm" in t
        self.perm = op.startswith("v_permlane")
        self.ldsdma = self.vmem and re.search(r"\blds\b", t) is not None
        w = set(); r = set()
        if self.mfma:
            w = regs(ops[0]); self.ab = regs(ops[1]) | regs(ops[2]); self.c = regs(ops[3]); r = self.ab | self.c
        elif self.valu:
            if self.perm:
                w = regs(ops[0]) | regs(ops[1]); r = set(w)
            else:
                w = regs(ops[0]); rest = ops[1:]
                if re.match(r"v_(add|sub|subrev|addc|subb)_co", op): w |= regs(ops[1]); rest = ops[2:]
                for o in rest: r |= regs(o)
                if op.startswith(("v_fmac", "v_dot2c", "v_writelane")) or self.dpp: r |= regs(ops[0])
                if op.startswith("v_cmpx"): w |= {("s", "exec")}
        elif self.ds:
            if op.startswith(("ds_read", "ds_bpermute", "ds_permute", "ds_swizzle")) or "_rtn" in op:
                w = regs(ops[0]);
                for o in ops[1:]: r |= regs(o)
            else:
                for o in ops: r |= regs(o)
        elif self.vmem:
            if "load" in op and not self.ldsdma:
                w = regs(ops[0])
                for o in ops[1:]: r |= regs(o)
            else:
                for o in ops: r |= regs(o)
                if self.ldsdma: r |= {("s", "m0")}
            self.wide_store = re.search(r"store_dwordx[34]", op) is not None
            if self.wide_store: self.sdata = regs(ops[0] if op.startswith("buffer") else ops[1])
        elif self.salu:
            if op.startswith(("s_cmp", "s_cbranch", "s_branch", "s_waitcnt", "s_barrier", "s_nop", "s_endpgm", "s_setprio", "s_sleep", "s_bitcmp")):
                for o in ops: r |= regs(o)
            else:
                w = regs(ops[0])
                for o in ops[1:]: r |= regs(o)
                if "saveexec" in op: w |= {("s", "exec")}
        self.w, self.r = w, r
        self.states = int(ops[0], 0) + 1 if op == "s_nop" else 1

def need(p, c):
    n = 0
    vw = {x for x in p.w if x[0] in "va"}; sw = {x for x in p.w if x[0] == "s"}
    if p.mfma:
        big = "32x32" in p.op
        if c.mfma:
            if vw & c.ab: n = max(n, 12 if big else 8)
            if vw & c.c and not (c.c == vw and c.op == p.op): n = max(n, 10 if big else 6)
            if vw & c.w and not (c.c == vw and c.op == p.op): n = max(n, 10 if big else 6)
        elif (c.valu or c.ds or c.vmem) and vw & (c.r | c.w): n = max(n, 12 if big else 8)
        if c.valu and p.c & c.w: n = max(n, 7 if big else 3)
    if p.valu:
        dot = p.op.startswith("v_dot")
        if c.mfma and vw & c.r: n = max(n, 3 if dot else 2)
        if dot and (c.valu or c.ds or c.vmem) and vw & (c.r | c.w):
            same_c = c.op == p.op and not (vw & (regs(c.ops[1]) | regs(c.ops[2])))
            if not same_c: n = max(n, 3)
        if c.valu:
            if (c.perm or c.dpp) and vw & c.r: n = max(n, 2)
            if p.trans and not c.trans and vw & c.r: n = max(n, 1)
            if c.op.startswith(("v_readlane", "v_readfirstlane")) and vw & c.r: n = max(n, 1)
            if sw & c.r: n = max(n, 4 if c.op.startswith(("v_readlane", "v_writelane")) else 2)
            if ("s", "exec") in sw: n = max(n, 5)
        if c.mfma and ("s", "exec") in sw: n = max(n, 4)
        if c.vmem and sw & c.r: n = max(n, 5)
        if p.trans and (c.ds or c.vmem) and vw & c.r: n = max(n, 1)
    if p.salu and ("s", "m0") in p.w and c.vmem and c.ldsdma: n = max(n, 1)
    if p.vmem and p.wide_store and p.sdata & c.w: n = max(n, 2)
    return n

def fix_hazards(lines, report=False):
    out = []; hist = []; added = 0
    for ln in lines:
        c = Ins(ln)
        if not c.real:
            out.append(ln); continue
        dist = 0; pad = 0
        for p in reversed(hist):
            pad = max(pad, need(p, c) - dist)
            dist += p.states
            if dist >= 12: break
        if pad > 0:
            nop = Ins(f"s_nop {pad-1}"); out.append(nop.line); hist.append(nop); added += pad
        out.append(ln); hist.append(c)
        if c.op in ("s_endpgm", "s_branch"): hist = []
        hist = hist[-16:]
    if report: print("hazard pad states added:", added)
    return out

def kd(name, vgpr, sgpr=102, accum=None):
    if accum is None: accum = min(256, (vgpr + 3) // 4 * 4)
    return f""".p2align 6
.amdhsa_kernel {name}
  .amdhsa_next_free_vgpr {vgpr}
  .amdhsa_next_free_sgpr {sgpr}
  .amdhsa_accum_offset {accum}
  .amdhsa_group_segment_fixed_size 0
  .amdhsa_kernarg_size 96
  .amdhsa_user_sgpr_count 2
  .amdhsa_user_sgpr_kernarg_segment_ptr 1
  .amdhsa_system_sgpr_workgroup_id_x 1
.end_amdhsa_kernel"""
def khead(name):
    return f""".globl {name}
.p2align 8
.type {name},@function
{name}:"""
def fbits(x):
    import struct
    return "0x%08x" % struct.unpack("<I", struct.pack("<f", x))[0]
```

```python
from gl import *
RT = 7; STEP = 16*RT - 7
XB, XS, NX = 0, 14336, 4
WB, WS_, NW = 57344, 15360, 6
MS = 149504
OS, OP = WB + 2*WS_, 176
O_OFF, V_OFF, G_OFF, ST_OFF = 0, 0x300000, 0x500000, 0x600000
WSREC = 0x800000
BIG = 0x40000000
SX, SW, SWS, SAUX = 4, 8, 12, 16
sWAVE, sXCD, sN = 20, 21, 22
sB, sPAR, sGAM, sP0 = 23, 24, 25, 26

def stamp(a, cfg, k):
    if cfg.get("stamps"): a(f"s_memrealtime s[{60+2*k}:{61+2*k}]")
def stamp_out(a, cfg, n, slot0=0, nslots=8):
    if not cfg.get("stamps"): return
    a(f"s_waitcnt lgkmcnt(0)\ns_mul_i32 s58, s2, {8*nslots}\ns_add_u32 s58, s58, {ST_OFF + cfg.get('st_base', 0) + 8*slot0}\nv_mov_b32 v1, 0")
    for k in range(n):
        a(f"v_mov_b32 v2, s{60+2*k}\nv_mov_b32 v3, s{61+2*k}\nbuffer_store_dwordx2 v[2:3], v1, s[{SWS}:{SWS+3}], s58 offen offset:{8*k}\ns_nop 1")

def decode(a):
    a(f"""s_sub_u32 s27, s{sN}, 12
    s_lshr_b32 s28, s27, 2
    s_and_b32 s{sPAR}, s{sXCD}, 1
    s_bfe_u32 s29, s{sXCD}, 0x10001
    s_mul_i32 s29, s29, 5
    s_add_u32 s{sB}, s29, s28
    s_mul_i32 s{sP0}, s{sB}, {STEP}
    s_and_b32 s27, s27, 3
    s_and_b32 s29, s{sXCD}, 4
    s_add_u32 s{sGAM}, s29, s27""")

def store_addr(a, vr, vg, t):
    a(f"""v_and_b32 v{t}, 7, v0
    v_lshrrev_b32 v{t+1}, 5, v0
    s_lshl_b32 s27, s{sWAVE}, 1
    v_lshl_add_u32 v{t+1}, v{t}, 4, v{t+1}
    v_add_u32 v{t+1}, s27, v{t+1}              ; p
    v_bfe_u32 v{t+2}, v0, 3, 2                 ; c2
    v_mul_u32_u24 v{vr}, {OP}, v{t+1}
    v_lshl_add_u32 v{vr}, v{t+2}, 4, v{vr}
    v_add_u32 v{vr}, {OS}, v{vr}
    s_cmp_eq_u32 s{sB}, 0
    s_cselect_b32 s28, 0, 7
    v_cmp_le_u32 vcc, s28, v{t+1}
    v_cmp_gt_u32 s[30:31], 7, v{t}
    v_add_u32 v{t+1}, s{sP0}, v{t+1}           ; P
    s_and_b64 vcc, vcc, s[30:31]
    s_movk_i32 s28, 1024
    v_cmp_gt_u32 s[30:31], s28, v{t+1}
    v_lshl_add_u32 v{t+1}, v{t+1}, 1, s{sPAR}  ; t
    s_and_b64 vcc, vcc, s[30:31]
    v_and_b32 v{t}, 31, v{t+1}
    v_mul_u32_u24 v{vg}, 81920, v{t}
    v_lshrrev_b32 v{t}, 9, v{t+1}
    v_mul_u32_u24 v{t}, 20480, v{t}
    v_bfe_u32 v{t+1}, v{t+1}, 5, 4
    v_lshl_add_u32 v{t}, v{t+1}, 4, v{t}
    v_lshl_add_u32 v{t}, v{t+2}, 8, v{t}
    v_add_u32 v{vg}, v{vg}, v{t}
    v_mov_b32 v{t}, {BIG}
    v_cndmask_b32 v{vg}, v{t}, v{vg}, vcc""")

def final_store(a, cfg, vr, vg):
    aux = cfg.get("oaux", "")
    a(f"""s_mul_i32 s27, s{sGAM}, 2560
    s_add_u32 s27, s27, {O_OFF}
    ds_read_b128 v[40:43], v{vr}
    ds_read_b128 v[44:47], v{vr} offset:64
    ds_read_b128 v[48:51], v{vr} offset:128
    s_waitcnt lgkmcnt(2)
    buffer_store_dwordx4 v[40:43], v{vg}, s[{SWS}:{SWS+3}], s27 offen {aux}
    s_waitcnt lgkmcnt(1)
    buffer_store_dwordx4 v[44:47], v{vg}, s[{SWS}:{SWS+3}], s27 offen offset:1024 {aux}
    s_mov_b32 exec_lo, 0xffff
    s_mov_b32 exec_hi, 0xffff
    s_waitcnt lgkmcnt(0)
    buffer_store_dwordx4 v[48:51], v{vg}, s[{SWS}:{SWS+3}], s27 offen offset:2048 {aux}
    s_mov_b64 exec, -1""")

def init_touch(a, cfg):
    ns = cfg.get("init", 1)
    if not ns: return
    a(f"""s_sub_u32 s27, s{sN}, 12
    s_mul_i32 s28, s{sWAVE}, 20
    s_add_u32 s27, s27, s28
    s_cmp_ge_u32 s27, {24*ns}
    s_cbranch_scc1 L_a_noinit
    s_mov_b32 s29, 0""")
    if ns > 1:
        a(f"""s_mul_i32 s29, s27, 2731
        s_lshr_b32 s29, s29, 16
        s_mul_i32 s28, s29, 24
        s_sub_u32 s27, s27, s28""")
    a(f"""s_lshl_b32 s28, s27, 6
    v_add_u32 v3, s28, v0
    s_cmp_ge_u32 s27, 15
    s_cbranch_scc1 L_a_ix
    v_mul_u32_u24 v4, 13108, v3
    v_lshrrev_b32 v4, 16, v4
    v_mul_u32_u24 v4, 640, v4
    v_lshl_add_u32 v2, v3, 7, v4
    s_lshr_b32 s28, s{sXCD}, 2
    s_mul_i32 s28, s28, 640
    s_mul_i32 s29, s29, {64*3840}
    s_add_u32 s28, s28, s29
    s_waitcnt lgkmcnt(0)
    buffer_load_dword v39, v2, s[{SW}:{SW+3}], s28 offen
    s_branch L_a_noinit
L_a_ix:
    v_subrev_u32 v3, 960, v3
    v_mul_u32_u24 v2, 2560, v3
    s_bfe_u32 s28, s{sXCD}, 0x10001
    s_mul_i32 s28, s28, {5*STEP*2}
    s_add_u32 s28, s28, s{sPAR}
    s_mul_i32 s28, s28, 1280
    s_lshl_b32 s29, s29, 7
    s_add_u32 s28, s28, s29
    s_waitcnt lgkmcnt(0)
    buffer_load_dword v39, v2, s[{SX}:{SX+3}], s28 offen
L_a_noinit:""")

def compute(a, cfg):
    bars = cfg["bars"]
    XA0, XA1, WM, WX, MSW, MSR, OSW, OSR, GO = 2, 3, 4, 6, 8, 9, 10, 11, 12
    CC, CP, MP, MC, MG0, ONES = 16, 20, 24, 26, 28, 32
    FR = (40, 84); ACC = 128; T = 240
    a("L_a_comp:")
    init_touch(a, cfg)
    q, g, t0, t1 = 13, 14, 15, 29
    a(f"""v_and_b32 v{q}, 15, v0
    v_lshrrev_b32 v{g}, 4, v0
    v_lshrrev_b32 v{t0}, 1, v{q}
    v_xor_b32 v{t0}, v{t0}, v{g}
    v_lshlrev_b32 v{t0}, 4, v{t0}
    v_lshl_add_u32 v{XA0}, v{q}, 7, v{t0}
    v_xor_b32 v{XA1}, 64, v{XA0}
    v_lshrrev_b32 v{t0}, 5, v0
    v_bfe_u32 v{t1}, v0, 2, 3
    v_lshl_add_u32 v{t0}, v{t0}, 4, v{t1}      ; sigma0
    v_mul_u32_u24 v{t0}, 480, v{t0}
    s_mul_i32 s27, s{sWAVE}, 40
    s_add_u32 s28, s27, {WB}
    v_add_u32 v{t0}, s28, v{t0}
    v_and_b32 v{t1}, 3, v0
    v_lshl_add_u32 v{WM}, v{t1}, 3, v{t0}
    v_min_u32 v{t1}, 2, v{t1}
    v_mul_u32_u24 v{t1}, 160, v{t1}
    v_add3_u32 v{WX}, v{t0}, v{t1}, 32
    v_add_u32 v{WM+1}, {3*WS_}, v{WM}
    v_add_u32 v{WX+1}, {3*WS_}, v{WX}
    s_mul_i32 s28, s{sWAVE}, {RT*512}
    s_add_u32 s28, s28, {MS}
    v_lshlrev_b32 v{t0}, 5, v{q}
    v_lshl_add_u32 v{t0}, v{g}, 3, v{t0}
    v_add_u32 v{MSW}, s28, v{t0}
    v_lshl_add_u32 v{MSR}, v0, 3, s28
    v_mul_u32_u24 v{t0}, {OP}, v{q}
    v_lshl_add_u32 v{t0}, v{g}, 3, v{t0}
    s_add_u32 s28, s27, {OS}
    v_add_u32 v{OSW}, s28, v{t0}""")
    a(f"v_lshlrev_b32 v{t0}, 2, v{g}\nv_sub_u32 v{t0}, v{t0}, v{q}\nv_mov_b32 v30, {fbits(-1e30)}\nv_mov_b32 v31, 0")
    for r in range(4):
        a(f"""v_add_u32 v{t1}, {r+7}, v{t0}
        v_cmp_gt_u32 vcc, 8, v{t1}
        v_cndmask_b32 v{CC+r}, v30, v31, vcc
        v_cmp_le_i32 vcc, 16, v{t1}
        v_cndmask_b32 v{CP+r}, v30, v31, vcc""")
    for u in range(2):
        a(f"""v_cmp_eq_u32 vcc, 0, v{CP+2*u}
        v_mov_b32 v{t1}, 0xffff
        v_cndmask_b32 v{MP+u}, v31, v{t1}, vcc
        v_cmp_eq_u32 vcc, 0, v{CP+2*u+1}
        v_mov_b32 v{t1}, 0xffff0000
        v_cndmask_b32 v{t1}, v31, v{t1}, vcc
        v_or_b32 v{MP+u}, v{MP+u}, v{t1}
        v_not_b32 v{MC+u}, v{MP+u}""")
    a(f"v_cmp_gt_u32 vcc, 16, v0\nv_mov_b32 v{t1}, -1\nv_cndmask_b32 v{MG0}, v31, v{t1}, vcc")
    for i in range(4): a(f"v_mov_b32 v{ONES+i}, 0x3f803f80")
    store_addr(a, OSR, GO, 36)
    c = 20**-0.5 * 1.4426950408889634
    a(f"s_mov_b32 s32, {fbits(c)}\ns_mov_b32 s33, {fbits(c)}\ns_mov_b32 s34, {fbits(-c)}")
    if cfg.get("prio"): a(f"s_setprio {cfg['prio']}")

    def reads(st):
        f = FR[st & 1]; out = []
        sl = st % NW; hi = sl // 3; off = (sl % 3) * WS_
        for j, (base, so) in enumerate(((WM, 0), (WM, 160), (WX, 0), (WM, 320))):
            for h in range(2):
                out.append(f"ds_read_b64_tr_b16 {v(f+28+4*j+2*h, 2)}, v{base+hi} offset:{off + h*3840 + so}")
        xs = ((st >> 1) % NX) * XS
        xr = [f"ds_read_b128 {v(f+4*i, 4)}, v{XA0 + (st & 1)} offset:{XB + xs + i*2048}" for i in range(RT)]
        return xr[:1] + out + xr[1:]
    def mfmas(st):
        f = FR[st & 1]; out = []
        for i in range(RT):
            for j in range(4):
                d = v(ACC + 16*i + 4*j, 4); cc = d if st else "0"
                x, w = v(f+4*i, 4), v(f+28+4*j, 4)
                out.append(f"v_mfma_f32_16x16x32_bf16 {d}, {x}, {w}, {cc}" if j == 3 else f"v_mfma_f32_16x16x32_bf16 {d}, {w}, {x}, {cc}")
        return out
    a("s_barrier"); stamp(a, cfg, 1)
    a.ext(reads(0))
    a(".p2align 3")
    for st in range(20):
        a("s_waitcnt lgkmcnt(0)")
        a("s_barrier" if st + 1 in bars else "s_nop 0")
        if st == 9 and cfg.get("stamps"): stamp(a, cfg, 2)
        a.ext(interleave(mfmas(st), reads(st+1) if st < 19 else []))
    stamp(a, cfg, 3)
    QF, KF, VP, VT = 40, 68, 96, 112
    A = lambda i, j, r=0: ACC + 16*i + 4*j + r
    a(f"v_mov_b32 v{VP}, 0\nv_mov_b32 v{VP+1}, 0\nv_mov_b32 v{VT}, 0\nv_mov_b32 v{VT+1}, 0")
    cv = lambda d, s0: f"v_cvt_pk_bf16_f32 v{d}, v{s0}, v{s0+1}"
    for i in range(RT):
        a(cv(QF+4*i+2, A(i,2))); a(cv(QF+4*i+3, A(i,2,2)))
        a(cv(KF+4*i+2, A(i,2))); a(cv(KF+4*i+3, A(i,2,2)))
        a(f"ds_write_b64 v{MSW}, {v(QF+4*i+2, 2)} offset:{512*i}")
        a(cv(QF+4*i, A(i,0))); a(cv(QF+4*i+1, A(i,0,2)))
        a(f"ds_read_b64_tr_b16 {v(VT+2+2*i, 2)}, v{MSR} offset:{512*i}")
        a(f"v_permlane16_swap_b32 v{QF+4*i+2}, v{KF+4*i+2}\nv_permlane16_swap_b32 v{QF+4*i+3}, v{KF+4*i+3}")
        a(cv(KF+4*i, A(i,1))); a(cv(KF+4*i+1, A(i,1,2)))
        a(f"v_and_b32 v{QF+4*i+2}, v{MG0}, v{QF+4*i+2}\nv_and_b32 v{QF+4*i+3}, v{MG0}, v{QF+4*i+3}")
        a(cv(VP+2+2*i, A(i,3))); a(cv(VP+3+2*i, A(i,3,2)))
        a(f"v_mfma_f32_16x16x32_bf16 {v(A(i,0),4)}, {v(KF+4*i,4)}, {v(QF+4*i,4)}, {v(CC,4)}")
        if i: a(f"v_mfma_f32_16x16x32_bf16 {v(A(i,1),4)}, {v(KF+4*i-4,4)}, {v(QF+4*i,4)}, {v(CP,4)}")
    for i in range(RT):
        if i:
            for r in range(4): a(f"v_max_f32 v{A(i,0,r)}, v{A(i,0,r)}, v{A(i,1,r)}")
        a(f"v_max3_f32 v{T+2*i}, v{A(i,0,0)}, v{A(i,0,1)}, v{A(i,0,2)}\nv_max_f32 v{T+2*i}, v{T+2*i}, v{A(i,0,3)}\nv_mov_b32 v{T+2*i+1}, v{T+2*i}")
    for i in range(RT): a(f"v_permlane16_swap_b32 v{T+2*i}, v{T+2*i+1}")
    for i in range(RT): a(f"v_max_f32 v{T+2*i}, v{T+2*i}, v{T+2*i+1}\nv_mov_b32 v{T+2*i+1}, v{T+2*i}")
    for i in range(RT): a(f"v_permlane32_swap_b32 v{T+2*i}, v{T+2*i+1}")
    a("s_waitcnt lgkmcnt(0)")
    for i in range(RT):
        a(f"v_max_f32 v{T+2*i}, v{T+2*i}, v{T+2*i+1}\nv_mul_f32 v{T+2*i}, s34, v{T+2*i}")
        for u in range(2):
            a(f"v_pk_fma_f32 {v(A(i,0,2*u),2)}, {v(A(i,0,2*u),2)}, s[32:33], {v(T+2*i,2)} op_sel_hi:[1,1,0]")
        for r in range(4): a(f"v_exp_f32 v{A(i,0,r)}, v{A(i,0,r)}")
        a(cv(T+2*i, A(i,0))); a(cv(T+2*i+1, A(i,0,2)))
        for u in range(2):
            a(f"v_and_b32 v{A(i,2,u)}, v{MP+u}, v{T+2*i+u}\nv_and_b32 v{A(i,2,2+u)}, v{MC+u}, v{T+2*i+u}")
        if i:
            k = i - 1
            a(f"v_rcp_f32 v{T+2*k}, v{A(k,3)}")
        a(f"v_mfma_f32_16x16x32_bf16 {v(A(i,3),4)}, {v(ONES,4)}, {v(A(i,2),4)}, 0")
        a(f"v_mfma_f32_16x16x32_bf16 {v(A(i,0),4)}, {v(VP+2*i,4)}, {v(A(i,2),4)}, 0")
        a(f"v_mfma_f32_16x16x32_bf16 {v(A(i,1),4)}, {v(VT+2*i,4)}, {v(A(i,2),4)}, 0")
    def fin(k):
        for u in range(4):
            a(f"v_pk_mul_f32 {v(A(k,0,2*u),2)}, {v(A(k,0,2*u),2)}, {v(T+2*k,2)} op_sel_hi:[1,0]")
        a(cv(A(k,2,0), A(k,0))); a(cv(A(k,2,1), A(k,0,2)))
        a(f"ds_write_b64 v{OSW}, {v(A(k,2),2)} offset:{16*OP*k}")
        a(cv(A(k,2,2), A(k,1))); a(cv(A(k,2,3), A(k,1,2)))
    for k in range(RT-1): fin(k)
    a(f"v_rcp_f32 v{T+2*(RT-1)}, v{A(RT-1,3)}")
    fin(RT-1)
    a("s_mov_b32 exec_lo, 0\ns_mov_b32 exec_hi, 0xffff")
    for k in range(RT): a(f"ds_write_b64 v{OSW}, {v(A(k,2,2),2)} offset:{16*OP*k + 16}")
    a("s_mov_b64 exec, -1")
    stamp(a, cfg, 4)
    a("s_waitcnt lgkmcnt(0)")
    a("L_a_fin:\ns_barrier")
    final_store(a, cfg, OSR, GO)
    if cfg.get("stamps"):
        a("s_waitcnt vmcnt(0)"); stamp(a, cfg, 5)
        a(f"s_cmp_lg_u32 s{sWAVE}, 0\ns_cbranch_scc1 L_a_e"); stamp_out(a, cfg, 6); a("L_a_e:")
    a("s_endpgm")

def loaders(a, cfg):
    bars = cfg["bars"]; D = cfg["D"]
    nb = lambda st: min([b for b in bars if b > st] + [20])
    a(f"""L_a_load:
    s_cmp_eq_u32 s{sWAVE}, 7
    s_cbranch_scc1 L_a_xl
    s_sub_u32 s27, s{sWAVE}, 4
    s_mul_i32 s28, s27, 320
    v_add_u32 v2, s28, v0
    s_mul_i32 s36, s{sGAM}, 160
    s_mul_i32 s37, s27, 5120
    s_add_u32 s37, s37, {WB}""")
    for i in range(5):
        a(f"""v_add_u32 v3, {64*i}, v2
        v_mul_u32_u24 v4, 2185, v3
        v_lshrrev_b32 v4, 16, v4            ; sigma
        v_mul_u32_u24 v5, 6554, v3
        v_lshrrev_b32 v5, 16, v5            ; c/10
        v_mul_u32_u24 v5, 1120, v5
        v_lshl_add_u32 v5, v3, 4, v5
        v_bfe_u32 v6, v4, 2, 1
        v_bfe_u32 v4, v4, 3, 1
        v_sub_u32 v4, v6, v4                ; +1 / -1 / 0
        v_mul_i32_i24 v4, {4*3840}, v4
        v_add_u32 v{20+i}, v5, v4""")
    a("s_waitcnt lgkmcnt(0)")
    def wissue(st):
        a(f"s_add_u32 m0, s37, {(st % NW) * WS_}")
        for i in range(5):
            a(f"buffer_load_dwordx4 v{20+i}, s[{SW}:{SW+3}], s36 offen lds")
            a("s_add_u32 m0, m0, 1024" if i < 4 else f"s_add_u32 s36, s36, {32*3840}")
    issued = 0
    while issued < cfg["pro"]: wissue(issued); issued += 1
    store_addr(a, 11, 12, 36)
    for b in bars:
        last = nb(b) - 1
        assert issued > last
        a(f"s_waitcnt vmcnt({5*(issued - 1 - last)})\ns_barrier")
        while issued < min(20, last + 1 + D, b + NW): wissue(issued); issued += 1
    a("s_branch L_a_fin")
    a(f"""L_a_xl:
    v_lshrrev_b32 v2, 3, v0
    v_and_b32 v3, 7, v0
    v_lshrrev_b32 v4, 4, v0
    v_xor_b32 v3, v3, v4
    v_mul_u32_u24 v2, 2560, v2
    v_lshl_add_u32 v20, v3, 4, v2
    v_xor_b32 v21, 64, v20
    s_lshl_b32 s36, s{sP0}, 1
    s_add_u32 s36, s36, s{sPAR}
    s_mul_i32 s36, s36, 1280
    s_waitcnt lgkmcnt(0)""")
    def xissue(c):
        a(f"s_mov_b32 m0, {XB + (c % NX)*XS}\ns_add_u32 s37, s36, {128*c}")
        for i in range(2*RT):
            a(f"buffer_load_dwordx4 v{20 + (i & 1)}, s[{SX}:{SX+3}], s37 offen lds")
            if i < 2*RT-1: a("s_add_u32 m0, m0, 1024\ns_add_u32 s37, s37, 20480")
    issued = 0
    while 2*issued < cfg["pro"]: xissue(issued); issued += 1
    store_addr(a, 11, 12, 36)
    for b in bars:
        last = (nb(b) - 1) // 2
        assert issued > last
        a(f"s_waitcnt vmcnt({2*RT*(issued - 1 - last)})\ns_barrier")
        while issued < 10 and 2*issued < nb(b) + D and issued < b//2 + NX: xissue(issued); issued += 1
    a("s_branch L_a_fin")

def helper(a, cfg):
    h0 = cfg.get("hstart", 1)
    a(f"""L_help:
    s_cmp_ge_u32 s{sWAVE}, 3
    s_cbranch_scc1 L_h_end
    s_lshl_b32 s27, s{sWAVE}, 3
    s_add_u32 s27, s27, s{sN}
    s_lshl_b32 s28, s27, 6
    v_add_u32 v3, s28, v0
    s_cmp_ge_u32 s27, 15
    s_cbranch_scc1 L_h_x
    v_mul_u32_u24 v4, 13108, v3
    v_lshrrev_b32 v4, 16, v4
    v_mul_u32_u24 v4, 640, v4
    v_lshl_add_u32 v2, v3, 7, v4
    s_lshr_b32 s28, s{sXCD}, 2
    s_mul_i32 s28, s28, 640
    s_add_u32 s28, s28, {h0*64*3840}
    s_waitcnt lgkmcnt(0)""")
    for c in range(h0, 10):
        a(f"buffer_load_dword v39, v2, s[{SW}:{SW+3}], s28 offen\ns_add_u32 s28, s28, {64*3840}")
    a(f"""s_branch L_h_wo
L_h_x:
    v_subrev_u32 v3, 960, v3
    v_mul_u32_u24 v2, 2560, v3
    s_bfe_u32 s28, s{sXCD}, 0x10001
    s_mul_i32 s28, s28, {5*STEP*2}
    s_and_b32 s29, s{sXCD}, 1
    s_add_u32 s28, s28, s29
    s_mul_i32 s28, s28, 1280
    s_waitcnt lgkmcnt(0)""")
    for c in range(h0, 10):
        a(f"buffer_load_dword v39, v2, s[{SX}:{SX+3}], s28 offen offset:{128*c}")
    a("L_h_wo:")
    if cfg.get("wopf", True):
        a(f"""s_load_dwordx2 s[{SAUX}:{SAUX+1}], s[0:1], 16
        s_mov_b32 s{SAUX+2}, 819200
        v_lshlrev_b32 v2, 7, v0
        s_lshl_b32 s28, s27, 13
        s_waitcnt lgkmcnt(0)""")
        for c in range(5):
            a(f"buffer_load_dword v39, v2, s[{SAUX}:{SAUX+3}], s28 offen\ns_add_u32 s28, s28, {24*8192}")
    if cfg.get("stamps"):
        a("s_waitcnt vmcnt(0)"); stamp(a, cfg, 1)
        a(f"s_cmp_lg_u32 s{sWAVE}, 0\ns_cbranch_scc1 L_h_end"); stamp_out(a, cfg, 2)
    a("s_waitcnt vmcnt(0)\nL_h_end:\ns_endpgm")
```

```python
from gl import *
from k1a import SX, SW, SWS, SAUX, sWAVE, sXCD, sN, V_OFF, G_OFF, BIG, stamp, stamp_out
UB = 81920
sJ, sT, sH = 23, 24, 25
VT1 = 51200

def gen_tile(a, dst, vE, vD, tmp):
    A, B, K, th = tmp, tmp + 8, tmp + 16, tmp + 18
    for m, S in ((0, A), (1, B)):
        for j in range(4):
            if m == 0: a(f"v_mul_f32 v{th+j}, v{vE}, v{vD+j}")
            else: a(f"v_add_f32 v{th+j}, v{K+1}, v{th+j}")
        if m == 0: a(f"v_mul_f32 v{K+1}, 0x41800000, v{vE}")
        for j in range(4): a(f"v_cos_f32 v{S+j}, v{th+j}\nv_sin_f32 v{S+4+j}, v{th+j}")
    a(f"v_cos_f32 v{K}, v{K+1}")
    def pack(m, S):
        d = dst + 4*(m >> 1) + 2*(m & 1)
        a(f"v_cvt_pk_bf16_f32 v{d}, v{S}, v{S+1}\nv_cvt_pk_bf16_f32 v{d+1}, v{S+2}, v{S+3}")
        a(f"v_cvt_pk_bf16_f32 v{d+20}, v{S+4}, v{S+5}\nv_cvt_pk_bf16_f32 v{d+21}, v{S+6}, v{S+7}")
    pack(0, A)
    a(f"v_add_f32 v{K}, v{K}, v{K}")
    pack(1, B)
    for m in range(2, 10):
        P, C = (A, B) if m % 2 == 0 else (B, A)
        for u in range(4):
            a(f"v_pk_fma_f32 {v(P+2*u,2)}, {v(C+2*u,2)}, {v(K,2)}, {v(P+2*u,2)} op_sel_hi:[1,0,1] neg_lo:[0,0,1] neg_hi:[0,0,1]")
        pack(m, P)

def b1(a, cfg):
    MAT = 16
    GF = 136
    GW = 144
    TMP = 216
    a(f"""L_b1:
    s_load_dwordx2 s[{SAUX}:{SAUX+1}], s[0:1], 64
    s_sub_u32 s{sJ}, s{sN}, 8
    s_lshl_b32 s{sJ}, s{sJ}, 3
    s_add_u32 s{sJ}, s{sJ}, s{sXCD}
    s_and_b32 s{sT}, s{sWAVE}, 3
    s_lshr_b32 s{sH}, s{sWAVE}, 2
    s_mov_b32 s{SAUX+2}, 1280
    s_sub_u32 s27, 2048, s{sJ}
    s_cmp_eq_u32 s{sJ}, 0
    s_cselect_b32 s27, 32, s27
    s_cselect_b32 s28, 64, -64
    s_cmp_eq_u32 s{sH}, 0
    s_cselect_b32 s27, s{sJ}, s27
    s_cselect_b32 s28, 64, s28
    s_lshl_b32 s29, s{sT}, 3
    v_lshrrev_b32 v2, 3, v0
    v_add_u32 v2, s29, v2
    v_mul_i32_i24 v2, s28, v2
    v_add_u32 v15, s27, v2
    v_lshrrev_b32 v3, 4, v0
    v_lshlrev_b32 v3, 1, v3
    v_and_b32 v4, 7, v0
    v_xor_b32 v3, v3, v4
    v_lshlrev_b32 v3, 4, v3
    v_mul_u32_u24 v2, 1280, v15
    v_add_u32 v2, v2, v3
    s_lshl_b32 s29, s{sWAVE}, 10
    s_mov_b32 m0, s29
    s_mov_b32 s30, 0
    s_waitcnt lgkmcnt(0)""")
    for cb in range(10):
        a(f"buffer_load_dwordx4 v2, s[{SX}:{SX+3}], s30 offen lds")
        if cb < 9: a("s_add_u32 m0, m0, 8192\ns_add_u32 s30, s30, 128")
    for cb in range(10):
        a(f"buffer_load_dwordx4 {v(GW+4*cb,4)}, v3, s[{SAUX}:{SAUX+3}], 0 offen offset:{128*cb}")
    p, g = 13, 14
    ONE, MONE = fbits(1.0), fbits(-1.0)
    a(f"""v_and_b32 v{p}, 15, v0
    v_lshrrev_b32 v{g}, 4, v0
    s_add_u32 s27, s{sT}, 1
    s_and_b32 s27, s27, 2                  ; T in (1,2)
    s_cselect_b32 s40, 0x41800000, 0
    s_cselect_b32 s41, {fbits(-0.25)}, 0
    s_mov_b32 s42, 0
    s_mov_b32 s43, 1.0
    s_mov_b32 s45, 1.0
    s_and_b32 s27, s{sT}, 1
    s_cselect_b32 s44, -1.0, 1.0
    s_mov_b32 s46, s44
    s_cmp_lg_u32 s{sJ}, 0
    s_cbranch_scc1 L_b_g
    s_and_b32 s27, s{sT}, 1
    s_cselect_b32 s41, {fbits(-0.25)}, 0
    s_cselect_b32 s45, 0, 1.0
    s_cmp_ge_u32 s{sT}, 2
    s_cselect_b32 s42, {fbits(1/64)}, 0
    s_cselect_b32 s43, 0, 1.0
    s_cselect_b32 s44, s44, 0
    s_cselect_b32 s46, 1.0, -1.0
    s_and_b32 s27, s{sT}, 1
    s_cselect_b32 s46, s46, 0
L_b_g:
    v_cvt_f32_u32 v4, v{p}
    v_cmp_eq_u32 vcc, 0, v{p}
    v_mov_b32 v5, s41
    v_fmac_f32 v5, s42, v4                 ; phi (p != 0)
    v_mov_b32 v6, s40
    v_cndmask_b32 v4, v4, v6, vcc          ; P
    v_mul_f32 v4, {fbits(1/32)}, v4
    v_cndmask_b32 v5, v5, 0, vcc
    v_mov_b32 v6, s43
    v_mov_b32 v7, s45
    v_cndmask_b32 v6, v6, v7, vcc          ; A0
    v_mov_b32 v7, s44
    v_mov_b32 v8, s46
    v_cndmask_b32 v7, v7, v8, vcc          ; A1
    v_lshrrev_b32 v8, 1, v{g}
    v_and_b32 v9, 1, v{g}
    v_lshlrev_b32 v9, 2, v9
    v_lshl_add_u32 v8, v8, 4, v9
    v_cvt_f32_u32 v8, v8
    v_fmac_f32 v5, v4, v8""")
    for sl in range(8):
        k = 8*(sl >> 2) + (sl & 3)
        a(f"v_mov_b32 v9, {fbits(float(k))}\nv_fma_f32 v{TMP+sl}, v4, v9, v5\nv_cos_f32 v{TMP+sl}, v{TMP+sl}")
    for ks in range(2):
        for sl in range(8): a(f"v_mul_f32 v{TMP+8+sl}, v{6+ks}, v{TMP+sl}")
        for u in range(4): a(f"v_cvt_pk_bf16_f32 v{GF+4*ks+u}, v{TMP+8+2*u}, v{TMP+9+2*u}")
    a(f"""s_cmp_lt_u32 s{sWAVE}, 2
    s_cbranch_scc1 L_b_ta
    s_add_u32 s48, s{sWAVE}, 2
    s_cmp_ge_u32 s{sWAVE}, 5
    s_cselect_b32 s27, 5, 2
    s_cselect_b32 s52, 2, 0
    s_sub_u32 s49, s{sWAVE}, s27
    s_lshl_b32 s49, s49, 1
    s_branch L_b_tb
L_b_ta:
    s_lshl_b32 s48, s{sWAVE}, 1
    s_add_u32 s49, s48, 1
    s_mov_b32 s52, 1
L_b_tb:
    s_add_u32 s50, s49, 1
    s_mov_b32 s51, 1
    s_mov_b32 s53, s52
    v_lshlrev_b32 v4, 2, v{g}
    v_cvt_f32_u32 v8, v4
    v_add_f32 v9, 1.0, v8
    v_add_f32 v10, 2.0, v8
    v_add_f32 v11, 2.0, v9""")
    for k in range(3):
        if k == 2: a(f"s_cmp_lt_u32 s{sWAVE}, 2\ns_cbranch_scc1 L_b_gd")
        a(f"""s_lshl_b32 s27, s{48+k}, 6
        s_add_u32 s27, s27, s{51+k}
        v_lshl_add_u32 v4, v{p}, 2, s27
        v_cvt_f32_u32 v4, v4
        v_mul_f32 v4, {fbits(1/640)}, v4""")
        gen_tile(a, MAT + 40*k, 4, 8, TMP)
    a("L_b_gd:")
    XA, UW, AR, AI, SG = 2, 6, 7, 8, 9
    a(f"""v_bfe_u32 v10, v0, 2, 3
    v_lshrrev_b32 v11, 5, v0
    v_lshl_add_u32 v11, v11, 4, v10
    v_lshlrev_b32 v11, 7, v11
    v_and_b32 v10, 6, v10                  ; swizzle
    v_bfe_u32 v12, v0, 1, 1
    s_lshl_b32 s27, s{sH}, 1
    v_or_b32 v12, s27, v12
    v_xor_b32 v10, v10, v12
    v_lshl_add_u32 v11, v10, 4, v11
    v_and_b32 v10, 1, v0
    v_lshl_add_u32 v{XA}, v10, 3, v11
    v_xor_b32 v{XA+1}, 64, v{XA}
    v_add_u32 v{XA+2}, 40960, v{XA}
    v_add_u32 v{XA+3}, 40960, v{XA+1}
    s_mul_i32 s27, s{sT}, 5120
    s_lshl_b32 s28, s{sH}, 3
    s_add_u32 s27, s27, s28
    s_add_u32 s27, s27, {UB}
    v_lshl_add_u32 v{UW}, v0, 4, s27
    s_and_b32 s27, s{sT}, 1
    s_cselect_b64 vcc, 0, -1
    s_xor_b32 s27, s{sT}, 3
    s_or_b32 s27, s27, s{sJ}
    s_cselect_b32 s28, 0, 0x00010001
    s_or_b32 vcc_lo, vcc_lo, s28
    s_or_b32 vcc_hi, vcc_hi, s28
    v_add_u32 v10, 40960, v{UW}
    v_add_u32 v11, 61440, v{UW}
    v_cndmask_b32 v{AR}, v11, v10, vcc
    v_cndmask_b32 v{AI}, v10, v11, vcc
    v_mov_b32 v10, 0x80008000
    v_cndmask_b32 v{SG}, 0, v10, vcc
    s_lshl_b32 s27, s{sWAVE}, 10
    v_lshl_add_u32 v10, v0, 4, s27
    v_add_u32 v11, 40960, v10""")
    stamp(a, cfg, 1)
    a("s_waitcnt vmcnt(0)\ns_barrier")
    stamp(a, cfg, 2)
    XG = 184
    for cb in range(10):
        a(f"ds_read_b128 {v(XG+4*cb,4)}, v{10 + cb//5} offset:{(cb % 5)*8192}")
    a("v_mov_b32 v12, 0\nv_mov_b32 v1, 0")
    for cb in range(10):
        a(f"s_waitcnt lgkmcnt({9-cb})" if not cfg.get("stamps") else "s_waitcnt lgkmcnt(0)")
        for u in range(4):
            d = 12 if u & 1 else 1
            a(f"v_dot2_f32_bf16 v{d}, v{XG+4*cb+u}, v{GW+4*cb+u}, v{d}")
    a(f"""v_add_f32 v12, v12, v1
    v_add_f32_dpp v12, v12, v12 quad_perm:[1,0,3,2] row_mask:0xf bank_mask:0xf
    v_add_f32_dpp v12, v12, v12 quad_perm:[2,3,0,1] row_mask:0xf bank_mask:0xf
    v_add_f32_dpp v12, v12, v12 row_half_mirror row_mask:0xf bank_mask:0xf
    v_mul_f32 v12, {fbits(-1.4426950408889634)}, v12
    v_exp_f32 v12, v12
    v_and_b32 v10, 31, v15
    v_add_f32 v12, 1.0, v12
    v_rcp_f32 v12, v12
    v_lshrrev_b32 v11, 5, v15
    v_lshl_add_u32 v10, v10, 6, v11
    v_lshlrev_b32 v10, 2, v10
    s_mov_b32 s27, {G_OFF}
    s_mov_b32 exec_lo, 0x01010101
    s_mov_b32 exec_hi, 0x01010101
    buffer_store_dword v12, v10, s[{SWS}:{SWS+3}], s27 offen {cfg.get('oaux','')}
    s_mov_b64 exec, -1""")
    XF = (144, 176); AC = (208, 224); T = 240
    def rd(tp):
        out = []
        for r in range(4):
            cb = (10*r + 2*tp) // 4; reg = XA + ((r + tp) & 1) + 2*(cb // 5)
            for ks in range(2):
                for h in range(2):
                    out.append(f"ds_read_b64_tr_b16 {v(XF[tp&1] + 8*r + 4*ks + 2*h, 2)}, v{reg} offset:{(cb % 5)*8192 + ks*4096 + h*1024}")
        return out
    def mf(tp):
        out = []
        for ks in range(2):
            for r in range(4):
                d = v(AC[tp&1] + 4*r, 4)
                out.append(f"v_mfma_f32_16x16x32_bf16 {d}, {v(XF[tp&1] + 8*r + 4*ks, 4)}, {v(GF+4*ks,4)}, {d if ks else 0}")
        return out
    NEG = "neg_lo:[0,1] neg_hi:[0,1]"
    def bfly(tp):
        c = AC[tp & 1]; out = []
        for u in (0, 2):
            out += [f"v_pk_add_f32 {v(T+u,2)}, {v(c+u,2)}, {v(c+8+u,2)}",
                    f"v_pk_add_f32 {v(c+u,2)}, {v(c+u,2)}, {v(c+8+u,2)} {NEG}",
                    f"v_pk_add_f32 {v(c+8+u,2)}, {v(c+4+u,2)}, {v(c+12+u,2)}",
                    f"v_pk_add_f32 {v(c+4+u,2)}, {v(c+4+u,2)}, {v(c+12+u,2)} {NEG}",
                    f"v_pk_add_f32 {v(c+12+u,2)}, {v(T+u,2)}, {v(c+8+u,2)}",
                    f"v_pk_add_f32 {v(T+u,2)}, {v(T+u,2)}, {v(c+8+u,2)} {NEG}"]
        for k, src in enumerate((c+12, T, c, c+4)):
            out += [f"v_cvt_pk_bf16_f32 v{T+4+2*k}, v{src}, v{src+1}", f"v_cvt_pk_bf16_f32 v{T+5+2*k}, v{src+2}, v{src+3}"]
        out += [f"v_xor_b32 v{T+10}, v{SG}, v{T+10}", f"v_xor_b32 v{T+11}, v{SG}, v{T+11}",
                f"ds_write_b64 v{UW}, {v(T+4,2)} offset:{1024*tp}", f"ds_write_b64 v{UW}, {v(T+6,2)} offset:{20480 + 1024*tp}",
                f"ds_write_b64 v{AR}, {v(T+8,2)} offset:{1024*tp}", f"ds_write_b64 v{AI}, {v(T+10,2)} offset:{1024*tp}"]
        return out
    a.ext(rd(0))
    for tp in range(5):
        a("s_waitcnt lgkmcnt(0)")
        a.ext(interleave(mf(tp), rd(tp+1) if tp < 4 else [], per=2))
        if tp: a.ext(bfly(tp-1))
    a.ext(bfly(4))
    UA, UE = 2, 3
    a(f"""v_lshlrev_b32 v{UE}, 4, v0
    v_add_u32 v{UA}, {UB + 40960}, v{UE}
    s_mul_i32 s27, s52, 10240
    s_add_u32 s27, s27, {UB}
    v_add_u32 v{UE}, s27, v{UE}
    s_waitcnt lgkmcnt(0)
    s_barrier""")
    stamp(a, cfg, 3)
    UF = (136, 168); HA = 200
    def rd1(kp, st):
        return [f"ds_read_b128 {v(UF[st] + 16*ab + 4*t, 4)}, v{UA} offset:{ab*20480 + (5*t + kp)*1024}" for ab in range(2) for t in range(4)]
    def rde(kp, st):
        return [f"ds_read_b128 {v(UF[st] + 4*t, 4)}, v{UE} offset:{(5*t + kp)*1024}" for t in range(4)]
    def mf1(kp, st, tiles):
        out = []
        for ab in range(2):
            for (m, acc) in tiles:
                for t in range(4):
                    d = v(acc + 4*t, 4)
                    out.append(f"v_mfma_f32_16x16x32_bf16 {d}, {v(UF[st] + 16*ab + 4*t, 4)}, {v(m + 20*ab + 4*kp, 4)}, {d if (kp or ab) else 0}")
        return out
    def mfe(kp, st, tiles):
        out = []
        for (m, acc) in tiles:
            for k, (t, sn) in enumerate(((0, 0), (1, 1), (2, 0), (3, 1), (3, 0))):
                d = v(acc + 4*k, 4)
                out.append(f"v_mfma_f32_16x16x32_bf16 {d}, {v(UF[st] + 4*t, 4)}, {v(m + 20*sn + 4*kp, 4)}, {d if kp else 0}")
        return out
    gP, gM, gM0 = 4, 5, 6
    def epi_setup():
        a(f"""v_mul_u32_u24 v{gP}, {4*VT1}, v{g}
        v_sub_u32 v{gM}, {29*VT1}, v{gP}
        v_cmp_eq_u32 s[54:55], 0, v{g}
        v_mov_b32 v7, {13*VT1}
        s_mul_i32 s27, s{sJ}, 80
        s_add_u32 s40, s27, {V_OFF}
        v_cndmask_b32 v{gM0}, v{gM}, v7, s[54:55]
        s_add_u32 s41, s40, {VT1}
        s_add_u32 s42, s41, {VT1}
        s_add_u32 s43, s42, {VT1}
        s_cmp_eq_u32 s{sJ}, 0
        s_cselect_b64 s[56:57], s[54:55], 0""")
    def addr(sreg_tile, shift, blk0, lim):
        a(f"""s_lshl_b32 s27, s{sreg_tile}, 4
        s_sub_u32 s27, s27, {shift}
        v_add_u32 v7, s27, v{p}
        v_mul_u32_u24 v8, 3277, v7
        v_lshrrev_b32 v8, 16, v8
        v_mul_u32_u24 v8, 2480, v8
        v_lshl_add_u32 v8, v7, 2, v8
        v_add_u32 v8, {blk0}, v8
        v_cmp_gt_u32 vcc, {lim}, v7
        v_mov_b32 v7, {BIG}
        v_cndmask_b32 v7, v7, v8, vcc
        v_add_u32 v8, v7, v{gP}
        v_add_u32 v9, v7, v{gM}
        v_add_u32 v10, v7, v{gM0}""")
    def stores(PK):
        aux = cfg.get("oaux", "")
        for rr in range(4):
            a(f"buffer_store_dword v{PK+rr}, v8, s[{SWS}:{SWS+3}], s{40+rr} offen {aux}")
            a(f"buffer_store_dword v{PK+4+rr}, v{9 if rr else 10}, s[{SWS}:{SWS+3}], s{43-rr} offen {aux}")
    def combine(acc, even, E, PK):
        if even: a(f"v_cndmask_b32 v{acc+12}, v{acc+12}, v{acc+16}, s[56:57]")
        for u in (0, 2):
            a(f"""v_pk_add_f32 {v(E+u,2)}, {v(acc+u,2)}, {v(acc+4+u,2)} {NEG}
            v_pk_add_f32 {v(E+4+u,2)}, {v(acc+12+u,2)}, {v(acc+8+u,2)}
            v_pk_add_f32 {v(E+8+u,2)}, {v(acc+u,2)}, {v(acc+4+u,2)}
            v_pk_add_f32 {v(E+12+u,2)}, {v(acc+12+u,2)}, {v(acc+8+u,2)} {NEG}""")
        for k, t in enumerate((0, 3, 2, 1)):
            a(f"v_cndmask_b32 v{E+4*k}, v{E+4*k}, v{acc+4*t}, s[54:55]")
        for rr in range(4):
            a(f"v_cvt_pk_bf16_f32 v{PK+rr}, v{E+rr}, v{E+4+rr}\nv_cvt_pk_bf16_f32 v{PK+4+rr}, v{E+8+rr}, v{E+12+rr}")
    a(f"s_cmp_ge_u32 s{sWAVE}, 2\ns_cbranch_scc1 L_b_hb")
    tl = ((MAT, HA), (MAT+40, HA+16))
    a.ext(rd1(0, 0))
    epi_setup()
    for kp in range(5):
        a("s_waitcnt lgkmcnt(0)")
        a.ext(interleave(mf1(kp, kp & 1, tl), rd1(kp+1, (kp+1) & 1) if kp < 4 else []))
    stamp(a, cfg, 4)
    for k in range(2):
        addr(48+k, 0, 0, 160); combine(HA+16*k, False, 136, 152+8*k); stores(152+8*k)
    a("s_branch L_b_end\nL_b_hb:")
    a.ext(rd1(0, 0))
    epi_setup()
    for kp in range(5):
        a("s_waitcnt lgkmcnt(0)")
        a.ext(interleave(mf1(kp, kp & 1, ((MAT, HA),)), rd1(kp+1, (kp+1) & 1) if kp < 4 else rde(0, 1)))
    tl = ((MAT+40, HA+16), (MAT+80, HA+36))
    for kp in range(5):
        a("s_waitcnt lgkmcnt(0)")
        a.ext(interleave(mfe(kp, (kp+1) & 1, tl), rde(kp+1, kp & 1) if kp < 4 else []))
    addr(48, 0, 0, 160); combine(HA, False, 136, 152); stores(152)
    a(f"""s_cmp_eq_u32 s52, 0
    s_cselect_b32 s44, 12, 8
    s_cselect_b32 s45, 80, 0
    s_mul_i32 s44, s44, 2560""")
    for k in range(2):
        addr(49+k, 0, "s44", 80); combine(HA+16+20*k, True, 136, 160+8*k); stores(160+8*k)
        addr(49+k, 1, 16*2560, "s45"); stores(160+8*k)
    a("L_b_end:")
    if cfg.get("stamps"):
        a("s_waitcnt vmcnt(0)\ns_barrier"); stamp(a, cfg, 5)
        a(f"s_cmp_lg_u32 s{sWAVE}, 0\ns_cbranch_scc1 L_b_e"); stamp_out(a, cfg, 6); a("L_b_e:")
    a("s_endpgm")
```

```python
from gl import *
from k1a import O_OFF, V_OFF, G_OFF, BIG, WSREC, SWS, stamp, stamp_out
SO, SWO = 4, 8
sWAVE, sCB, sT1 = 20, 21, 22
VB, VP = 102400, 2576
OB, OP = 112896, 176

def k2(a, cfg):
    a(khead("p2_kernel"))
    a(f"""s_load_dwordx2 s[{SWS}:{SWS+1}], s[0:1], 88
    s_load_dwordx2 s[{SWO}:{SWO+1}], s[0:1], 16
    s_load_dwordx2 s[{SO}:{SO+1}], s[0:1], 72""")
    stamp(a, cfg, 0)
    a(f"""s_cmp_ge_u32 s2, 256
    s_cbranch_scc1 L_2_end
    v_lshrrev_b32 v1, 6, v0
    v_and_b32 v0, 63, v0
    v_readfirstlane_b32 s{sWAVE}, v1
    s_bfe_u32 s{sCB}, s2, 0x30003
    s_and_b32 s23, s2, 7
    s_lshl_b32 s23, s23, 1
    s_lshr_b32 s24, s2, 7
    s_add_u32 s23, s23, s24
    s_sub_u32 s24, 32, s23
    s_cmp_eq_u32 s23, 0
    s_cselect_b32 s24, 16, s24
    s_bitcmp1_b32 s2, 6
    s_cselect_b32 s{sT1}, s24, s23
    s_mov_b32 s{SWS+2}, {WSREC}
    s_mov_b32 s{SWS+3}, 0x20000
    s_mov_b32 s{SWO+2}, 819200
    s_mov_b32 s{SWO+3}, 0x20000
    s_mov_b32 s{SO+2}, 2621440
    s_mov_b32 s{SO+3}, 0x20000
    v_lshlrev_b32 v2, 4, v0
    s_cmp_ge_u32 s{sWAVE}, 4
    s_cbranch_scc1 L_2_load""")
    OF, WF, VF, MF, AA, AB = 40, (120, 140), 160, 200, 208, 228
    q, g = 13, 14
    a(f"""s_mul_i32 s24, s{sT1}, 81920
    s_mul_i32 s25, s{sWAVE}, 20480
    s_add_u32 s24, s24, s25
    s_add_u32 s24, s24, {O_OFF}
    s_lshl_b32 s25, s{sT1}, 2
    s_add_u32 s25, s25, s{sWAVE}
    s_lshl_b32 s25, s25, 6
    s_add_u32 s25, s25, {G_OFF}
    v_and_b32 v{q}, 15, v0
    v_lshlrev_b32 v3, 2, v{q}
    s_waitcnt lgkmcnt(0)
    buffer_load_dword v16, v3, s[{SWS}:{SWS+3}], s25 offen""")
    for ks in range(20):
        a(f"buffer_load_dwordx4 {v(OF+4*ks,4)}, v2, s[{SWS}:{SWS+3}], s24 offen offset:{1024*(ks & 3)}")
        if ks & 3 == 3 and ks < 19: a("s_add_u32 s24, s24, 4096")
    a(f"""v_lshrrev_b32 v{g}, 4, v0
    s_lshl_b32 s25, s{sWAVE}, 9
    s_add_u32 s25, s25, s{sT1}
    v_lshl_add_u32 v3, v{q}, 5, s25        ; t
    v_cvt_f32_u32 v4, v3
    v_mul_f32 v4, {fbits(1/2048)}, v4
    v_lshlrev_b32 v5, 2, v{g}
    v_cvt_f32_u32 v5, v5
    v_mul_f32 v5, v4, v5""")
    for ks in range(2):
        for u in range(4):
            a(f"""v_mov_b32 v6, {fbits(float(16*ks+u))}
            v_fma_f32 v6, v4, v6, v5
            v_cos_f32 v7, v6
            v_sin_f32 v6, v6
            v_cvt_pk_bf16_f32 v{MF+4*ks+u}, v7, -v6""")
    VA, SG, SG0, WA = 20, 25, 26, 27
    a(f"""v_lshlrev_b32 v6, 31, v0
    v_xor_b32 v6, 0x3f803f80, v6
    v_cmp_gt_u32 vcc, 16, v0
    v_cndmask_b32 v{MF}, v{MF}, v6, vcc
    ; V gather addresses ; mirror lanes
    s_cmp_ge_u32 s{sCB}, 4
    s_cselect_b32 s26, 0x55555555, 0
    s_or_b32 s26, s26, 0x88888888
    s_mov_b32 s27, s26
    v_and_b32 v6, 3, v0
    v_mul_u32_u24 v6, {VP}, v6
    v_mul_u32_u24 v7, 320, v{g}
    v_add3_u32 v6, v6, v7, s28
    v_and_b32 v7, 12, v0
    v_sub_u32 v8, 76, v7
    v_cndmask_b32 v7, v7, v8, s[26:27]
    v_add_u32 v{VA}, v6, v7
    v_mov_b32 v7, 16
    v_cndmask_b32 v7, v7, -16, s[26:27]""".replace("v_and_b32 v6, 3, v0", f"s_mov_b32 s28, {VB}\nv_and_b32 v6, 3, v0"))
    for t in range(1, 5): a(f"v_add_u32 v{VA+t}, v{VA+t-1}, v7")
    a(f"""v_bfrev_b32 v7, 1
    v_cndmask_b32 v{SG}, 0, v7, s[26:27]
    s_cmp_eq_u32 s{sT1}, 0
    s_cselect_b32 s28, 0xffff0000, -1
    s_and_b32 s26, s26, s28
    v_cndmask_b32 v{SG0}, 0, v7, s[26:27]
    v_lshrrev_b32 v6, 5, v0
    v_bfe_u32 v7, v0, 2, 3
    v_lshl_add_u32 v6, v6, 4, v7
    v_mul_u32_u24 v6, 160, v6
    v_and_b32 v7, 3, v0
    v_lshl_add_u32 v{WA}, v7, 3, v6
    v_add_u32 v{WA+1}, 51200, v{WA}
    s_mul_i32 s28, s{sWAVE}, {16*OP}
    s_add_u32 s28, s28, {OB}
    v_mul_u32_u24 v6, {OP}, v{q}
    v_lshl_add_u32 v6, v{g}, 3, v6
    v_add_u32 v29, s28, v6""")
    for r in range(3):
        a(f"""v_add_u32 v6, {64*r}, v0
        v_mul_u32_u24 v7, 6554, v6
        v_lshrrev_b32 v7, 16, v7           ; row
        v_add_u32 v8, v6, v7
        v_lshl_add_u32 v{30+r}, v8, 4, s28
        v_mul_u32_u24 v7, {40960-160}, v7
        v_lshl_add_u32 v{33+r}, v6, 4, v7""")
    a(f"""s_mul_i32 s29, s25, 1280
    s_mul_i32 s30, s{sCB}, 160
    s_add_u32 s29, s29, s30""")
    def reads(st):
        f = WF[st & 1]
        return [f"ds_read_b64_tr_b16 {v(f+4*t+2*h,2)}, v{WA + st//10} offset:{(st % 10)*5120 + h*1280 + 32*t}" for t in range(5) for h in range(2)]
    def mfmas(st):
        f = WF[st & 1]
        return [f"v_mfma_f32_16x16x32_bf16 {v(AA+4*t,4)}, {v(f+4*t,4)}, {v(OF+4*st,4)}, {v(AA+4*t,4) if st else 0}" for t in range(5)]
    a("s_barrier"); stamp(a, cfg, 1)
    for t in range(5):
        for ks in range(2):
            for u in range(4):
                a(f"ds_read_b32 v{VF+8*t+4*ks+u}, v{VA+t} offset:{(16*ks+u)*80}")
        if t:
            k = t - 1
            a("s_waitcnt lgkmcnt(8)" if not cfg.get("stamps") else "s_waitcnt lgkmcnt(0)")
            for i in range(8): a(f"v_xor_b32 v{VF+8*k+i}, v{SG if i else SG0}, v{VF+8*k+i}")
    a("s_waitcnt lgkmcnt(0)")
    a.ext(reads(0))
    for i in range(8): a(f"v_xor_b32 v{VF+32+i}, v{SG if i else SG0}, v{VF+32+i}")
    for ks in range(2):
        for t in range(5):
            a(f"v_mfma_f32_16x16x32_bf16 {v(AB+4*t,4)}, {v(VF+8*t+4*ks,4)}, {v(MF+4*ks,4)}, {v(AB+4*t,4) if ks else 0}")
    for st in range(20):
        a(f"s_waitcnt vmcnt({19-st}) lgkmcnt(0)")
        if st & 3 == 3 and st < 19: a("s_barrier")
        a.ext(interleave(mfmas(st), reads(st+1) if st < 19 else [], per=2))
    stamp(a, cfg, 2)
    for t in range(5):
        for u in (0, 2):
            a(f"v_pk_add_f32 {v(AA+4*t+u,2)}, {v(AA+4*t+u,2)}, {v(AB+4*t+u,2)} neg_lo:[0,1] neg_hi:[0,1]")
        for u in (0, 2):
            a(f"v_pk_fma_f32 {v(AA+4*t+u,2)}, {v(AA+4*t+u,2)}, v[16:17], {v(AB+4*t+u,2)} op_sel_hi:[1,0,1]")
        a(f"v_cvt_pk_bf16_f32 v{AB+4*t}, v{AA+4*t}, v{AA+4*t+1}\nv_cvt_pk_bf16_f32 v{AB+4*t+1}, v{AA+4*t+2}, v{AA+4*t+3}")
        a(f"ds_write_b64 v29, {v(AB+4*t,2)} offset:{32*t}")
    if cfg.get("stamps"): a("s_waitcnt lgkmcnt(0)")
    a(f"""ds_read_b128 v[40:43], v30
    ds_read_b128 v[44:47], v31
    ds_read_b128 v[48:51], v32
    s_waitcnt lgkmcnt(2)
    buffer_store_dwordx4 v[40:43], v33, s[{SO}:{SO+3}], s29 offen
    s_waitcnt lgkmcnt(1)
    buffer_store_dwordx4 v[44:47], v34, s[{SO}:{SO+3}], s29 offen
    s_mov_b32 exec_hi, 0
    s_waitcnt lgkmcnt(0)
    buffer_store_dwordx4 v[48:51], v35, s[{SO}:{SO+3}], s29 offen""")
    if cfg.get("stamps"):
        a("s_mov_b64 exec, -1\ns_waitcnt vmcnt(0)"); stamp(a, cfg, 3)
        a(f"s_cmp_lg_u32 s{sWAVE}, 0\ns_cbranch_scc1 L_2_end"); stamp_out(a, cfg, 4)
    a("s_endpgm")
    a(f"""L_2_load:
    s_sub_u32 s23, s{sWAVE}, 4             ; class
    s_lshr_b32 s24, s{sCB}, 2
    s_cmp_eq_u32 s23, 1
    s_cselect_b32 s24, 0, s24
    s_cmp_eq_u32 s23, 3
    s_cselect_b32 s24, 1, s24              ; mirror
    s_cmp_eq_u32 s23, 2
    s_cselect_b32 s25, 8, 0
    s_lshl_b32 s26, s24, 2
    s_add_u32 s26, s26, 12
    s_cmp_eq_u32 s23, 0
    s_cselect_b32 s25, s26, s25
    s_sub_u32 s26, 7, s{sCB}
    s_sub_u32 s27, 32, s{sT1}
    s_and_b32 s27, s27, 31
    s_cmp_eq_u32 s24, 1
    s_cselect_b32 s26, s26, s{sCB}
    s_cselect_b32 s27, s27, s{sT1}
    s_add_u32 s25, s25, s26
    s_mul_i32 s27, s27, 20
    s_add_u32 s25, s25, s27
    s_mul_i32 s25, s25, 2560
    s_add_u32 s25, s25, {V_OFF}
    s_mul_i32 s26, s23, {VP}
    s_add_u32 m0, s26, {VB}
    s_waitcnt lgkmcnt(0)
    buffer_load_dwordx4 v2, s[{SWS}:{SWS+3}], s25 offen lds
    buffer_load_dwordx4 v2, s[{SWS}:{SWS+3}], s25 offen offset:1024 lds
    s_mov_b32 exec_hi, 0
    buffer_load_dwordx4 v2, s[{SWS}:{SWS+3}], s25 offen offset:2048 lds
    s_mov_b32 exec_hi, -1""")
    for i in range(5):
        a(f"""v_add_u32 v3, {64*i}, v0
        v_mul_u32_u24 v4, 6554, v3
        v_lshrrev_b32 v4, 16, v4            ; sigma
        v_mul_u32_u24 v5, 1120, v4
        v_lshl_add_u32 v5, v3, 4, v5
        v_bfe_u32 v6, v4, 2, 1
        v_bfe_u32 v4, v4, 3, 1
        v_sub_u32 v4, v6, v4
        v_mul_i32_i24 v4, {4*1280}, v4
        v_add_u32 v{20+i}, v5, v4""")
    a(f"""s_mul_i32 s24, s23, {32*1280}
    s_mul_i32 s25, s{sCB}, 160
    s_add_u32 s24, s24, s25
    s_mul_i32 s25, s23, 5120""")
    def issue(c):
        a(f"s_add_u32 m0, s25, {c*20480}")
        for i in range(5):
            a(f"buffer_load_dwordx4 v{20+i}, s[{SWO}:{SWO+3}], s24 offen lds")
            a("s_add_u32 m0, m0, 1024" if i < 4 else f"s_add_u32 s24, s24, {128*1280}")
    issue(0); issue(1)
    for c in range(5):
        a(f"s_waitcnt vmcnt({5 if c < 4 else 0})\ns_barrier")
        if c + 2 < 5: issue(c + 2)
    a("L_2_end:\ns_endpgm")
```

```python
import sys, json
from gl import *
import k1a, k1b, k2
from k1a import *

def k1(a, cfg):
    a(khead("p1_kernel"))
    a(f"""s_load_dwordx2 s[{SX}:{SX+1}], s[0:1], 0
    s_load_dwordx2 s[{SW}:{SW+1}], s[0:1], 8
    s_load_dwordx2 s[{SWS}:{SWS+1}], s[0:1], 88""")
    stamp(a, cfg, 0)
    a(f"""s_cmp_ge_u32 s2, 256
    s_cbranch_scc1 L_h_end
    v_lshrrev_b32 v1, 6, v0
    v_lshlrev_b32 v2, 7, v0
    v_readfirstlane_b32 s{sWAVE}, v1
    v_and_b32 v0, 63, v0
    s_and_b32 s{sXCD}, s2, 7
    s_lshr_b32 s{sN}, s2, 3
    s_mov_b32 s{SX+2}, 2621440
    s_mov_b32 s{SX+3}, 0x20000
    s_mov_b32 s{SW+2}, 2457600
    s_mov_b32 s{SW+3}, 0x20000
    s_mov_b32 s{SWS+2}, {WSREC}
    s_mov_b32 s{SWS+3}, 0x20000
    s_mov_b32 s{SAUX+3}, 0x20000
    s_cmp_lg_u32 s{sN}, 0
    s_cbranch_scc1 L_nopf
    s_getpc_b64 s[28:29]
L_pc:
    v_cmp_gt_u32 vcc, L_code_end-L_pc, v2
    s_and_saveexec_b64 s[30:31], vcc
    s_cbranch_execz L_pfd
    global_load_dword v39, v2, s[28:29]
L_pfd:
    s_mov_b64 exec, -1
L_nopf:
    s_cmp_ge_u32 s{sN}, 12
    s_cbranch_scc1 L_a
    s_cmp_ge_u32 s{sN}, 8
    s_cbranch_scc1 L_b1""")
    helper(a, cfg)
    a("L_a:")
    decode(a)
    a(f"s_cmp_lt_u32 s{sWAVE}, 4\ns_cbranch_scc1 L_a_comp")
    loaders(a, cfg)
    compute(a, cfg)
    k1b.b1(a, cfg)

def build(fn, **kw):
    cfg = dict(bars=list(range(20)), D=2, pro=2, init=1, hstart=1)
    cfg.update(kw)
    a = Asm()
    k1(a, cfg)
    c2 = dict(cfg); c2["st_base"] = 256*64
    k2.k2(a, c2)
    a("L_code_end:")
    body = fix_hazards(a.l, report=True)
    only = cfg.get("only")
    hdr = []
    if only != 2: hdr.append("; @launch kernel=p1_kernel grid=(256,1,1) block=(512,1,1) lds=163840")
    if only != 1: hdr.append("; @launch kernel=p2_kernel grid=(256,1,1) block=(512,1,1) lds=125440")
    hdr += ['.amdgcn_target "amdgcn-amd-amdhsa--gfx950"', ".text"]
    tail = ['.section .rodata,"a"', kd("p1_kernel", 256, 96), kd("p2_kernel", 256, 96)]
    open(fn, "w").write("\n".join(hdr + body + tail) + "\n")

if __name__ == "__main__":
    build("v1.s")
    build("v1_st.s", stamps=True)
```

```python
import sys
from gl import *
def w(src, fn, mult, offa, offb=None):
    s = open(src).read().split("\n")
    nl = sum(1 for x in s if x.startswith("; @launch"))
    hdr, r = s[:nl], s[nl:]
    k = [khead("dg_kernel"), f"""s_cmp_lg_u32 s2, 0
s_cbranch_scc1 L_dg_end
s_load_dwordx2 s[4:5], s[0:1], 88
s_memrealtime s[10:11]
s_waitcnt lgkmcnt(0)
s_mov_b32 s6, 0x800000
s_mov_b32 s7, 0x20000
v_mov_b32 v1, 0
s_mov_b32 s8, {offa}
buffer_load_dword v2, v1, s[4:7], s8 offen
s_mov_b32 s8, {offb if offb is not None else 0}
buffer_load_dword v3, v1, s[4:7], s8 offen
s_waitcnt vmcnt(0)
v_readfirstlane_b32 s12, v2
v_readfirstlane_b32 s13, v3
s_nop 4
{'s_mov_b32 s13, s10' if offb is None else ''}
s_sub_u32 s12, s13, s12
s_min_u32 s12, s12, 5000
s_mul_i32 s12, s12, {mult}
L_dg_l:
s_memrealtime s[14:15]
s_waitcnt lgkmcnt(0)
s_sub_u32 s14, s14, s10
s_cmp_lt_u32 s14, s12
s_cbranch_scc1 L_dg_l
L_dg_end:
s_endpgm"""]
    i = r.index('.section .rodata,"a"')
    r = r[:i] + k + r[i:] + [kd("dg_kernel", 8, 24)]
    open(fn, "w").write("\n".join(hdr + ["; @launch kernel=dg_kernel grid=(1,1,1) block=(64,1,1) lds=0"] + r) + "\n")
if __name__ == "__main__":
    S = 0x600000
    w("v1_st.s", "d_0.s", 0, S)
    w("v1_st.s", "d_tot.s", 10, S)
    w("v1_st.s", "d_k2s.s", 10, S, S + 256*64)
    w("v1_st.s", "d_a1.s", 10, S, S + 128*64 + 8)
    w("v1_st.s", "d_a5.s", 10, S, S + 128*64 + 40)
    w("v1_st.s", "d_b5.s", 10, S, S + 70*64 + 40)
```

```python
from fz_common import *
WA, OW, YR = 26, 29, 28

def comp_setup(a):
    q, g = 13, 14
    a(f"""v_and_b32 v{q}, 15, v0
    v_lshrrev_b32 v{g}, 4, v0
    v_lshrrev_b32 v6, 5, v0
    v_bfe_u32 v7, v0, 2, 3
    v_lshl_add_u32 v6, v6, 4, v7
    v_mul_u32_u24 v6, 160, v6
    v_and_b32 v7, 3, v0
    v_lshl_add_u32 v{WA}, v7, 3, v6
    v_add_u32 v{WA+1}, 51200, v{WA}
    s_mul_i32 s28, s{sWAVE}, {16*OP}
    s_add_u32 s28, s28, {OB}
    v_mul_u32_u24 v6, {OP}, v{q}
    v_lshl_add_u32 v6, v{g}, 3, v6
    v_add_u32 v{OW}, s28, v6""")
    for r in range(3):
        a(f"""v_add_u32 v6, {64*r}, v0
        v_mul_u32_u24 v7, 6554, v6
        v_lshrrev_b32 v7, 16, v7
        v_add_u32 v8, v6, v7
        v_lshl_add_u32 v{30+r}, v8, 4, s28
        v_mul_u32_u24 v7, {40960-160}, v7
        v_lshl_add_u32 v{33+r}, v6, 4, v7""")
    a(f"""s_lshl_b32 s45, s{sWAVE}, 9
    s_add_u32 s45, s45, s{sT1}
    s_mul_i32 s45, s45, 1280
    s_mul_i32 s30, s{sCB}, 160
    s_add_u32 s45, s45, s30
    s_mul_i32 s44, s{sT1}, 81920
    s_mul_i32 s30, s{sWAVE}, 20480
    s_add_u32 s44, s44, s30
    s_add_u32 s44, s44, {O_OFF}            ; o base
    s_lshl_b32 s46, s{sT1}, 2
    s_add_u32 s46, s46, s{sWAVE}
    s_lshl_b32 s46, s46, 6
    s_add_u32 s46, s46, {Z_OFF}            ; z base
    s_lshl_b32 s47, s{sXCD}, 3
    s_add_u32 s47, s47, s{sWAVE}
    s_lshl_b32 s47, s47, 11
    s_add_u32 s47, s47, {FA_OFF}
    s_mul_i32 s30, s{sWAVE}, 5120
    s_add_u32 s30, s30, {YB}
    v_lshlrev_b32 v2, 4, v0
    v_lshlrev_b32 v3, 2, v{q}
    v_lshlrev_b32 v4, 7, v0
    v_add_u32 v{YR}, s30, v2
    v_lshrrev_b32 v6, 5, v0
    v_lshlrev_b32 v6, 9, v6
    v_lshl_add_u32 v6, v{q}, 5, v6
    v_and_b32 v7, 16, v0
    v_add_u32 v2, v6, v7
    s_mov_b32 s51, s44
    s_movk_i32 s52, {SPIN}""")

VF, MF, VA, SG, SG0, YW, FV, VS = 100, 60, 68, 73, 74, 75, 76, 77
def load_setup(a):
    q, g = 13, 14
    a(f"""v_lshlrev_b32 v{FV}, 7, v0
    s_lshl_b32 s49, s{sXCD}, 13
    s_add_u32 s49, s49, {FB_OFF}
    s_mov_b32 s48, 0""")
    for i in range(3):
        a(f"""v_add_u32 v4, {64*i}, v0
        v_mul_u32_u24 v5, 13108, v4
        v_lshrrev_b32 v5, 16, v5
        v_mul_u32_u24 v5, {VJ-80}, v5
        v_lshl_add_u32 v{VS+i}, v4, 4, v5""")
    a(f"""s_sub_u32 s28, 7, s{sCB}
    s_sub_u32 s29, 32, s{sT1}
    s_and_b32 s29, s29, 31
    s_lshl_b32 s43, s29, 3
    s_add_u32 s43, s43, s28
    s_lshl_b32 s43, s43, 7
    s_add_u32 s43, s43, {V_OFF}
    s_lshl_b32 s41, s{sT1}, 3
    s_add_u32 s41, s41, s{sCB}
    s_lshl_b32 s41, s41, 7
    s_add_u32 s41, s41, {V_OFF}            ; class 1
    s_cmp_ge_u32 s{sCB}, 4
    s_cselect_b32 s28, s28, s{sCB}
    s_cselect_b32 s29, s29, s{sT1}
    s_cselect_b32 s40, 4, 0
    s_lshl_b32 s29, s29, 2
    s_add_u32 s28, s28, s29
    s_mul_i32 s28, s28, 192
    s_add_u32 s42, s28, {V_OFF + 32768}    ; class 2
    s_add_u32 s40, s40, s42
    s_add_u32 s40, s40, 80                 ; class 0
    v_and_b32 v{q}, 15, v0
    v_lshrrev_b32 v{g}, 4, v0
    s_sub_u32 s50, s{sWAVE}, 4
    s_lshl_b32 s28, s50, 9
    s_add_u32 s28, s28, s{sT1}
    v_lshl_add_u32 v3, v{q}, 5, s28        ; t
    v_cvt_f32_u32 v4, v3
    v_mul_f32 v4, {fbits(1/2048)}, v4
    v_lshlrev_b32 v5, 2, v{g}
    v_cvt_f32_u32 v5, v5
    v_mul_f32 v5, v4, v5""")
    for ks in range(2):
        for u in range(4):
            a(f"""v_mov_b32 v6, {fbits(float(16*ks+u))}
            v_fma_f32 v6, v4, v6, v5
            v_cos_f32 v7, v6
            v_sin_f32 v6, v6
            v_cvt_pk_bf16_f32 v{MF+4*ks+u}, v7, -v6""")
    a(f"""v_lshlrev_b32 v6, 31, v0
    v_xor_b32 v6, 0x3f803f80, v6
    v_cmp_gt_u32 vcc, 16, v0
    s_cmp_ge_u32 s{sCB}, 4
    s_cselect_b32 s30, 0x55555555, 0
    v_cndmask_b32 v{MF}, v{MF}, v6, vcc
    s_or_b32 s30, s30, 0x88888888
    s_mov_b32 s31, s30
    s_mov_b32 s28, {VB}
    v_and_b32 v6, 3, v0
    v_mul_u32_u24 v6, {VP}, v6
    v_mul_u32_u24 v7, 320, v{g}
    v_add3_u32 v6, v6, v7, s28
    v_and_b32 v7, 12, v0
    v_sub_u32 v8, 76, v7
    v_cndmask_b32 v7, v7, v8, s[30:31]
    v_add_u32 v{VA}, v6, v7
    v_cndmask_b32 v7, 16, -16, s[30:31]""")
    for t in range(1, 5): a(f"v_add_u32 v{VA+t}, v{VA+t-1}, v7")
    a(f"""v_bfrev_b32 v7, 1
    v_cndmask_b32 v{SG}, 0, v7, s[30:31]
    s_cmp_eq_u32 s{sT1}, 0
    s_cselect_b32 s28, 0xffff0000, -1
    s_and_b32 s30, s30, s28
    v_cndmask_b32 v{SG0}, 0, v7, s[30:31]
    s_mul_i32 s28, s50, 5120
    s_add_u32 s28, s28, {YB}
    v_lshl_add_u32 v{YW}, v0, 4, s28""")

def v_dma(a):
    for c in range(4):
        for i in range(3):
            a(f"s_mov_b32 m0, {VB + c*VP + 1024*i}")
            a("s_mov_b32 exec_hi, 0" if i == 2 else ("s_mov_b32 exec_hi, -1" if i == 0 else "s_nop 0"))
            a(f"buffer_load_dwordx4 v{VS+i}, s[{SWS}:{SWS+3}], s{40+c} offen sc1 lds")
    a("s_mov_b32 exec_hi, -1")

_pk = [0]
def v_peek(a):
    _pk[0] += 1
    a(f"""v_mov_b32 v18, 0
    s_cmp_lg_u32 s{sWAVE}, 4
    s_cbranch_scc1 L_2_pk{_pk[0]}
    buffer_load_dword v18, v{FV}, s[{SWS}:{SWS+3}], s49 offen sc1
L_2_pk{_pk[0]}:""")

def v_try(a, cfg):
    if not cfg.get("vtry", 1): return
    a("""v_cmp_eq_u32 vcc, 0, v18
    s_cbranch_vccnz L_2_nt
    s_mov_b32 s48, 1""")
    v_dma(a)
    a("L_2_nt:")

def p2(a, cfg):
    a(f"""L_2_ent:
    s_cmp_lt_u32 s{sWAVE}, 4
    s_cbranch_scc1 L_2_comp""")
    wo_setup(a)
    for c in range(5): wo_issue(a)
    load_setup(a)
    a(f"""v_mov_b32 v2, {LF}
    v_mov_b32 v3, 0
    ds_write_b32 v2, v3
    s_cmp_lg_u32 s{sWAVE}, 7
    s_cbranch_scc1 L_2_nr""")
    wait_ready(a, 2)
    a("""L_2_nr:
    s_waitcnt vmcnt(0) lgkmcnt(0)
    s_barrier
L_2_lb:""")
    a(f"""v_mov_b32 v2, {LF}
    s_cmp_lg_u32 s{sWAVE}, 4
    s_cbranch_scc1 L_2_wf
    s_cmp_lg_u32 s48, 0
    s_cbranch_scc1 L_2_vr""")
    poll(a, SWS, FV, "s49", -1, -1, 3, sleep=cfg.get("slb", 8))
    v_dma(a)
    a(f"""s_waitcnt vmcnt(0)
    ds_write_b32 v2, v2
    s_branch L_2_vr
L_2_wf:
    s_mov_b32 s59, {1 << 17}
L_2_wf2:
    ds_read_b32 v3, v2
    s_sub_u32 s59, s59, 1
    s_cbranch_scc1 L_2_vr
    s_waitcnt lgkmcnt(0)
    v_cmp_eq_u32 vcc, 0, v3
    s_cbranch_vccz L_2_vr
    s_sleep 2
    s_branch L_2_wf2
L_2_vr:
    s_waitcnt lgkmcnt(0)""")
    AB = 140
    if cfg.get("stw"): stamp(a, cfg, 9); a("s_waitcnt lgkmcnt(0)")
    mm = lambda t: [f"v_mfma_f32_16x16x32_bf16 {v(AB+4*t,4)}, {v(VF+8*t+4*ks,4)}, {v(MF+4*ks,4)}, {v(AB+4*t,4) if ks else 0}" for ks in range(2)]
    for t in range(6):
        if t < 5:
            for ks in range(2):
                for u in range(4):
                    a(f"ds_read_b32 v{VF+8*t+4*ks+u}, v{VA+t} offset:{(16*ks+u)*80}")
        if t:
            k = t - 1
            a(f"s_waitcnt lgkmcnt({8 if t < 5 else 0})")
            for i in range(8): a(f"v_xor_b32 v{VF+8*k+i}, v{SG if i else SG0}, v{VF+8*k+i}")
            a.ext(mm(k))
    for t in range(5): a(f"ds_write_b128 v{YW}, {v(AB+4*t,4)} offset:{1024*t}")
    if cfg.get("stw"): stamp(a, cfg, 10)
    a("s_waitcnt lgkmcnt(0)\ns_barrier")
    if cfg.get("stw"):
        a(f"s_cmp_lg_u32 s{sWAVE}, {cfg['stw']}\ns_cbranch_scc1 L_end"); stamp_out(a, cfg)
    a("L_end:\ns_endpgm")
    OF, WF, AA, AB = 40, (120, 140, 200), 160, 180
    LEAD = cfg.get("lead", 9)
    a("L_2_comp:")
    comp_setup(a)
    stamp(a, cfg, 6)
    a("s_barrier")
    stamp(a, cfg, 7)
    poll(a, SWS, 4, "s47", 1, 0, 5, sleep=cfg.get("slp", 8))
    a("L_2_go:")
    def reads(st):
        f = WF[st % 3]
        return [f"ds_read_b64_tr_b16 {v(f+4*t+2*h,2)}, v{WA + st//10} offset:{(st % 10)*5120 + h*1280 + 32*t}" for t in range(5) for h in range(2)]
    def mfmas(st):
        f = WF[st % 3]
        return [f"v_mfma_f32_16x16x32_bf16 {v(AA+4*t,4)}, {v(f+4*t,4)}, {v(OF+4*st,4)}, {v(AA+4*t,4) if st else 0}" for t in range(5)]
    def old(ks):
        if "nold" in cfg.get("x2", "") and ks < 19: return []
        o = [f"buffer_load_dwordx4 {v(OF+4*ks,4)}, v2, s[{SWS}:{SWS+3}], s44 offen offset:{1024*(ks & 3)} {cfg.get('laux', 'sc1')}"]
        if ks & 3 == 3 and ks < 19: o.append("s_add_u32 s44, s44, 4096")
        if ks == 19: o.append(f"buffer_load_dword v16, v3, s[{SWS}:{SWS+3}], s46 offen sc1")
        return o
    a.ext(reads(0) + reads(1))
    poll(a, SWS, 4, "s47", -1, 0, 5, sleep=cfg.get("sla", 1))
    stamp(a, cfg, 8)
    a("L_2_st:")
    for ks in range(LEAD): a.ext(old(ks))
    for st in range(20):
        nxt = st + LEAD
        out = min(nxt, 21) - st - 1 if nxt < 20 else 20 - st
        a(f"s_waitcnt vmcnt({out}) lgkmcnt({10 if 0 < st < 19 else 0})")
        x2 = cfg.get("x2", "")
        mm_, rr_ = mfmas(st), (reads(st+2) if st < 18 else [])
        if "nomf" in x2: mm_ = []
        if "nord" in x2: rr_ = []
        a.ext(interleave(mm_, rr_, per=2))
        if nxt < 20: a.ext(old(nxt))
        r = OF + 4*st
        if st % 4 == 0: a(f"v_max3_u32 v5, v{r}, v{r+1}, v{r+2}\nv_max_u32 v5, v5, v{r+3}")
        else: a(f"v_max3_u32 v5, v5, v{r}, v{r+1}\nv_max3_u32 v5, v5, v{r+2}, v{r+3}")
        if st == 19: a("s_waitcnt vmcnt(0)\nv_max_u32 v5, v5, v16")
        if st % 4 == 3: a("v_cmp_eq_u32 vcc, -1, v5\ns_cbranch_vccnz L_2_redo")
    a("L_2_fin:")
    stamp(a, cfg, 9)
    a("s_barrier")
    if cfg.get("st2"): stamp(a, cfg, 1)
    for t in range(5): a(f"ds_read_b128 {v(AB+4*t,4)}, v{YR} offset:{1024*t}")
    a(f"""s_waitcnt vmcnt(0)
    v_lshlrev_b32 v16, 16, v16
    v_mul_f32 v16, {fbits(-1.4426950408889634)}, v16
    v_exp_f32 v16, v16
    s_nop 0
    v_add_f32 v16, 1.0, v16
    v_rcp_f32 v16, v16
    s_waitcnt lgkmcnt(0)""")
    for t in range(5):
        for u in (0, 2):
            a(f"v_pk_add_f32 {v(AA+4*t+u,2)}, {v(AA+4*t+u,2)}, {v(AB+4*t+u,2)} neg_lo:[0,1] neg_hi:[0,1]")
        for u in (0, 2):
            a(f"v_pk_fma_f32 {v(AA+4*t+u,2)}, {v(AA+4*t+u,2)}, v[16:17], {v(AB+4*t+u,2)} op_sel_hi:[1,0,1]")
        a(f"v_cvt_pk_bf16_f32 v{AB+4*t}, v{AA+4*t}, v{AA+4*t+1}\nv_cvt_pk_bf16_f32 v{AB+4*t+1}, v{AA+4*t+2}, v{AA+4*t+3}")
        a(f"ds_write_b64 v{OW}, {v(AB+4*t,2)} offset:{32*t}")
    if cfg.get("st2"): stamp(a, cfg, 2); a("s_waitcnt lgkmcnt(0)")
    a(f"""ds_read_b128 v[40:43], v30
    ds_read_b128 v[44:47], v31
    ds_read_b128 v[48:51], v32
    s_waitcnt lgkmcnt(2)
    buffer_store_dwordx4 v[40:43], v33, s[{SO}:{SO+3}], s45 offen
    s_waitcnt lgkmcnt(1)
    buffer_store_dwordx4 v[44:47], v34, s[{SO}:{SO+3}], s45 offen
    s_mov_b32 exec_hi, 0
    s_waitcnt lgkmcnt(0)
    buffer_store_dwordx4 v[48:51], v35, s[{SO}:{SO+3}], s45 offen""")
    if cfg.get("stamps") and not cfg.get("stw"):
        if cfg.get("st2"): stamp(a, cfg, 3)
        a("s_mov_b64 exec, -1\ns_waitcnt vmcnt(0)"); stamp(a, cfg, 10)
        a(f"s_cmp_lg_u32 s{sWAVE}, 0\ns_cbranch_scc1 L_end"); stamp_out(a, cfg)
    a("s_endpgm")
    a(f"""L_2_redo:
    s_waitcnt vmcnt(0) lgkmcnt(0)
    s_mov_b32 s44, s51
    s_sub_u32 s52, s52, 1
    s_cbranch_scc1 L_2_fin""")
    if cfg.get("stamps") and not cfg.get("stw"): a("s_add_u32 s82, s82, 1")
    a.ext(reads(0) + reads(1))
    a("s_branch L_2_st")
```

```python
from fz_common import *
sB, sPAR, sGAM, sP0 = 23, 24, 25, 26
OSR, GO, ZR, ZO = 11, 12, 36, 37

def decode(a):
    a(f"""s_sub_u32 s27, s{sN}, 12
    s_lshr_b32 s28, s27, 2
    s_and_b32 s{sPAR}, s{sXCD}, 1
    s_bfe_u32 s29, s{sXCD}, 0x10001
    s_mul_i32 s29, s29, 5
    s_add_u32 s{sB}, s29, s28
    s_mul_i32 s{sP0}, s{sB}, {STEP}
    s_and_b32 s27, s27, 3
    s_and_b32 s29, s{sXCD}, 4
    s_add_u32 s{sGAM}, s29, s27""")

def store_addr(a, t):
    a(f"""v_bfe_u32 v{t}, v0, 1, 3
    v_lshrrev_b32 v{t+1}, 4, v0
    s_sub_u32 s29, s{sWAVE}, 4
    s_lshl_b32 s27, s29, 2
    v_add_u32 v{t+1}, s27, v{t+1}              ; q
    s_xor_b32 s28, s29, 3
    s_lshl_b32 s28, s28, 3
    s_add_u32 s28, s28, {MS}
    v_lshl_add_u32 v{t+1}, v{t}, 4, v{t+1}     ; p
    v_lshl_add_u32 v{ZR}, v{t+1}, 5, s28
    v_and_b32 v{t+2}, 1, v0
    v_mul_u32_u24 v{OSR}, {OP}, v{t+1}
    v_lshl_add_u32 v{OSR}, v{t+2}, 4, v{OSR}
    v_add_u32 v{OSR}, {OS}, v{OSR}
    s_cmp_eq_u32 s{sB}, 0
    s_cselect_b32 s28, 0, 7
    v_cmp_le_u32 vcc, s28, v{t+1}
    v_cmp_gt_u32 s[30:31], 7, v{t}
    v_add_u32 v{t+1}, s{sP0}, v{t+1}           ; P
    s_and_b64 vcc, vcc, s[30:31]
    s_movk_i32 s28, 1024
    v_cmp_gt_u32 s[30:31], s28, v{t+1}
    v_lshl_add_u32 v{t+1}, v{t+1}, 1, s{sPAR}  ; t
    s_and_b64 vcc, vcc, s[30:31]
    v_and_b32 v{t}, 31, v{t+1}
    v_mul_u32_u24 v{GO}, 81920, v{t}
    v_lshrrev_b32 v{ZO}, 5, v{t+1}
    v_lshl_add_u32 v{ZO}, v{t}, 6, v{ZO}
    v_lshlrev_b32 v{ZO}, 2, v{ZO}
    v_lshrrev_b32 v{t}, 9, v{t+1}
    v_mul_u32_u24 v{t}, 20480, v{t}
    v_bfe_u32 v{t+1}, v{t+1}, 5, 4
    v_lshl_add_u32 v{t}, v{t+1}, 5, v{t}
    v_lshl_add_u32 v{t}, v{t+2}, 4, v{t}
    v_add_u32 v{GO}, v{GO}, v{t}
    v_mov_b32 v{t}, {BIG}
    v_cndmask_b32 v{GO}, v{t}, v{GO}, vcc
    v_cndmask_b32 v{ZO}, v{t}, v{ZO}, vcc
    s_mul_i32 s53, s{sGAM}, 2560
    s_add_u32 s53, s53, {O_OFF}""")

def final_store(a, cfg):
    for r in range(5): a(f"ds_read_b128 {v(40+4*r,4)}, v{OSR} offset:{32*r}")
    a(f"ds_read_b32 v19, v{ZR}")
    for r in range(5):
        a(f"s_waitcnt lgkmcnt({5-r})")
        for k in range(4): a(f"v_min_u32 v{40+4*r+k}, -2, v{40+4*r+k}")
        a(f"buffer_store_dwordx4 {v(40+4*r,4)}, v{GO}, s[{SWS}:{SWS+3}], s53 offen offset:{512*r} sc1")
    a(f"""s_cmp_lg_u32 s{sGAM}, 0
    s_cbranch_scc1 L_a_noz
    s_mov_b32 exec_lo, 0x55555555
    s_mov_b32 exec_hi, 0x55555555
    s_mov_b32 s27, {Z_OFF}
    s_waitcnt lgkmcnt(0)
    buffer_store_dword v19, v{ZO}, s[{SWS}:{SWS+3}], s27 offen sc1
    s_mov_b64 exec, -1
L_a_noz:""")

def init_touch(a, cfg):
    ns = cfg.get("init", 1)
    if not ns: return
    a(f"""s_sub_u32 s27, s{sN}, 12
    s_mul_i32 s28, s{sWAVE}, 20
    s_add_u32 s27, s27, s28
    s_cmp_ge_u32 s27, {24*ns}
    s_cbranch_scc1 L_a_noinit
    s_mov_b32 s29, 0""")
    if ns > 1:
        a(f"""s_mul_i32 s29, s27, 2731
        s_lshr_b32 s29, s29, 16
        s_mul_i32 s28, s29, 24
        s_sub_u32 s27, s27, s28""")
    a(f"""s_lshl_b32 s28, s27, 6
    v_add_u32 v3, s28, v0
    s_cmp_ge_u32 s27, 15
    s_cbranch_scc1 L_a_ix
    v_mul_u32_u24 v4, 13108, v3
    v_lshrrev_b32 v4, 16, v4
    v_mul_u32_u24 v4, 640, v4
    v_lshl_add_u32 v2, v3, 7, v4
    s_lshr_b32 s28, s{sXCD}, 2
    s_mul_i32 s28, s28, 640
    s_mul_i32 s29, s29, {64*3840}
    s_add_u32 s28, s28, s29
    s_waitcnt lgkmcnt(0)
    buffer_load_dword v39, v2, s[{SW}:{SW+3}], s28 offen
    s_branch L_a_noinit
L_a_ix:
    v_subrev_u32 v3, 960, v3
    v_mul_u32_u24 v2, 2560, v3
    s_bfe_u32 s28, s{sXCD}, 0x10001
    s_mul_i32 s28, s28, {5*STEP*2}
    s_add_u32 s28, s28, s{sPAR}
    s_mul_i32 s28, s28, 1280
    s_lshl_b32 s29, s29, 7
    s_add_u32 s28, s28, s29
    s_waitcnt lgkmcnt(0)
    buffer_load_dword v39, v2, s[{SX}:{SX+3}], s28 offen
L_a_noinit:""")

def compute(a, cfg):
    bars = cfg["bars"]
    XA0, XA1, WM, WX, MSW, MSR, OSW = 2, 3, 4, 6, 8, 9, 10
    KTR, INC, INCW = 13, 14, 15
    CC, CP, MP, MC, MG0, ONES = 16, 20, 24, 25, 28, 32
    FR = (40, 84); ACC = 128; T = 240
    a(f"L_a_comp:\ns_load_dwordx2 s[{SAUX}:{SAUX+1}], s[0:1], 64\ns_mov_b32 s{SAUX+2}, 1280")
    init_touch(a, cfg)
    q, g, t0, t1 = 240, 241, 242, 243
    a(f"""s_lshl_b32 s27, s{sWAVE}, 7
    v_lshl_add_u32 v{t0}, v0, 1, s27
    s_waitcnt lgkmcnt(0)""")
    for i in range(3): a(f"buffer_load_ushort v{248+2*i}, v{t0}, s[{SAUX}:{SAUX+3}], 0 offen offset:{512*i}\nv_mov_b32 v{249+2*i}, 0")
    a(f"""s_mov_b32 s28, {MS}
    v_lshl_add_u32 v247, v{t0}, 2, s28""")
    p2_decode(a)
    a(f"""v_and_b32 v{q}, 15, v0
    v_lshrrev_b32 v{g}, 4, v0
    v_lshrrev_b32 v{t0}, 1, v{q}
    v_xor_b32 v{t0}, v{t0}, v{g}
    v_lshlrev_b32 v{t0}, 4, v{t0}
    v_lshl_add_u32 v{XA0}, v{q}, 7, v{t0}
    v_add_u32 v{XA0}, {XB}, v{XA0}
    v_xor_b32 v{XA1}, 64, v{XA0}
    v_lshrrev_b32 v{t0}, 5, v0
    v_bfe_u32 v{t1}, v0, 2, 3
    v_lshl_add_u32 v{t0}, v{t0}, 4, v{t1}      ; sigma0
    v_mul_u32_u24 v{t0}, 480, v{t0}
    s_mul_i32 s27, s{sWAVE}, 40
    s_add_u32 s28, s27, {WB}
    v_add_u32 v{t0}, s28, v{t0}
    v_and_b32 v{t1}, 3, v0
    v_lshl_add_u32 v{WM}, v{t1}, 3, v{t0}
    v_cmp_eq_u32 vcc, 3, v{t1}
    v_mul_u32_u24 v{t1}, 160, v{t1}
    v_add3_u32 v{WX}, v{t0}, v{t1}, 32
    v_add_u32 v{WX+1}, 3840, v{WX}
    v_bfe_u32 v{t0}, v0, 2, 2
    v_lshl_add_u32 v{t0}, v{g}, 3, v{t0}
    v_lshlrev_b32 v{t0}, 3, v{t0}
    v_add_u32 v{t0}, {MS}, v{t0}
    v_cndmask_b32 v{WX}, v{WX}, v{t0}, vcc
    v_add_u32 v{t0}, 32, v{t0}
    v_cndmask_b32 v{WX+1}, v{WX+1}, v{t0}, vcc
    v_mov_b32 v{t0}, 0x100
    v_mov_b32 v{INC}, {WS_}
    v_mov_b32 v{INCW}, {-(NW-1)*WS_}
    v_cndmask_b32 v{INC}, v{INC}, v{t0}, vcc
    v_cndmask_b32 v{INCW}, v{INCW}, v{t0}, vcc
    s_mul_i32 s28, s{sWAVE}, {RT*512}
    s_add_u32 s28, s28, {MS}
    v_lshrrev_b32 v{t0}, 2, v{q}
    v_lshl_add_u32 v{t1}, v{q}, 5, s28
    v_xor_b32 v{MSW}, v{t0}, v{g}
    v_lshl_add_u32 v{MSW}, v{MSW}, 3, v{t1}
    v_xor_b32 v{KTR}, 1, v{t0}
    v_lshl_add_u32 v{KTR}, v{KTR}, 3, v{t1}
    v_xor_b32 v{t0}, v0, v{g}
    v_lshl_add_u32 v{MSR}, v{t0}, 3, s28
    v_mul_u32_u24 v{t0}, {OP}, v{q}
    v_lshl_add_u32 v{t0}, v{g}, 3, v{t0}
    s_add_u32 s28, s27, {OS}
    v_add_u32 v{OSW}, s28, v{t0}""")
    a(f"v_lshlrev_b32 v{t0}, 2, v{g}\nv_sub_u32 v{t0}, v{t0}, v{q}\nv_mov_b32 v30, {fbits(-1e30)}\nv_mov_b32 v31, 0")
    for r in range(4):
        a(f"""v_add_u32 v{t1}, {r+7}, v{t0}
        v_cmp_gt_u32 vcc, 8, v{t1}
        v_cmp_le_i32 s[30:31], 16, v{t1}
        v_mov_b32 v{ONES+r}, 0x3f803f80
        v_cndmask_b32 v{CC+r}, v30, v31, vcc
        v_cndmask_b32 v{CP+r}, v30, v31, s[30:31]""")
    a(f"""v_cndmask_b32 v{MP}, 0, -1, s[30:31]
    v_cmp_gt_u32 vcc, 16, v0
    v_not_b32 v{MC}, v{MP}
    v_cndmask_b32 v{MG0}, 0, -1, vcc""")
    HA = 38
    a(f"""s_lshl_b32 s27, s{sB}, 3
    s_add_u32 s27, s27, s{sGAM}
    s_lshl_b32 s28, s{sPAR}, 7
    s_add_u32 s27, s27, s28
    s_lshl_b32 s27, s27, 7
    s_add_u32 s35, s27, {FA_OFF}
    s_cmp_eq_u32 s{sWAVE}, 0
    s_cselect_b64 vcc, 15, 0
    v_lshlrev_b32 v{HA}, 15, v0
    v_mov_b32 v{t0}, {BIG}
    v_cndmask_b32 v{HA}, v{t0}, v{HA}, vcc""")
    def hint(k):
        if cfg["hint"] == k: a(f"buffer_store_dword v{ONES}, v{HA}, s[{SWS}:{SWS+3}], s35 offen sc1")
    c = 20**-0.5 * 1.4426950408889634
    a(f"s_mov_b32 s32, {fbits(c)}\ns_mov_b32 s33, {fbits(c)}\ns_mov_b32 s34, {fbits(-c)}")
    a("s_waitcnt vmcnt(0)")
    for i in range(3): a(f"ds_write_b64 v247, {v(248+2*i,2)} offset:{2048*i}")
    a("s_waitcnt lgkmcnt(0)")

    def reads(st):
        f = FR[st & 1]; out = []
        sl = st % NW; hi = 0; off = sl * WS_
        for j, so in enumerate((0, 160, None, 320)):
            for h in range(2):
                if so is None:
                    out.append(f"ds_read_b64_tr_b16 {v(f+28+4*j+2*h, 2)}, v{WX+h}")
                else:
                    out.append(f"ds_read_b64_tr_b16 {v(f+28+4*j+2*h, 2)}, v{WM+hi} offset:{off + h*3840 + so}")
        xs = ((st >> 1) % NX) * XS
        xr = [f"ds_read_b128 {v(f+4*i, 4)}, v{XA0 + (st & 1)} offset:{xs + i*2048}" for i in range(RT)]
        inc = INCW if sl == NW-1 else INC
        up = [f"v_add_u32 v{WX+h}, v{WX+h}, v{inc}" for h in range(2)] if st < 19 else []
        return xr[:1] + out + xr[1:] + up
    def mf(st, i):
        f = FR[st & 1]; out = []
        for j in (2, 0, 1, 3):
            d = v(ACC + 16*i + 4*j, 4); cc = d if st else "0"
            x, w = v(f+4*i, 4), v(f+28+4*j, 4)
            out.append(f"v_mfma_f32_16x16x32_bf16 {d}, {x}, {w}, {cc}" if j == 3 else f"v_mfma_f32_16x16x32_bf16 {d}, {w}, {x}, {cc}")
        return out
    a("s_barrier"); stamp(a, cfg, 1)
    a.ext(reads(0))
    a(".p2align 3")
    for st in range(18):
        a("s_waitcnt lgkmcnt(0)")
        a("s_barrier" if st + 1 in bars else "s_nop 0")
        if st == 9: stamp(a, cfg, 2)
        a.ext(interleave(sum((mf(st, i) for i in range(RT)), []), reads(st+1)))
    VPK, VT = FR[1], FR[0]
    A = lambda i, j, r=0: ACC + 16*i + 4*j + r
    cv = lambda d, s0: f"v_cvt_pk_bf16_f32 v{d}, v{s0}, v{s0+1}"
    def pack(i):
        o = [cv(A(i,2,0), A(i,2,0)), cv(A(i,2,1), A(i,2,2)),
             f"ds_write_b64 v{MSW}, {v(A(i,2),2)} offset:{512*i}",
             cv(A(i,0,0), A(i,0,0)), cv(A(i,0,1), A(i,0,2)),
             cv(A(i,1,0), A(i,1,0)), cv(A(i,1,1), A(i,1,2)),
             f"ds_read_b64 {v(A(i,1,2),2)}, v{KTR} offset:{512*i}",
             f"v_and_b32 v{A(i,0,2)}, v{MG0}, v{A(i,2,0)}", f"v_and_b32 v{A(i,0,3)}, v{MG0}, v{A(i,2,1)}",
             f"ds_read_b64_tr_b16 {v(VT+2+2*i, 2)}, v{MSR} offset:{512*i}",
             cv(VPK+2+2*i, A(i,3,0)), cv(VPK+3+2*i, A(i,3,2))]
        if i == 0: o += [f"v_mov_b32 v{r}, 0" for r in (VPK, VPK+1, VT, VT+1)]
        return o
    def smf(i):
        o = [f"v_mfma_f32_16x16x32_bf16 {v(A(i,2),4)}, {v(A(i,1),4)}, {v(A(i,0),4)}, {v(CC,4)}"]
        if i: o.append(f"v_mfma_f32_16x16x32_bf16 {v(A(i,3),4)}, {v(A(i-1,1),4)}, {v(A(i,0),4)}, {v(CP,4)}")
        return o
    def lmax(i):
        o = [f"v_max_f32 v{A(i,2,r)}, v{A(i,2,r)}, v{A(i,3,r)}" for r in range(4)] if i else []
        return o + [f"v_max3_f32 v{T+2*i}, v{A(i,2,0)}, v{A(i,2,1)}, v{A(i,2,2)}", f"v_max_f32 v{T+2*i}, v{T+2*i}, v{A(i,2,3)}"]
    a("s_waitcnt lgkmcnt(0)")
    a("s_barrier" if 19 in bars else "s_nop 0")
    a.ext(interleave(mf(18,0) + mf(18,1) + mf(18,2), reads(19), per=2))
    a("s_waitcnt lgkmcnt(0)\ns_barrier")
    a.ext(mf(19,0))
    for k in range(4):
        mm = mf(18, 3+k) + mf(19, 1+k)
        a.ext(interleave(mm, pack(k), per=2, start=1))
    a.ext(interleave(mf(19,5) + mf(19,6), pack(4), per=2, start=1))
    stamp(a, cfg, 3)
    hint(0)
    a("s_waitcnt lgkmcnt(3)" if not cfg.get("stamps") else "s_waitcnt lgkmcnt(0)")
    a.ext(interleave(smf(0) + smf(1) + smf(2) + smf(3), pack(5), per=2))
    a("s_waitcnt lgkmcnt(3)" if not cfg.get("stamps") else "s_waitcnt lgkmcnt(0)")
    a.ext(interleave(smf(4), pack(6), per=3))
    a.ext(lmax(0) + lmax(1))
    a("s_waitcnt lgkmcnt(0)")
    a.ext(interleave(smf(5) + smf(6), lmax(2) + lmax(3), per=3))
    a.ext(lmax(4) + lmax(5) + lmax(6))
    hint(1)
    m = lambda i: T + 2*i
    a(f"v_mov_b32 v{m(7)}, v{m(6)}")
    for i in (0, 2, 4, 6): a(f"v_permlane16_swap_b32 v{m(i)}, v{m(i+1)}")
    for i in (0, 2, 4, 6): a(f"v_max_f32 v{m(i)}, v{m(i)}, v{m(i+1)}")
    for i in (0, 4): a(f"v_permlane32_swap_b32 v{m(i)}, v{m(i+2)}")
    for i in (0, 4): a(f"v_max_f32 v{m(i)}, v{m(i)}, v{m(i+2)}")
    for i in (0, 4): a(f"v_mul_f32 v{m(i+2)}, s34, v{m(i)}\nv_mul_f32 v{m(i)}, s34, v{m(i)}")
    for i in (0, 4): a(f"v_permlane32_swap_b32 v{m(i)}, v{m(i+2)}")
    for i in (0, 2, 4, 6): a(f"v_mov_b32 v{m(i+1)}, v{m(i)}")
    for i in (0, 2, 4, 6): a(f"v_permlane16_swap_b32 v{m(i)}, v{m(i+1)}")
    for i in range(RT):
        for u in range(2):
            a(f"v_pk_fma_f32 {v(A(i,2,2*u),2)}, {v(A(i,2,2*u),2)}, s[32:33], {v(m(i),2)} op_sel_hi:[1,1,0]")
    def prob(i):
        return [f"v_exp_f32 v{A(i,2,r)}, v{A(i,2,r)}" for r in range(4)] + [cv(m(i), A(i,2,0)), cv(m(i)+1, A(i,2,2))] + \
               [f"v_and_b32 v{A(i,0,u)}, v{MP}, v{m(i)+u}" for u in range(2)] + [f"v_and_b32 v{A(i,0,2+u)}, v{MC}, v{m(i)+u}" for u in range(2)]
    def pv(i):
        return [f"v_mfma_f32_16x16x32_bf16 {v(A(i,1),4)}, {v(ONES,4)}, {v(A(i,0),4)}, 0",
                f"v_mfma_f32_16x16x32_bf16 {v(A(i,2),4)}, {v(VPK+2*i,4)}, {v(A(i,0),4)}, 0",
                f"v_mfma_f32_16x16x32_bf16 {v(A(i,3),4)}, {v(VT+2*i,4)}, {v(A(i,0),4)}, 0"]
    hint(2)
    a.ext(prob(0))
    for i in range(1, RT):
        if i == 4: hint(3)
        p, w = prob(i), pv(i-1)
        a.ext(p[:2] + w[:1] + p[2:4] + w[1:2] + p[4:7] + w[2:] + p[7:])
    rc = lambda k: f"v_rcp_f32 v{m(k)}, v{A(k,1)}"
    w = pv(RT-1)
    a.ext([rc(0), rc(1)] + w[:1] + [rc(2)] + w[1:2] + [rc(3)] + w[2:] + [rc(4), rc(5)])
    def fin(k):
        for u in range(4):
            a(f"v_pk_mul_f32 {v(A(k,2,2*u),2)}, {v(A(k,2,2*u),2)}, {v(m(k),2)} op_sel_hi:[1,0]")
        a(cv(A(k,0,0), A(k,2,0))); a(cv(A(k,0,1), A(k,2,2)))
        a(f"ds_write_b64 v{OSW}, {v(A(k,0),2)} offset:{16*OP*k}")
        a(cv(A(k,0,2), A(k,3,0))); a(cv(A(k,0,3), A(k,3,2)))
    hint(4)
    fin(0); a(rc(6))
    for k in range(1, RT): fin(k)
    a("s_mov_b32 exec_lo, 0\ns_mov_b32 exec_hi, 0xffff")
    for k in range(RT): a(f"ds_write_b64 v{OSW}, {v(A(k,0,2),2)} offset:{16*OP*k + 16}")
    a("s_mov_b64 exec, -1")
    hint(5)
    stamp(a, cfg, 4)
    a("s_waitcnt lgkmcnt(0)")
    a("s_barrier")
    if cfg.get("stamps"): stamp(a, cfg, 6); a("s_waitcnt lgkmcnt(0)")
    hint(6)
    if cfg["hint"] == 7: a("s_waitcnt vmcnt(0)\ns_barrier"); hint(7)
    import fz_2
    fz_2.comp_setup(a)
    stamp(a, cfg, 7)
    a("s_waitcnt lgkmcnt(0)\ns_barrier")
    stamp(a, cfg, 5)
    a("s_branch L_2_go")

def loader_fin(a, cfg):
    import fz_2
    a("L_a_fin:")
    fz_2.v_try(a, cfg)
    a("s_barrier")
    final_store(a, cfg)
    if cfg["hint"] == 7: a("s_waitcnt vmcnt(0)\ns_barrier")
    for _ in range(cfg["wopost"]): wo_issue(a)
    a(f"""v_mov_b32 v2, {LF}
    v_mov_b32 v3, s48
    s_cmp_lg_u32 s{sWAVE}, 4
    s_cbranch_scc1 L_a_nlf
    ds_write_b32 v2, v3
L_a_nlf:
    s_waitcnt vmcnt({0 if cfg["wopost"] else 5}) lgkmcnt(0)
    s_barrier
    s_branch L_2_lb""")

def loaders(a, cfg):
    bars = cfg["bars"]; D = cfg["D"]
    nb = lambda st: min([b for b in bars if b > st] + [20])
    a(f"""L_a_load:
    s_cmp_eq_u32 s{sWAVE}, 7
    s_cbranch_scc1 L_a_xl
    s_sub_u32 s27, s{sWAVE}, 4
    s_mul_i32 s28, s27, 320
    v_add_u32 v2, s28, v0
    s_mul_i32 s36, s{sGAM}, 160
    s_mul_i32 s37, s27, 5120
    s_add_u32 s37, s37, {WB}""")
    for i in range(5):
        a(f"""v_add_u32 v3, {64*i}, v2
        v_mul_u32_u24 v4, 2185, v3
        v_mul_u32_u24 v5, 6554, v3
        v_lshrrev_b32 v5, 16, v5
        v_mul_u32_u24 v5, 1120, v5
        v_lshl_add_u32 v5, v3, 4, v5
        v_bfe_u32 v6, v4, 18, 1
        v_bfe_u32 v4, v4, 19, 1
        v_sub_u32 v4, v6, v4
        v_mul_i32_i24 v4, {4*3840}, v4
        v_add_u32 v{20+i}, v5, v4""")
    a("s_waitcnt lgkmcnt(0)")
    def wissue(st):
        a(f"s_add_u32 m0, s37, {(st % NW) * WS_}")
        for i in range(5):
            a(f"buffer_load_dwordx4 v{20+i}, s[{SW}:{SW+3}], s36 offen lds")
            a("s_add_u32 m0, m0, 1024" if i < 4 else f"s_add_u32 s36, s36, {32*3840}")
    ops = []
    def run(issue, nper, per_steps, nslots, first):
        nonlocal ops
        ops = []; n = 20 // per_steps; issued = 0; wo = 0
        def go():
            nonlocal issued
            issue(issued); ops.extend([issued]*nper); issued += 1
        go()
        stamp(a, cfg, 2) if cfg.get("stw") else None
        p2_decode(a); store_addr(a, 32)
        while issued*per_steps < cfg["pro"]: go()
        import fz_2
        wo_setup(a); fz_2.load_setup(a)
        if first: a(f"s_load_dwordx2 s[{SAUX}:{SAUX+1}], s[0:1], 80\ns_mov_b32 s{SAUX+2}, 256\nv_mov_b32 v17, 0")
        a("s_waitcnt lgkmcnt(0)")
        for b in bars:
            last = (nb(b) - 1) // per_steps
            assert issued > last
            k = max(i for i, t in enumerate(ops) if t == last)
            a(f"s_waitcnt vmcnt({len(ops) - 1 - k})")
            if cfg.get("stw") and b < 6: stamp(a, cfg, 3 + b)
            if first and b == 18:
                assert ops.index("rdy") < k
                a("v_cmp_eq_u32 vcc, 0, v16\ns_cbranch_vccz L_a_rdy")
                poll(a, SAUX, 17, "0", 1, 0, 16, sleep=4, imm=128)
                a("L_a_rdy:")
            a("s_barrier")
            if first and b == 14:
                a(f"buffer_load_dword v16, v17, s[{SAUX}:{SAUX+3}], 0 offen offset:128 sc1"); ops.append("rdy")
            while issued < n and issued*per_steps < nb(b) + D and issued < b//per_steps + nslots: go()
            if b in cfg["wob"]: wo_issue(a); ops.extend(["wo"]*5); wo += 1
        a("s_barrier")
        fz_2.v_peek(a)
        for _ in range(5 - wo - cfg["wopost"]): wo_issue(a)
        a(f"s_waitcnt vmcnt({5*(5 - wo - cfg['wopost'])})")
    stamp(a, cfg, 1) if cfg.get("stw") else None
    run(wissue, 5, 1, NW, False)
    a("s_branch L_a_fin")
    a(f"""L_a_xl:
    v_lshrrev_b32 v2, 3, v0
    v_and_b32 v3, 7, v0
    v_lshrrev_b32 v4, 4, v0
    v_xor_b32 v3, v3, v4
    v_mul_u32_u24 v2, 2560, v2
    v_lshl_add_u32 v20, v3, 4, v2
    v_xor_b32 v21, 64, v20
    s_lshl_b32 s36, s{sP0}, 1
    s_add_u32 s36, s36, s{sPAR}
    s_mul_i32 s36, s36, 1280
    s_waitcnt lgkmcnt(0)""")
    def xissue(c):
        a(f"s_mov_b32 m0, {XB + (c % NX)*XS}\ns_add_u32 s37, s36, {128*c}")
        for i in range(2*RT):
            a(f"buffer_load_dwordx4 v{20 + (i & 1)}, s[{SX}:{SX+3}], s37 offen lds")
            if i < 2*RT-1: a("s_add_u32 m0, m0, 1024\ns_add_u32 s37, s37, 20480")
    stamp(a, cfg, 1) if cfg.get("stw") else None
    run(xissue, 2*RT, 2, NX, True)
    loader_fin(a, cfg)

def helper(a, cfg):
    h0, h1 = cfg.get("hstart", 2), cfg.get("bstart", 5)
    a(f"""L_help:
    s_cmp_ge_u32 s{sWAVE}, 6
    s_cbranch_scc1 L_h_o
    s_mov_b32 s43, 0x20000
    s_lshl_b32 s27, s{sWAVE}, 2
    s_add_u32 s27, s27, s{sN}""")
    touch_slot(a, "h", 27, 2, 40, 44, 45)
    a(f"s_mul_i32 s27, s45, {h0}\ns_add_u32 s44, s44, s27")
    for c in range(h0, h1):
        a("buffer_load_dword v39, v2, s[40:43], s44 offen\ns_add_u32 s44, s44, s45")
    a(f"""L_h_o:
    ; write the "not yet produced" pattern over 1/32 of the hand-off buffer; workgroups 0..7 also clear one
    s_load_dwordx2 s[{SAUX}:{SAUX+1}], s[0:1], 80
    s_mov_b32 s{SAUX+2}, 256""")
    p2_decode(a)
    a(f"""v_lshlrev_b32 v2, 7, v0
    v_mov_b32 v3, 0
    v_mov_b32 v4, 1
    v_lshlrev_b32 v5, 4, v0
    v_mov_b32 v8, -1
    v_mov_b32 v9, -1
    v_mov_b32 v10, -1
    v_mov_b32 v11, -1
    s_lshl_b32 s30, s2, 3
    s_add_u32 s30, s30, s{sWAVE}
    s_mul_i32 s30, s30, 10240
    s_add_u32 s30, s30, {O_OFF}
    s_waitcnt vmcnt({cfg.get('hlead', 1)}) lgkmcnt(0)
    s_barrier
    s_xor_b32 s27, s{sWAVE}, 7
    s_or_b32 s27, s27, s{sN}
    s_cbranch_scc1 L_h_p
    s_lshl_b32 s27, s{sXCD}, 14
    s_add_u32 s27, s27, {FA_OFF}
    s_add_u32 s28, s27, 8192
    s_lshl_b32 s29, s{sXCD}, 13
    s_add_u32 s29, s29, {FB_OFF}
    buffer_store_dword v3, v2, s[{SWS}:{SWS+3}], s27 offen sc1
    buffer_store_dword v3, v2, s[{SWS}:{SWS+3}], s28 offen sc1
    buffer_store_dword v3, v2, s[{SWS}:{SWS+3}], s29 offen sc1
    s_lshl_b32 s27, s{sXCD}, 10
    s_add_u32 s27, s27, {Z_OFF}
    buffer_store_dwordx4 v[8:11], v5, s[{SWS}:{SWS+3}], s27 offen sc1
L_h_p:""")
    for k in range(10):
        a(f"buffer_store_dwordx4 v[8:11], v5, s[{SWS}:{SWS+3}], s30 offen offset:{1024*(k & 3)} sc1")
        if k & 3 == 3: a("s_add_u32 s30, s30, 4096")
    stamp(a, cfg, 4)
    a(f"""s_waitcnt vmcnt(0)
    s_barrier
    s_cmp_lg_u32 s{sWAVE}, 0
    s_cbranch_scc1 L_2_ent
    s_mov_b64 exec, 1
    buffer_atomic_add v4, v3, s[{SAUX}:{SAUX+3}], 0 offen sc0 sc1
    s_waitcnt vmcnt(0)
    v_cmp_eq_u32 vcc, 31, v4
    s_cbranch_vccz L_h_nl
    buffer_store_dword v4, v3, s[{SAUX}:{SAUX+3}], 0 offen offset:128 sc1
L_h_nl:
    s_mov_b64 exec, -1""")
    stamp(a, cfg, 5)
    a("s_branch L_2_ent")
```

```python
from fz_common import *
UB, SB = 81920, 122880
sJ, sT, sH, sE, sBETA = 23, 24, 25, 26, 33
SBG = 40

def gen_tile(a, dst, vE, vD, tmp):
    A, B, K, th = tmp, tmp + 8, tmp + 16, tmp + 18
    for m, S in ((0, A), (1, B)):
        for j in range(4):
            if m == 0: a(f"v_mul_f32 v{th+j}, v{vE}, v{vD+j}")
            else: a(f"v_add_f32 v{th+j}, v{K+1}, v{th+j}")
        if m == 0: a(f"v_mul_f32 v{K+1}, 0x41800000, v{vE}")
        for j in range(4): a(f"v_cos_f32 v{S+j}, v{th+j}\nv_sin_f32 v{S+4+j}, v{th+j}")
    a(f"v_cos_f32 v{K}, v{K+1}")
    def pack(m, S):
        d = dst + 4*(m >> 1) + 2*(m & 1)
        a(f"v_cvt_pk_bf16_f32 v{d}, v{S}, v{S+1}\nv_cvt_pk_bf16_f32 v{d+1}, v{S+2}, v{S+3}")
        a(f"v_cvt_pk_bf16_f32 v{d+20}, v{S+4}, v{S+5}\nv_cvt_pk_bf16_f32 v{d+21}, v{S+6}, v{S+7}")
    pack(0, A)
    a(f"v_add_f32 v{K}, v{K}, v{K}")
    pack(1, B)
    for m in range(2, 10):
        P, C = (A, B) if m % 2 == 0 else (B, A)
        for u in range(4):
            a(f"v_pk_fma_f32 {v(P+2*u,2)}, {v(C+2*u,2)}, {v(K,2)}, {v(P+2*u,2)} op_sel_hi:[1,0,1] neg_lo:[0,0,1] neg_hi:[0,0,1]")
        pack(m, P)

_bg = [0]
def bg(a):
    _bg[0] += 1
    a(f"""s_sub_u32 s46, s46, 1
    s_cbranch_scc1 L_bg{_bg[0]}
    buffer_load_dword v1, v12, s[{SBG}:{SBG+3}], s44 offen
    s_add_u32 s44, s44, s45
    s_cmp_ge_u32 s44, s47
    s_cselect_b32 s27, s47, 0
    s_sub_u32 s44, s44, s27
    s_branch L_bh{_bg[0]}
L_bg{_bg[0]}:
    s_mov_b32 s46, 0
L_bh{_bg[0]}:""")

def b1(a, cfg):
    MAT = 16
    GF = 96
    TMP = 216
    c0 = cfg.get("bstart", 5)
    a(f"""L_b1:
    s_sub_u32 s{sBETA}, s{sN}, 4""")
    p2_decode(a)
    a(f"""s_mov_b32 s{SBG+3}, 0x20000
    s_mov_b32 s47, -1
    s_cmp_ge_u32 s{sWAVE}, 6
    s_cbranch_scc1 L_b_two
    s_cmp_ge_u32 s{sWAVE}, 3
    s_cselect_b32 s27, 3, 0
    s_cselect_b32 s34, 1, 0
    s_sub_u32 s27, s{sWAVE}, s27
    s_lshl_b32 s27, s27, 3
    s_add_u32 s27, s27, s{sBETA}""")
    touch_slot(a, "b", 27, 12, SBG, 44, 45)
    a(f"""s_cmp_lg_u32 s34, 0
    s_cbranch_scc1 L_b_t1
    s_add_u32 s27, s44, s45
    buffer_load_dword v1, v12, s[{SBG}:{SBG+3}], s27 offen
L_b_t1:
    s_add_u32 s27, s34, {c0}
    s_mul_i32 s28, s27, s45
    s_add_u32 s44, s44, s28
    s_lshl_b32 s45, s45, 1
    s_sub_u32 s46, 11, s27
    s_lshr_b32 s46, s46, 1
    s_branch L_b_tx
L_b_two:
    s_lshl_b32 s27, s{sBETA}, 1
    s_add_u32 s27, s27, s{sWAVE}
    s_mul_i32 s28, s{sXCD}, 12
    s_add_u32 s27, s27, s28
    s_sub_u32 s27, s27, 6
    s_lshl_b32 s44, s27, 13
    s_mov_b32 s45, {16*8192}
    s_mov_b32 s46, 7
    s_mov_b32 s47, 819200
    s_mov_b32 s{SBG+2}, 819200
    v_lshlrev_b32 v12, 7, v0
    s_waitcnt lgkmcnt(0)
    s_mov_b32 s{SBG}, s{SWO}
    s_mov_b32 s{SBG+1}, s{SWO+1}
L_b_tx:
    s_lshr_b32 s{sJ}, s{sBETA}, 1
    s_lshl_b32 s{sJ}, s{sJ}, 3
    s_add_u32 s{sJ}, s{sJ}, s{sXCD}
    s_and_b32 s{sE}, s{sBETA}, 1
    s_and_b32 s{sT}, s{sWAVE}, 3
    s_lshr_b32 s{sH}, s{sWAVE}, 2
    s_sub_u32 s27, 2048, s{sJ}
    s_cmp_eq_u32 s{sJ}, 0
    s_cselect_b32 s27, 32, s27
    s_cselect_b32 s28, 64, -64
    s_cmp_eq_u32 s{sH}, 0
    s_cselect_b32 s27, s{sJ}, s27
    s_cselect_b32 s28, 64, s28
    s_lshl_b32 s29, s{sT}, 3
    v_lshrrev_b32 v2, 3, v0
    v_add_u32 v2, s29, v2
    v_mul_i32_i24 v2, s28, v2
    v_add_u32 v2, s27, v2
    v_lshrrev_b32 v3, 4, v0
    v_lshlrev_b32 v3, 1, v3
    v_and_b32 v4, 7, v0
    v_xor_b32 v3, v3, v4
    v_mul_u32_u24 v2, 1280, v2
    v_lshl_add_u32 v15, v3, 4, v2
    s_mul_i32 s30, s{sE}, 640
    s_lshl_b32 s31, s{sWAVE}, 10
    s_lshl_b32 s29, s30, 6
    s_add_u32 m0, s29, s31""")
    nx = [0]
    def xdma(n):
        for _ in range(n):
            a(f"buffer_load_dwordx4 v15, s[{SX}:{SX+3}], s30 offen lds")
            nx[0] += 1
            if nx[0] == 5:
                a(f"s_xor_b32 s30, s{sE}, 1\ns_mul_i32 s30, s30, 640\ns_lshl_b32 s29, s30, 6\ns_add_u32 m0, s29, s31")
            else:
                a("s_add_u32 m0, m0, 8192\ns_add_u32 s30, s30, 128")
    xdma(4)
    p, g = 13, 14
    a(f"""v_and_b32 v{p}, 15, v0
    v_lshrrev_b32 v{g}, 4, v0
    s_add_u32 s27, s{sT}, 1
    s_and_b32 s27, s27, 2                  ; T in (1,2)
    s_cselect_b32 s48, 0x41800000, 0
    s_cselect_b32 s49, {fbits(-0.25)}, 0
    s_mov_b32 s50, 0
    s_mov_b32 s51, 1.0
    s_mov_b32 s53, 1.0
    s_and_b32 s27, s{sT}, 1
    s_cselect_b32 s52, -1.0, 1.0
    s_mov_b32 s54, s52
    s_cmp_lg_u32 s{sJ}, 0
    s_cbranch_scc1 L_b_g
    s_and_b32 s27, s{sT}, 1
    s_cselect_b32 s49, {fbits(-0.25)}, 0
    s_cselect_b32 s53, 0, 1.0
    s_cmp_ge_u32 s{sT}, 2
    s_cselect_b32 s50, {fbits(1/64)}, 0
    s_cselect_b32 s51, 0, 1.0
    s_cselect_b32 s52, s52, 0
    s_cselect_b32 s54, 1.0, -1.0
    s_and_b32 s27, s{sT}, 1
    s_cselect_b32 s54, s54, 0
L_b_g:
    v_cvt_f32_u32 v4, v{p}
    v_cmp_eq_u32 vcc, 0, v{p}
    v_mov_b32 v5, s49
    v_fmac_f32 v5, s50, v4                 ; phi (p != 0)
    v_mov_b32 v6, s48
    v_cndmask_b32 v4, v4, v6, vcc          ; P
    v_mul_f32 v4, {fbits(1/32)}, v4
    v_cndmask_b32 v5, v5, 0, vcc
    v_mov_b32 v6, s51
    v_mov_b32 v7, s53
    v_cndmask_b32 v6, v6, v7, vcc          ; A0
    v_mov_b32 v7, s52
    v_mov_b32 v8, s54
    v_cndmask_b32 v7, v7, v8, vcc          ; A1
    v_lshrrev_b32 v8, 1, v{g}
    v_and_b32 v9, 1, v{g}
    v_lshlrev_b32 v9, 2, v9
    v_lshl_add_u32 v8, v8, 4, v9
    v_cvt_f32_u32 v8, v8
    v_fmac_f32 v5, v4, v8""")
    for sl in range(8):
        k = 8*(sl >> 2) + (sl & 3)
        a(f"v_mov_b32 v9, {fbits(float(k))}\nv_fma_f32 v{TMP+sl}, v4, v9, v5\nv_cos_f32 v{TMP+sl}, v{TMP+sl}")
    for ks in range(2):
        for sl in range(8): a(f"v_mul_f32 v{TMP+8+sl}, v{6+ks}, v{TMP+sl}")
        for u in range(4): a(f"v_cvt_pk_bf16_f32 v{GF+4*ks+u}, v{TMP+8+2*u}, v{TMP+9+2*u}")
    XA, AR, AI = 2, 6, 7
    a(f"""v_bfe_u32 v10, v0, 2, 3
    v_lshrrev_b32 v11, 5, v0
    v_lshl_add_u32 v11, v11, 4, v10
    v_lshlrev_b32 v11, 7, v11
    v_and_b32 v10, 6, v10                  ; swizzle
    v_bfe_u32 v8, v0, 1, 1
    s_lshl_b32 s27, s{sH}, 1
    v_or_b32 v8, s27, v8
    v_xor_b32 v10, v10, v8
    v_lshl_add_u32 v11, v10, 4, v11
    v_and_b32 v10, 1, v0
    v_lshl_add_u32 v{XA}, v10, 3, v11
    v_xor_b32 v{XA+1}, 64, v{XA}
    v_add_u32 v{XA+2}, 40960, v{XA}
    v_add_u32 v{XA+3}, 40960, v{XA+1}
    s_mul_i32 s27, s{sT}, 5120
    s_lshl_b32 s28, s{sH}, 3
    s_add_u32 s27, s27, s28
    s_add_u32 s27, s27, {UB}
    v_lshl_add_u32 v10, v0, 4, s27
    v_add_u32 v11, 20480, v10
    s_and_b32 s27, s{sT}, s{sE}
    s_cselect_b64 vcc, 0, -1
    s_xor_b32 s27, s{sT}, 3
    s_or_b32 s27, s27, s{sJ}
    s_cselect_b32 s28, 0, 0x00010001
    s_or_b32 vcc_lo, vcc_lo, s28
    s_or_b32 vcc_hi, vcc_hi, s28
    s_mul_i32 s28, s{sE}, 0x80008000
    v_cndmask_b32 v{AR}, v11, v10, vcc
    v_cndmask_b32 v{AI}, v10, v11, vcc
    v_mov_b32 v10, s28
    v_cndmask_b32 v10, 0, v10, vcc""")
    for u in range(8):
        a(f"v_xor_b32 v{GF+16+u}, s28, v{GF+u}\nv_xor_b32 v{GF+8+u}, v10, v{GF+u}\nv_xor_b32 v{GF+24+u}, s28, v{GF+8+u}")
    xdma(2)
    a(f"""s_sub_u32 s27, 3, s{sE}
    s_cmp_lt_u32 s{sWAVE}, s27
    s_cselect_b32 s50, 1, 0
    s_cselect_b32 s49, 0, 2
    s_mul_i32 s28, s{sE}, 5
    s_add_u32 s28, s28, s{sWAVE}
    s_sub_u32 s28, s28, 3
    s_lshl_b32 s29, s{sWAVE}, 1
    s_cmp_lg_u32 s50, 0
    s_cselect_b32 s48, s29, s28
    s_cmp_lg_u32 s{sE}, 0
    s_cselect_b32 s49, 1, s49
    v_lshlrev_b32 v8, 2, v{g}
    v_cvt_f32_u32 v208, v8
    v_add_f32 v209, 1.0, v208
    v_add_f32 v210, 2.0, v208
    v_add_f32 v211, 2.0, v209""")
    for k in range(2):
        if k == 1: a("s_cmp_eq_u32 s50, 0\ns_cbranch_scc1 L_b_gd")
        a(f"""s_lshl_b32 s27, s48, 6
        s_add_u32 s27, s27, s49
        s_add_u32 s27, s27, {64*k}
        v_lshl_add_u32 v8, v{p}, 2, s27
        v_cvt_f32_u32 v8, v8
        v_mul_f32 v8, {fbits(1/640)}, v8""")
        gen_tile(a, MAT + 40*k, 8, 208, TMP)
        if k == 0: xdma(4)
    a("L_b_gd:")
    gP, gM, gM0, UA = 8, 9, 10, 11
    a(f"""s_lshl_b32 s51, s{sE}, 8
    s_add_u32 s51, s51, 768
    s_lshl_b32 s27, s51, 2
    v_mul_u32_u24 v{gP}, s27, v{g}
    s_mul_i32 s27, s51, 29
    v_sub_u32 v{gM}, s27, v{gP}
    v_cmp_eq_u32 s[54:55], 0, v{g}
    s_mul_i32 s27, s51, 13
    v_mov_b32 v{gM0}, s27
    s_cmp_eq_u32 s{sJ}, 0
    v_cndmask_b32 v{gM0}, v{gM}, v{gM0}, s[54:55]
    s_cselect_b64 s[56:57], s[54:55], 0
    s_lshr_b32 s27, s49, 1
    s_mul_i32 s27, s27, 20480
    s_add_u32 s27, s27, {UB}
    v_lshl_add_u32 v{UA}, v0, 4, s27""")
    stamp(a, cfg, 1)
    a("s_waitcnt vmcnt(0) lgkmcnt(0)\ns_barrier")
    stamp(a, cfg, 2)
    if cfg.get("stamps"): a("s_waitcnt lgkmcnt(0)")
    XF = (128, 160); AC = (192, 200); T = 208
    cv = lambda d, s0: f"v_cvt_pk_bf16_f32 v{d}, v{s0}, v{s0+1}"
    def rd(tp):
        out = []
        for r in range(4):
            cb = (10*r + 2*tp) // 4; reg = XA + ((r + tp) & 1) + 2*(cb // 5)
            for ks in range(2):
                for h in range(2):
                    out.append(f"ds_read_b64_tr_b16 {v(XF[tp&1] + 8*r + 4*ks + 2*h, 2)}, v{reg} offset:{(cb % 5)*8192 + ks*4096 + h*1024}")
        return out
    def mf(tp):
        out = []
        for r0 in (0, 2):
            for ks in range(2):
                for r in (r0, r0+1):
                    d = v(AC[tp&1] + 4*(r & 1), 4)
                    out.append(f"v_mfma_f32_16x16x32_bf16 {d}, {v(XF[tp&1] + 8*r + 4*ks, 4)}, {v(GF + 8*r + 4*ks, 4)}, {d if (ks or r0) else 0}")
        return out
    def fin1(tp, odd):
        c = AC[tp & 1]; out = []; P = c
        if not odd:
            out += [f"v_add_f32 v{T+4+u}, v{c+u}, v{c+4+u}" for u in range(4)] + [f"v_sub_f32 v{c+4+u}, v{c+u}, v{c+4+u}" for u in range(4)]
            P = T + 4
        out += [cv(T, P), cv(T+1, P+2), cv(T+2, c+4), cv(T+3, c+6),
                f"ds_write_b64 v{AR}, {v(T,2)} offset:{1024*tp}", f"ds_write_b64 v{AI}, {v(T+2,2)} offset:{1024*tp}"]
        return out
    UF = (128, 160); HA = 192; E = 216; PK = 232
    def rdh(kp, odd):
        return [f"ds_read_b128 {v(UF[kp&1] + 16*ab + 4*t, 4)}, v{UA} offset:{ab*20480 + (5*t + kp)*1024}" for ab in range(2 if odd else 1) for t in range(4)]
    def mfh(kp, odd, m):
        out = []
        if odd:
            for ab in range(2):
                for t in range(4):
                    d = v(HA + 4*t, 4)
                    out.append(f"v_mfma_f32_16x16x32_bf16 {d}, {v(UF[kp&1] + 16*ab + 4*t, 4)}, {v(m + 20*ab + 4*kp, 4)}, {d if (kp or ab) else 0}")
        else:
            for k, (t, sn) in enumerate(((0, 0), (1, 1), (2, 0), (3, 1), (3, 0))):
                d = v(HA + 4*k, 4)
                out.append(f"v_mfma_f32_16x16x32_bf16 {d}, {v(UF[kp&1] + 4*t, 4)}, {v(m + 20*sn + 4*kp, 4)}, {d if kp else 0}")
        return out
    def put(pitch):
        a(f"v_add_u32 v3, v2, v{gP}\nv_add_u32 v4, v2, v{gM}\nv_add_u32 v5, v2, v{gM0}")
        for rr in range(4):
            a(f"ds_write_b32 v3, v{PK+rr} offset:{rr*pitch}")
            a(f"ds_write_b32 v{4 if rr else 5}, v{PK+4+rr} offset:{(3-rr)*pitch}")
    def tile(odd, k):
        a.ext(rdh(0, odd))
        a(f"""s_add_u32 s27, s48, {k}
        s_lshl_b32 s27, s27, 4
        v_add_u32 v7, s27, v{p}
        v_mul_u32_u24 v6, 3277, v7
        v_lshrrev_b32 v6, 16, v6
        v_mul_u32_u24 v2, 20, v6
        v_sub_u32 v7, v7, v2""")
        if odd:
            a(f"v_lshlrev_b32 v2, 7, v6\nv_lshl_add_u32 v2, v7, 2, v2\nv_add_u32 v2, {SB}, v2")
        else:
            a(f"""s_cmp_eq_u32 s49, 0
            s_cselect_b32 s27, 80, 0
            s_add_u32 s27, s27, {SB}
            v_mul_u32_u24 v2, 192, v6
            v_lshl_add_u32 v2, v7, 2, v2
            v_add_u32 v2, s27, v2
            v_cmp_gt_u32 vcc, 4, v6
            v_mov_b32 v15, {SB + 176}
            v_cndmask_b32 v2, v15, v2, vcc""")
        for kp in range(5):
            a("s_waitcnt lgkmcnt(0)")
            a.ext(interleave(mfh(kp, odd, MAT + 40*k), rdh(kp+1, odd) if kp < 4 else []))
        if not odd: a(f"v_cndmask_b32 v{HA+12}, v{HA+12}, v{HA+16}, s[56:57]")
        for op, d, x, y in (("sub", E, HA, HA+4), ("add", E+8, HA, HA+4), ("add", E+4, HA+12, HA+8), ("sub", E+12, HA+12, HA+8)):
            for u in range(4): a(f"v_{op}_f32 v{d+u}, v{x+u}, v{y+u}")
        for kk, t in enumerate((0, 3, 2, 1)):
            a(f"v_cndmask_b32 v{E+4*kk}, v{E+4*kk}, v{HA+4*t}, s[54:55]")
        for rr in range(4):
            a(f"v_cvt_pk_bf16_f32 v{PK+rr}, v{E+rr}, v{E+4+rr}\nv_cvt_pk_bf16_f32 v{PK+4+rr}, v{E+8+rr}, v{E+12+rr}")
        put(1024 if odd else 768)
        if not odd:
            a(f"""s_cmp_lg_u32 s49, 0
            s_cbranch_scc1 L_b_nd{k}
            v_mul_u32_u24 v2, 192, v6
            v_add_u32 v2, {SB - 192 + 160}, v2
            v_cmp_eq_u32 vcc, 0, v7
            v_cmp_lt_u32 s[28:29], 0, v6
            s_and_b64 vcc, vcc, s[28:29]
            v_cndmask_b32 v2, v15, v2, vcc""")
            put(768)
            a(f"L_b_nd{k}:")
    a.ext(rd(0))
    a(f"s_cmp_eq_u32 s{sE}, 0\ns_cbranch_scc1 L_b_ev")
    for odd in (1, 0):
        if not odd: a("L_b_ev:")
        for tp in range(5):
            bg(a)
            a(f"s_waitcnt lgkmcnt({2 if tp >= 2 else 0})")
            a.ext(interleave(mf(tp), rd(tp+1) if tp < 4 else [], per=2))
            if tp: a.ext(fin1(tp-1, odd))
        a.ext(fin1(4, odd))
        bg(a)
        a("s_waitcnt lgkmcnt(0)\ns_barrier")
        stamp(a, cfg, 3)
        tile(odd, 0)
        bg(a)
        a("s_cmp_eq_u32 s50, 0\ns_cbranch_scc1 L_b_end")
        tile(odd, 1)
        if odd: a("s_branch L_b_end")
    a(f"""L_b_end:
    s_cmp_lg_u32 s{sWAVE}, 5
    s_cbranch_scc1 L_b_nr""")
    wait_ready(a, 4)
    a("L_b_nr:")
    stamp(a, cfg, 4)
    a(f"""s_lshl_b32 s27, s{sWAVE}, 10
    v_lshl_add_u32 v2, v0, 4, s27
    v_add_u32 v3, {SB}, v2
    s_mul_i32 s28, s{sJ}, {VJ}
    s_add_u32 s28, s28, {V_OFF + 32768}
    s_lshl_b32 s27, s{sE}, 15
    s_sub_u32 s28, s28, s27
    s_waitcnt lgkmcnt(0)
    s_barrier""")
    for k in range(4): a(f"ds_read_b128 {v(16+4*k,4)}, v3 offset:{8192*k}")
    for k in range(4):
        if k == 3: a(f"s_cmp_eq_u32 s{sE}, 0\ns_cbranch_scc1 L_b_n6")
        a(f"s_waitcnt lgkmcnt({3-k})\nbuffer_store_dwordx4 {v(16+4*k,4)}, v2, s[{SWS}:{SWS+3}], s28 offen sc1\ns_add_u32 s28, s28, 8192")
    a(f"""L_b_n6:
    s_waitcnt vmcnt(0) lgkmcnt(0)
    s_barrier""")
    stamp(a, cfg, 5)
    a(f"""s_cmp_lg_u32 s{sWAVE}, 0
    s_cbranch_scc1 L_2_ent
    s_lshl_b32 s27, s{sJ}, 1
    s_add_u32 s27, s27, s{sE}
    s_lshl_b32 s27, s27, 7
    s_add_u32 s27, s27, {FB_OFF}
    v_lshlrev_b32 v2, 13, v0
    v_mov_b32 v3, 1
    s_mov_b64 exec, 0xff
    buffer_store_dword v3, v2, s[{SWS}:{SWS+3}], s27 offen sc1
    s_mov_b64 exec, -1
    s_branch L_2_ent""")
```

```python
from gl import *
RT = 7; STEP = 16*RT - 7
XB, XS, NX = 40960, 14336, 3
WB, WS_, NW = 83968, 15360, 4
MS = 149504
OP = 176
OS = MS - 112*OP
VB, VP = 102400, 2576
OB = 112896
LF = 112800
YB = OS
O_OFF, V_OFF, Z_OFF, FA_OFF, FB_OFF, ST_OFF = 0, 0x300000, 0x280000, 0x500000, 0x520000, 0x600000
VJ = 57344
WSREC = 0x800000
BIG = 0x40000000
SPIN = 3000
SX, SW, SWS, SAUX = 4, 8, 12, 16
sWAVE, sXCD, sN = 20, 21, 22
sCB, sT1 = 84, 85
SWO, SO = 88, 92

def stamp(a, cfg, k):
    if cfg.get("stamps"): a(f"{'s_memtime' if cfg['stamps'] == 'cyc' else 's_memrealtime'} s[{60+2*k}:{61+2*k}]")
def stamp_out(a, cfg, n=12):
    if not cfg.get("stamps"): return
    a(f"s_waitcnt lgkmcnt(0)\ns_mul_i32 s58, s2, {8*12}\ns_add_u32 s58, s58, {ST_OFF}\nv_mov_b32 v1, 0")
    for k in range(n):
        a(f"v_mov_b32 v2, s{60+2*k}\nv_mov_b32 v3, s{61+2*k}\nbuffer_store_dwordx2 v[2:3], v1, s[{SWS}:{SWS+3}], s58 offen offset:{8*k}\ns_nop 1")

def p2_decode(a):
    a(f"""s_load_dwordx2 s[{SWO}:{SWO+1}], s[0:1], 16
    s_load_dwordx2 s[{SO}:{SO+1}], s[0:1], 72
    s_and_b32 s{sCB}, s{sN}, 7
    s_lshr_b32 s86, s{sN}, 4
    s_lshl_b32 s86, s86, 3
    s_add_u32 s86, s86, s{sXCD}
    s_sub_u32 s87, 32, s86
    s_cmp_eq_u32 s86, 0
    s_cselect_b32 s87, 16, s87
    s_bitcmp1_b32 s{sN}, 3
    s_cselect_b32 s{sT1}, s87, s86
    s_mov_b32 s{SWO+2}, 819200
    s_mov_b32 s{SWO+3}, 0x20000
    s_mov_b32 s{SO+2}, 2621440
    s_mov_b32 s{SO+3}, 0x20000""")

_uid = [0]
def poll(a, srd, voff, soff, lo, hi, tmp, sleep=1, imm=0):
    _uid[0] += 1; u = _uid[0]
    a(f"""s_mov_b32 exec_lo, {lo}
    s_mov_b32 exec_hi, {hi}
    s_movk_i32 s59, {SPIN}
L_pl{u}:
    buffer_load_dword v{tmp}, v{voff}, s[{srd}:{srd+3}], {soff} offen offset:{imm} sc1
    s_sub_u32 s59, s59, 1
    s_cbranch_scc1 L_pd{u}
    s_waitcnt vmcnt(0)
    v_cmp_eq_u32 vcc, 0, v{tmp}
    s_cbranch_vccz L_pd{u}
    s_mov_b64 exec, vcc
    s_sleep {sleep}
    s_branch L_pl{u}
L_pd{u}:
    s_mov_b64 exec, -1""")

def wait_ready(a, tmp):
    a(f"""s_load_dwordx2 s[{SAUX}:{SAUX+1}], s[0:1], 80
    s_mov_b32 s{SAUX+2}, 256
    v_mov_b32 v{tmp+1}, 0
    s_waitcnt lgkmcnt(0)""")
    poll(a, SAUX, tmp+1, "0", 1, 0, tmp, sleep=4, imm=128)

def wo_setup(a):
    for i in range(5):
        a(f"""v_add_u32 v3, {64*i}, v0
        v_mul_u32_u24 v4, 6554, v3
        v_lshrrev_b32 v4, 16, v4
        v_mul_u32_u24 v5, 1120, v4
        v_lshl_add_u32 v5, v3, 4, v5
        v_bfe_u32 v6, v4, 2, 1
        v_bfe_u32 v4, v4, 3, 1
        v_sub_u32 v4, v6, v4
        v_mul_i32_i24 v4, {4*1280}, v4
        v_add_u32 v{26+i}, v5, v4""")
    a(f"""s_sub_u32 s27, s{sWAVE}, 4
    s_mul_i32 s38, s27, {32*1280}
    s_mul_i32 s28, s{sCB}, 160
    s_add_u32 s38, s38, s28
    s_mul_i32 s39, s27, 5120""")
def wo_issue(a):
    a("s_mov_b32 m0, s39\ns_add_u32 s39, s39, 20480")
    for i in range(5):
        a(f"buffer_load_dwordx4 v{26+i}, s[{SWO}:{SWO+3}], s38 offen lds")
        a("s_add_u32 m0, m0, 1024" if i < 4 else f"s_add_u32 s38, s38, {128*1280}")

def touch_slot(a, u, slot, vo, srd, so, ss):
    a(f"""s_lshl_b32 s28, s{slot}, 6
    v_add_u32 v3, s28, v0
    s_cmp_ge_u32 s{slot}, 15
    s_cbranch_scc1 L_ts_x{u}
    v_mul_u32_u24 v4, 13108, v3
    v_lshrrev_b32 v4, 16, v4
    v_mul_u32_u24 v4, 640, v4
    v_lshl_add_u32 v{vo}, v3, 7, v4
    s_lshr_b32 s{so}, s{sXCD}, 2
    s_mul_i32 s{so}, s{so}, 640
    s_mov_b32 s{ss}, {64*3840}
    s_mov_b32 s{srd+2}, 2457600
    s_waitcnt lgkmcnt(0)
    s_mov_b32 s{srd}, s{SW}
    s_mov_b32 s{srd+1}, s{SW+1}
    s_branch L_ts_d{u}
L_ts_x{u}:
    v_subrev_u32 v3, 960, v3
    v_mul_u32_u24 v{vo}, 2560, v3
    s_bfe_u32 s28, s{sXCD}, 0x10001
    s_mul_i32 s28, s28, {5*STEP*2}
    s_and_b32 s29, s{sXCD}, 1
    s_add_u32 s28, s28, s29
    s_mul_i32 s{so}, s28, 1280
    s_movk_i32 s{ss}, 128
    s_mov_b32 s{srd+2}, 2621440
    s_waitcnt lgkmcnt(0)
    s_mov_b32 s{srd}, s{SX}
    s_mov_b32 s{srd+1}, s{SX+1}
L_ts_d{u}:""")
```

```python
import sys, json
from fz_common import *
import fz_a, fz_b, fz_2

def build(fn, **kw):
    cfg = dict(bars=list(range(20)), D=2, pro=2, init=1, hstart=2, wob=[17, 18], wopost=0, hint=3)
    cfg.update(kw)
    a = Asm()
    K = NAME + "_kernel"
    a(khead(K))
    a(f"""s_load_dwordx2 s[{SX}:{SX+1}], s[0:1], 0
    s_load_dwordx2 s[{SW}:{SW+1}], s[0:1], 8
    s_load_dwordx2 s[{SWS}:{SWS+1}], s[0:1], 88""")
    stamp(a, cfg, 0)
    if cfg.get("stamps"): a("s_mov_b32 s82, 0\ns_mov_b32 s83, 0")
    a(f"""s_cmp_ge_u32 s2, 256
    s_cbranch_scc1 L_end
    v_lshrrev_b32 v1, 6, v0
    v_lshlrev_b32 v2, 7, v0
    v_readfirstlane_b32 s{sWAVE}, v1
    v_and_b32 v0, 63, v0
    s_and_b32 s{sXCD}, s2, 7
    s_lshr_b32 s{sN}, s2, 3
    s_mov_b32 s{SX+2}, 2621440
    s_mov_b32 s{SX+3}, 0x20000
    s_mov_b32 s{SW+2}, 2457600
    s_mov_b32 s{SW+3}, 0x20000
    s_mov_b32 s{SWS+2}, {WSREC}
    s_mov_b32 s{SWS+3}, 0x20000
    s_mov_b32 s{SAUX+3}, 0x20000
    s_cmp_lg_u32 s{sN}, 0
    s_cbranch_scc1 L_nopf
    s_getpc_b64 s[28:29]
L_pc:
    v_cmp_gt_u32 vcc, L_code_end-L_pc, v2
    s_and_saveexec_b64 s[30:31], vcc
    s_cbranch_execz L_pfd
    global_load_dword v39, v2, s[28:29]
L_pfd:
    s_mov_b64 exec, -1
L_nopf:
    s_cmp_ge_u32 s{sN}, 12
    s_cbranch_scc1 L_a
    s_cmp_ge_u32 s{sN}, 4
    s_cbranch_scc1 L_b1""")
    fz_a.helper(a, cfg)
    a("L_a:")
    fz_a.decode(a)
    a(f"s_cmp_lt_u32 s{sWAVE}, 4\ns_cbranch_scc1 L_a_comp")
    fz_a.loaders(a, cfg)
    fz_a.compute(a, cfg)
    fz_b.b1(a, cfg)
    fz_2.p2(a, cfg)
    a("L_code_end:")
    body = fix_hazards(a.l, report=True)
    hdr = ["; @launch grid=(256,1,1) block=(512,1,1) lds=163840", '.amdgcn_target "amdgcn-amd-amdhsa--gfx950"', ".text"]
    tail = ['.section .rodata,"a"', kd(K, 256, 96)]
    open(fn, "w").write("\n".join(hdr + body + tail) + "\n")

if __name__ == "__main__":
    for arg in sys.argv[1:]:
        n, _, j = arg.partition("=")
        build(n + ".s", **(json.loads(j) if j else {}))
```

```python
from fz_common import *
WA, OW, YR = 26, 29, 28

def comp_setup(a):
    q, g = 13, 14
    a(f"""v_and_b32 v{q}, 15, v0
    v_lshrrev_b32 v{g}, 4, v0
    v_lshlrev_b32 v{WA}, 4, v0
    v_add_u32 v{WA+1}, 51200, v{WA}
    s_mul_i32 s28, s{sWAVE}, {16*OP}
    s_add_u32 s28, s28, {OB}
    v_mul_u32_u24 v6, {OP}, v{q}
    v_lshl_add_u32 v6, v{g}, 3, v6
    v_add_u32 v{OW}, s28, v6""")
    for r in range(3):
        a(f"""v_add_u32 v6, {64*r}, v0
        v_mul_u32_u24 v7, 6554, v6
        v_lshrrev_b32 v7, 16, v7
        v_add_u32 v8, v6, v7
        v_lshl_add_u32 v{30+r}, v8, 4, s28
        v_mul_u32_u24 v7, {40960-160}, v7
        v_lshl_add_u32 v{33+r}, v6, 4, v7""")
    a(f"""s_lshl_b32 s45, s{sWAVE}, 9
    s_add_u32 s45, s45, s{sT1}
    s_mul_i32 s45, s45, 1280
    s_mul_i32 s30, s{sCB}, 160
    s_add_u32 s45, s45, s30
    s_mul_i32 s44, s{sT1}, 81920
    s_mul_i32 s30, s{sWAVE}, 20480
    s_add_u32 s44, s44, s30
    s_add_u32 s44, s44, {O_OFF}            ; o base
    s_lshl_b32 s46, s{sT1}, 2
    s_add_u32 s46, s46, s{sWAVE}
    s_lshl_b32 s46, s46, 6
    s_add_u32 s46, s46, {Z_OFF}            ; z base
    s_lshl_b32 s47, s{sXCD}, 14
    s_add_u32 s47, s47, {FA_OFF}
    s_mul_i32 s30, s{sWAVE}, 5120
    s_add_u32 s30, s30, {YB}
    v_lshlrev_b32 v2, 4, v0
    v_lshlrev_b32 v3, 2, v{q}
    v_lshlrev_b32 v4, 7, v0
    v_add_u32 v{YR}, s30, v2
    v_lshrrev_b32 v6, 5, v0
    v_lshlrev_b32 v6, 9, v6
    v_lshl_add_u32 v6, v{q}, 5, v6
    v_and_b32 v7, 16, v0
    v_add_u32 v2, v6, v7
    s_lshl_b32 s30, s{sWAVE}, 2
    s_add_u32 s30, s30, {LY}
    v_mov_b32 v24, s30
    s_mov_b32 s51, s44
    s_movk_i32 s52, {SPIN}""")

VF, MF, VA, SG, SG0, YW, FV, VS, YF = 90, 60, 68, 73, 74, 75, 76, 77, 80
OF = 40
def load_setup(a):
    q, g = 13, 14
    a(f"""v_lshlrev_b32 v{FV}, 7, v0
    s_lshl_b32 s49, s{sXCD}, 13
    s_add_u32 s49, s49, {FB_OFF}
    s_lshl_b32 s56, s{sXCD}, 14
    s_add_u32 s56, s56, {FA_OFF + 96*128}
    s_mov_b32 s48, 0""")
    for i in range(3):
        a(f"""v_add_u32 v4, {64*i}, v0
        v_mul_u32_u24 v5, 13108, v4
        v_lshrrev_b32 v5, 16, v5
        v_mul_u32_u24 v5, {VJ-80}, v5
        v_lshl_add_u32 v{VS+i}, v4, 4, v5""")
    a(f"""s_sub_u32 s28, 7, s{sCB}
    s_sub_u32 s29, 32, s{sT1}
    s_and_b32 s29, s29, 31
    s_lshl_b32 s43, s29, 3
    s_add_u32 s43, s43, s28
    s_lshl_b32 s43, s43, 7
    s_add_u32 s43, s43, {V_OFF}
    s_lshl_b32 s41, s{sT1}, 3
    s_add_u32 s41, s41, s{sCB}
    s_lshl_b32 s41, s41, 7
    s_add_u32 s41, s41, {V_OFF}            ; class 1
    s_cmp_ge_u32 s{sCB}, 4
    s_cselect_b32 s28, s28, s{sCB}
    s_cselect_b32 s29, s29, s{sT1}
    s_cselect_b32 s40, 4, 0
    s_lshl_b32 s29, s29, 2
    s_add_u32 s28, s28, s29
    s_mul_i32 s28, s28, 192
    s_add_u32 s42, s28, {V_OFF + 32768}    ; class 2
    s_add_u32 s40, s40, s42
    s_add_u32 s40, s40, 80                 ; class 0
    s_lshl_b32 s28, s{sWAVE}, 2
    s_add_u32 s28, s28, {LY - 16}
    v_mov_b32 v{YF}, s28""")

def load_setup2(a):
    q, g = 13, 14
    a(f"""v_and_b32 v{q}, 15, v0
    v_lshrrev_b32 v{g}, 4, v0
    s_sub_u32 s50, s{sWAVE}, 4
    s_lshl_b32 s28, s50, 9
    s_add_u32 s28, s28, s{sT1}
    v_lshl_add_u32 v3, v{q}, 5, s28        ; t
    v_cvt_f32_u32 v4, v3
    v_mul_f32 v4, {fbits(1/2048)}, v4
    v_lshlrev_b32 v5, 2, v{g}
    v_cvt_f32_u32 v5, v5
    v_mul_f32 v5, v4, v5""")
    for ks in range(2):
        for u in range(4):
            a(f"""v_mov_b32 v6, {fbits(float(16*ks+u))}
            v_fma_f32 v6, v4, v6, v5
            v_cos_f32 v7, v6
            v_sin_f32 v6, v6
            v_cvt_pk_bf16_f32 v{MF+4*ks+u}, v7, -v6""")
    a(f"""v_lshlrev_b32 v6, 31, v0
    v_xor_b32 v6, 0x3f803f80, v6
    v_cmp_gt_u32 vcc, 16, v0
    s_cmp_ge_u32 s{sCB}, 4
    s_cselect_b32 s30, 0x55555555, 0
    v_cndmask_b32 v{MF}, v{MF}, v6, vcc
    s_or_b32 s30, s30, 0x88888888
    s_mov_b32 s31, s30
    s_mov_b32 s28, {VB}
    v_and_b32 v6, 3, v0
    v_mul_u32_u24 v6, {VP}, v6
    v_mul_u32_u24 v7, 320, v{g}
    v_add3_u32 v6, v6, v7, s28
    v_and_b32 v7, 12, v0
    v_sub_u32 v8, 76, v7
    v_cndmask_b32 v7, v7, v8, s[30:31]
    v_add_u32 v{VA}, v6, v7
    v_cndmask_b32 v7, 16, -16, s[30:31]""")
    for t in range(1, 5): a(f"v_add_u32 v{VA+t}, v{VA+t-1}, v7")
    a(f"""v_bfrev_b32 v7, 1
    v_cndmask_b32 v{SG}, 0, v7, s[30:31]
    s_cmp_eq_u32 s{sT1}, 0
    s_cselect_b32 s28, 0xffff0000, -1
    s_and_b32 s30, s30, s28
    v_cndmask_b32 v{SG0}, 0, v7, s[30:31]
    s_mul_i32 s28, s50, 5120
    s_add_u32 s28, s28, {YB}
    v_lshl_add_u32 v{YW}, v0, 4, s28""")

def v_dma(a):
    for c in range(4):
        for i in range(3):
            a(f"s_mov_b32 m0, {VB + c*VP + 1024*i}")
            a("s_mov_b32 exec_hi, 0" if i == 2 else ("s_mov_b32 exec_hi, -1" if i == 0 else "s_nop 0"))
            a(f"buffer_load_dwordx4 v{VS+i}, s[{SWS}:{SWS+3}], s{40+c} offen sc1 lds")
    a("s_mov_b32 exec_hi, -1")

_pk = [0]
def v_peek(a):
    _pk[0] += 1
    a(f"""v_mov_b32 v16, 0
    v_mov_b32 v17, 0
    s_cmp_lg_u32 s{sWAVE}, 4
    s_cbranch_scc1 L_2_pk{_pk[0]}
    buffer_load_dwordx2 v[16:17], v{FV}, s[{SWS}:{SWS+3}], s49 offen sc1
L_2_pk{_pk[0]}:""")

def v_try(a, cfg):
    if not cfg.get("vtry", 1): return
    a(f"""v_cmp_ne_u64 vcc, {s(sNC,2)}, v[16:17]
    s_cbranch_vccnz L_2_nt{_pk[0]}
    s_mov_b32 s48, 1""")
    v_dma(a)
    a(f"L_2_nt{_pk[0]}:")

def old(ks):
    o = [f"buffer_load_dwordx4 {v(OF+4*ks,4)}, v2, s[{SWS}:{SWS+3}], s44 offen offset:{1024*(ks & 3)} sc1"]
    if ks & 3 == 3 and ks < 19: o.append("s_add_u32 s44, s44, 4096")
    return o
def first(a, cfg):
    a(f"buffer_load_dword v16, v3, s[{SWS}:{SWS+3}], s46 offen sc1")
    for ks in range(cfg.get("lead", 9)): a.ext(old(ks))

def p2(a, cfg):
    a(f"""L_2_ent:
    s_cmp_lg_u32 s{sWAVE}, 7
    s_cbranch_scc1 L_2_nr""")
    a(f"""s_lshl_b32 s57, 0x01010101, s{sCB}
    v_lshlrev_b32 v4, 7, v0
    s_lshl_b32 s56, s{sXCD}, 14
    s_add_u32 s56, s56, {FA_OFF + 96*128}""")
    poll(a, 4, "s56", "s57", 0, 2, sleep=8)
    a(f"""L_2_nr:
    s_barrier
    s_cmp_lt_u32 s{sWAVE}, 4
    s_cbranch_scc1 L_2_comp""")
    wo_setup(a)
    for c in range(5): wo_issue(a)
    load_setup(a)
    a(f"""v_mov_b32 v2, {LF}
    v_mov_b32 v3, 0
    ds_write_b32 v2, v3
    ds_write_b32 v2, v3 offset:8
    ds_write_b32 v{YF}, v3
    ds_write_b32 v{YF}, v2 offset:16
    s_waitcnt vmcnt(0) lgkmcnt(0)
    s_barrier
L_2_lb:""")
    a(f"""s_cmp_lg_u32 s{sWAVE}, 4
    s_cbranch_scc1 L_2_nv
    s_cmp_lg_u32 s48, 0
    s_cbranch_scc1 L_2_nv""")
    poll(a, FV, "s49", -1, -1, 4, sleep=cfg.get("slb", 8))
    v_dma(a)
    a("s_mov_b32 s48, 2\nL_2_nv:")
    load_setup2(a)
    a(f"""v_mov_b32 v2, {LF}
    s_cmp_eq_u32 s48, 1
    s_cbranch_scc1 L_2_vr
    s_cmp_eq_u32 s48, 0
    s_cbranch_scc1 L_2_wf
    s_waitcnt vmcnt(0)
    ds_write_b32 v2, v2
    s_branch L_2_vr
L_2_wf:
    s_mov_b32 s59, {1 << 17}
L_2_wf2:
    ds_read_b32 v3, v2
    s_sub_u32 s59, s59, 1
    s_cbranch_scc1 L_2_vr
    s_waitcnt lgkmcnt(0)
    v_cmp_eq_u32 vcc, 0, v3
    s_cbranch_vccz L_2_vr
    s_sleep 2
    s_branch L_2_wf2
L_2_vr:
    s_waitcnt lgkmcnt(0)""")
    AB = 132
    if cfg.get("stw"): stamp(a, cfg, 9); a("s_waitcnt lgkmcnt(0)")
    mm = lambda t: [f"v_mfma_f32_16x16x32_bf16 {v(AB+4*t,4)}, {v(VF+8*t+4*ks,4)}, {v(MF+4*ks,4)}, {v(AB+4*t,4) if ks else 0}" for ks in range(2)]
    for t in range(6):
        if t < 5:
            for ks in range(2):
                for u in range(4):
                    a(f"ds_read_b32 v{VF+8*t+4*ks+u}, v{VA+t} offset:{(16*ks+u)*80}")
        if t:
            k = t - 1
            a(f"s_waitcnt lgkmcnt({8 if t < 5 else 0})")
            for i in range(8): a(f"v_xor_b32 v{VF+8*k+i}, v{SG if i else SG0}, v{VF+8*k+i}")
            a.ext(mm(k))
    wait_lw(a, 4)
    for t in range(5): a(f"ds_write_b128 v{YW}, {v(AB+4*t,4)} offset:{1024*t}")
    if cfg.get("stw"): stamp(a, cfg, 10)
    a(f"ds_write_b32 v{YF}, v{YF}\ns_waitcnt lgkmcnt(0)")
    if cfg.get("stw"):
        a(f"s_cmp_lg_u32 s{sWAVE}, {cfg['stw']}\ns_cbranch_scc1 L_end"); stamp_out(a, cfg)
    a("L_end:\ns_endpgm")
    NB = 4
    OF, WF, AA, AB = 40, (120, 140, 200, 220), 160, 180
    LEAD = cfg.get("lead", 9)
    a("L_2_comp:")
    a(f"v_mov_b32 v20, s{sNC}\nv_mov_b32 v21, s{sNC+1}")
    comp_setup(a)
    stamp(a, cfg, 6)
    a("s_barrier")
    a(f"s_cmp_lg_u32 s{sWAVE}, 0\ns_cbranch_scc1 L_2_go")
    poll(a, 4, "s47", 1, 0, 22, sleep=cfg.get("slp", 4), tag="v[20:21]")
    a("L_2_go:")
    def reads(st):
        f = WF[st % NB]
        return [f"ds_read_b128 {v(f+4*t,4)}, v{WA + st//10} offset:{(st % 10)*5120 + 1024*t}" for t in range(5)]
    def mfmas(st):
        f = WF[st % NB]
        return [f"v_mfma_f32_16x16x32_bf16 {v(AA+4*t,4)}, {v(f+4*t,4)}, {v(OF+4*st,4)}, {v(AA+4*t,4) if st else 0}" for t in range(5)]
    poll80(a, cfg, False)
    stamp(a, cfg, 8)
    a("L_2_st:")
    first(a, cfg)
    wait_lw(a, 6)
    stamp(a, cfg, 7)
    a.ext(reads(0) + reads(1) + reads(2))
    sig = ["v_lshlrev_b32 v18, 16, v16", f"v_mul_f32 v18, {fbits(-1.4426950408889634)}, v18", "v_exp_f32 v18, v18", "v_add_f32 v18, 1.0, v18", "v_rcp_f32 v18, v18"]
    for st in range(20):
        nxt = st + LEAD
        out = LEAD - 1 if nxt < 20 else 19 - st
        lg = 0 if st == 0 else (10 if st < 18 else (11, 6)[st-18])
        a(f"s_waitcnt vmcnt({out}) lgkmcnt({lg})")
        r = OF + 4*st
        first_src = "v16" if st == 0 else (f"v{r}" if st % 4 == 0 else "v5")
        ck = [f"v_max3_u32 v5, {first_src}, v{r}, v{r+1}", f"v_max3_u32 v5, v5, v{r+2}, v{r+3}"]
        rr = reads(st+3) if st < 17 else []
        yb = ["ds_read_b32 v25, v24"] + [f"ds_read_b128 {v(AB+4*t,4)}, v{YR} offset:{1024*t}" for t in range(5)]
        if st == 17: rr = yb
        ex = ck + (old(nxt) if nxt < 20 else []) + ([sig[st-12]] if 12 <= st < 17 else [])
        fill = []
        for i in range(6): fill += rr[i:i+1] + ex[i:i+1]
        a.ext(interleave(mfmas(st), fill, per=2))
        if st % 4 == 3: a("v_cmp_eq_u32 vcc, -1, v5\ns_cbranch_vccnz L_2_redo")
    a("L_2_fin:")
    stamp(a, cfg, 9)
    a(f"""s_mov_b32 s59, {1 << 17}
L_2_yw:
    s_waitcnt lgkmcnt(0)
    v_cmp_eq_u32 vcc, 0, v25
    s_cbranch_vccnz L_2_ys
L_2_yo:""")
    for t in range(5):
        for u in (0, 2):
            a(f"v_pk_add_f32 {v(AA+4*t+u,2)}, {v(AA+4*t+u,2)}, {v(AB+4*t+u,2)} neg_lo:[0,1] neg_hi:[0,1]")
        for u in (0, 2):
            a(f"v_pk_fma_f32 {v(AA+4*t+u,2)}, {v(AA+4*t+u,2)}, v[18:19], {v(AB+4*t+u,2)} op_sel_hi:[1,0,1]")
        a(f"v_cvt_pk_bf16_f32 v{AB+4*t}, v{AA+4*t}, v{AA+4*t+1}\nv_cvt_pk_bf16_f32 v{AB+4*t+1}, v{AA+4*t+2}, v{AA+4*t+3}")
        a(f"ds_write_b64 v{OW}, {v(AB+4*t,2)} offset:{32*t}")
    a(f"""ds_read_b128 v[40:43], v30
    ds_read_b128 v[44:47], v31
    ds_read_b128 v[48:51], v32
    s_waitcnt lgkmcnt(2)
    buffer_store_dwordx4 v[40:43], v33, s[{SO}:{SO+3}], s45 offen
    s_waitcnt lgkmcnt(1)
    buffer_store_dwordx4 v[44:47], v34, s[{SO}:{SO+3}], s45 offen
    s_mov_b32 exec_hi, 0
    s_waitcnt lgkmcnt(0)
    buffer_store_dwordx4 v[48:51], v35, s[{SO}:{SO+3}], s45 offen""")
    if cfg.get("stamps") and not cfg.get("stw"):
        a("s_mov_b64 exec, -1\ns_waitcnt vmcnt(0)\ns_barrier"); stamp(a, cfg, 10)
        a(f"s_cmp_lg_u32 s{sWAVE}, 0\ns_cbranch_scc1 L_end"); stamp_out(a, cfg)
    a("s_endpgm")
    a(f"""L_2_redo:
    s_waitcnt vmcnt(0) lgkmcnt(0)
    s_mov_b32 s44, s51
    s_sub_u32 s52, s52, 1
    s_cbranch_scc1 L_2_fin""")
    if cfg.get("stamps") and not cfg.get("stw"): a("s_add_u32 s82, s82, 1")
    a("s_branch L_2_st")
    a("""L_2_ys:
    s_sub_u32 s59, s59, 1
    s_cbranch_scc1 L_2_yo
    s_sleep 1""")
    a.ext(yb)
    a("s_branch L_2_yw")
```

```python
from fz_common import *
sB, sPAR, sGAM, sP0 = 23, 24, 25, 26
OSR, GO, ZR, ZO = 11, 12, 36, 37

def decode(a):
    a(f"""s_sub_u32 s27, s{sN}, 12
    s_lshr_b32 s28, s27, 2
    s_and_b32 s{sPAR}, s{sXCD}, 1
    s_bfe_u32 s29, s{sXCD}, 0x10001
    s_mul_i32 s29, s29, 5
    s_add_u32 s{sB}, s29, s28
    s_mul_i32 s{sP0}, s{sB}, {STEP}
    s_and_b32 s27, s27, 3
    s_and_b32 s29, s{sXCD}, 4
    s_add_u32 s{sGAM}, s29, s27""")

def store_addr(a, t):
    a(f"""v_bfe_u32 v{t}, v0, 1, 3
    v_lshrrev_b32 v{t+1}, 4, v0
    s_sub_u32 s29, s{sWAVE}, 4
    s_lshl_b32 s27, s29, 2
    v_add_u32 v{t+1}, s27, v{t+1}              ; q
    s_xor_b32 s28, s29, 3
    s_lshl_b32 s28, s28, 3
    s_add_u32 s28, s28, {MS}
    v_lshl_add_u32 v{t+1}, v{t}, 4, v{t+1}     ; p
    v_lshl_add_u32 v{ZR}, v{t+1}, 5, s28
    v_and_b32 v{t+2}, 1, v0
    v_mul_u32_u24 v{OSR}, {OP}, v{t+1}
    v_lshl_add_u32 v{OSR}, v{t+2}, 4, v{OSR}
    v_add_u32 v{OSR}, {OS}, v{OSR}
    s_cmp_eq_u32 s{sB}, 0
    s_cselect_b32 s28, 0, 7
    v_cmp_le_u32 vcc, s28, v{t+1}
    v_cmp_gt_u32 s[30:31], 7, v{t}
    v_add_u32 v{t+1}, s{sP0}, v{t+1}           ; P
    s_and_b64 vcc, vcc, s[30:31]
    s_movk_i32 s28, 1024
    v_cmp_gt_u32 s[30:31], s28, v{t+1}
    v_lshl_add_u32 v{t+1}, v{t+1}, 1, s{sPAR}  ; t
    s_and_b64 vcc, vcc, s[30:31]
    v_and_b32 v{t}, 31, v{t+1}
    v_mul_u32_u24 v{GO}, 81920, v{t}
    v_lshrrev_b32 v{ZO}, 5, v{t+1}
    v_lshl_add_u32 v{ZO}, v{t}, 6, v{ZO}
    v_lshlrev_b32 v{ZO}, 2, v{ZO}
    v_lshrrev_b32 v{t}, 9, v{t+1}
    v_mul_u32_u24 v{t}, 20480, v{t}
    v_bfe_u32 v{t+1}, v{t+1}, 5, 4
    v_lshl_add_u32 v{t}, v{t+1}, 5, v{t}
    v_lshl_add_u32 v{t}, v{t+2}, 4, v{t}
    v_add_u32 v{GO}, v{GO}, v{t}
    v_mov_b32 v{t}, {BIG}
    v_cndmask_b32 v{GO}, v{t}, v{GO}, vcc
    s_cmp_eq_u32 s{sGAM}, 0
    s_cselect_b32 s30, 0x55555555, 0
    s_mov_b32 s31, s30
    s_and_b64 vcc, vcc, s[30:31]
    s_mov_b32 s54, {Z_OFF}
    v_cndmask_b32 v{ZO}, v{t}, v{ZO}, vcc
    s_lshl_b32 s27, s{sB}, 3
    s_add_u32 s27, s27, s{sGAM}
    s_lshl_b32 s28, s{sPAR}, 7
    s_add_u32 s27, s27, s28
    s_lshl_b32 s27, s27, 7
    s_add_u32 s55, s27, {FA_OFF}
    s_cmp_eq_u32 s{sWAVE}, 7
    s_cselect_b64 vcc, 15, 0
    v_lshlrev_b32 v38, 15, v0
    v_cndmask_b32 v38, v{t}, v38, vcc
    s_mul_i32 s53, s{sGAM}, 2560
    s_add_u32 s53, s53, {O_OFF}""")

def o_stores(a, data, zdata, u):
    for r in range(5):
        if data(r) != 80:
            a(f"s_waitcnt lgkmcnt({5-r})")
            for k in range(4): a(f"v_min_u32 v{data(r)+k}, -2, v{data(r)+k}")
        a(f"buffer_store_dwordx4 {v(data(r),4)}, v{GO}, s[{SWS}:{SWS+3}], s53 offen offset:{512*r} sc1")
    a(f"""s_waitcnt lgkmcnt(0)
    buffer_store_dword v{zdata}, v{ZO}, s[{SWS}:{SWS+3}], s54 offen sc1""")

def final_store(a, cfg):
    for r in range(5): a(f"ds_read_b128 {v(40+4*r,4)}, v{OSR} offset:{32*r}")
    a(f"ds_read_b32 v19, v{ZR}")
    o_stores(a, lambda r: 40 + 4*r, 19, "f")

def gate_loads(a, cfg):
    a(f"""s_cmp_eq_u32 s{sGAM}, 0
    s_cselect_b32 s{SAUX+2}, 1280, 0
    s_lshl_b32 s27, s{sWAVE}, 7
    v_lshl_add_u32 v242, v0, 1, s27
    s_waitcnt lgkmcnt(0)""")
    for i in range(3): a(f"buffer_load_ushort v{248+2*i}, v242, s[{SAUX}:{SAUX+3}], 0 offen offset:{512*i}")

def compute(a, cfg):
    bars = cfg["bars"]
    XA0, XA1, WM, WX, MSW, MSR, OSW = 2, 3, 4, 6, 8, 9, 10
    KTR, INC, INCW = 13, 14, 15
    CC, CP, MP, MC, MG0, ONES = 16, 20, 24, 25, 28, 32
    FR = (40, 84); ACC = 128; T = 240
    a("L_a_comp:")
    q, g, t0, t1 = 240, 241, 242, 243
    for i in range(3): a(f"v_mov_b32 v{249+2*i}, 0")
    a(f"""s_mov_b32 s28, {MS}
    v_lshl_add_u32 v247, v{t0}, 2, s28""")
    a(f"""v_and_b32 v{q}, 15, v0
    v_lshrrev_b32 v{g}, 4, v0
    v_lshrrev_b32 v{t0}, 1, v{q}
    v_xor_b32 v{t0}, v{t0}, v{g}
    v_lshlrev_b32 v{t0}, 4, v{t0}
    v_lshl_add_u32 v{XA0}, v{q}, 7, v{t0}
    v_add_u32 v{XA0}, {XB}, v{XA0}
    v_xor_b32 v{XA1}, 64, v{XA0}
    v_lshrrev_b32 v{t0}, 5, v0
    v_bfe_u32 v{t1}, v0, 2, 3
    v_lshl_add_u32 v{t0}, v{t0}, 4, v{t1}      ; sigma0
    v_mul_u32_u24 v{t0}, 480, v{t0}
    s_mul_i32 s27, s{sWAVE}, 40
    s_add_u32 s28, s27, {WB}
    v_add_u32 v{t0}, s28, v{t0}
    v_and_b32 v{t1}, 3, v0
    v_lshl_add_u32 v{WM}, v{t1}, 3, v{t0}
    v_add_u32 v{WM+1}, {3*WS_}, v{WM}
    v_cmp_eq_u32 vcc, 3, v{t1}
    v_mul_u32_u24 v{t1}, 160, v{t1}
    v_add3_u32 v{WX}, v{t0}, v{t1}, 32
    v_add_u32 v{WX+1}, 3840, v{WX}
    v_bfe_u32 v{t0}, v0, 2, 2
    v_lshl_add_u32 v{t0}, v{g}, 3, v{t0}
    v_lshlrev_b32 v{t0}, 3, v{t0}
    v_add_u32 v{t0}, {MS}, v{t0}
    v_cndmask_b32 v{WX}, v{WX}, v{t0}, vcc
    v_add_u32 v{t0}, 32, v{t0}
    v_cndmask_b32 v{WX+1}, v{WX+1}, v{t0}, vcc
    v_mov_b32 v{t0}, 0x100
    v_mov_b32 v{INC}, {WS_}
    v_mov_b32 v{INCW}, {-(NW-1)*WS_}
    v_cndmask_b32 v{INC}, v{INC}, v{t0}, vcc
    v_cndmask_b32 v{INCW}, v{INCW}, v{t0}, vcc""")
    a_main = a; a = Asm()
    p2_decode(a)
    a(f"""
    s_mul_i32 s28, s{sWAVE}, {RT*512}
    s_add_u32 s28, s28, {MS}
    v_lshrrev_b32 v{t0}, 2, v{q}
    v_lshl_add_u32 v{t1}, v{q}, 5, s28
    v_xor_b32 v{MSW}, v{t0}, v{g}
    v_lshl_add_u32 v{MSW}, v{MSW}, 3, v{t1}
    v_xor_b32 v{KTR}, 1, v{t0}
    v_lshl_add_u32 v{KTR}, v{KTR}, 3, v{t1}
    v_xor_b32 v{t0}, v0, v{g}
    v_lshl_add_u32 v{MSR}, v{t0}, 3, s28
    v_mul_u32_u24 v{t0}, {OP}, v{q}
    v_lshl_add_u32 v{t0}, v{g}, 3, v{t0}
    s_add_u32 s28, s27, {OS}
    v_add_u32 v{OSW}, s28, v{t0}""")
    a(f"v_lshlrev_b32 v{t0}, 2, v{g}\nv_sub_u32 v{t0}, v{t0}, v{q}\nv_mov_b32 v30, {fbits(-1e30)}\nv_mov_b32 v31, 0")
    for r in range(4):
        a(f"""v_add_u32 v{t1}, {r+7}, v{t0}
        v_cmp_gt_u32 vcc, 8, v{t1}
        v_cmp_le_i32 s[30:31], 16, v{t1}
        v_mov_b32 v{ONES+r}, 0x3f803f80
        v_cndmask_b32 v{CC+r}, v30, v31, vcc
        v_cndmask_b32 v{CP+r}, v30, v31, s[30:31]""")
    a(f"""v_cndmask_b32 v{MP}, 0, -1, s[30:31]
    v_cmp_gt_u32 vcc, 16, v0
    v_not_b32 v{MC}, v{MP}
    v_cndmask_b32 v{MG0}, 0, -1, vcc""")
    HA, TG, FP = 38, 30, 29
    a(f"""s_lshl_b32 s27, s{sB}, 3
    s_add_u32 s27, s27, s{sGAM}
    s_lshl_b32 s28, s{sPAR}, 7
    s_add_u32 s27, s27, s28
    s_lshl_b32 s27, s27, 7
    s_add_u32 s35, s27, {FA_OFF}
    s_cmp_eq_u32 s{sWAVE}, 0
    s_cselect_b64 vcc, 15, 0
    v_lshlrev_b32 v{HA}, 15, v0
    v_mov_b32 v{t0}, {BIG}
    v_cndmask_b32 v{HA}, v{t0}, v{HA}, vcc
    v_mov_b32 v{TG}, {LN}
""")
    def hint(k):
        if cfg["hint"] == k: a(f"buffer_store_dwordx2 {v(TG,2)}, v{HA}, s[{SWS}:{SWS+3}], s35 offen sc1")
    c = 20**-0.5 * 1.4426950408889634
    a(f"s_mov_b32 s32, {fbits(c)}\ns_mov_b32 s33, {fbits(c)}\ns_mov_b32 s34, {fbits(-c)}")
    a_main.ext([x for x in a.l if x.startswith("s_load")])
    later = [x for x in a.l if not x.startswith((";", "s_load"))]; a = a_main
    if cfg["cl"] == 0: a.ext(later); later = []
    a("s_waitcnt vmcnt(0)")
    for i in range(3): a(f"ds_write_b64 v247, {v(248+2*i,2)} offset:{2048*i}")
    a("s_waitcnt lgkmcnt(0)")

    def reads(st):
        f = FR[st & 1]; out = []
        sl = st % NW; hi = sl // 3; off = (sl % 3) * WS_
        for j, so in enumerate((0, 160, None, 320)):
            for h in range(2):
                if so is None:
                    out.append(f"ds_read_b64_tr_b16 {v(f+28+4*j+2*h, 2)}, v{WX+h}")
                else:
                    out.append(f"ds_read_b64_tr_b16 {v(f+28+4*j+2*h, 2)}, v{WM+hi} offset:{off + h*3840 + so}")
        xs = ((st >> 1) % NX) * XS
        xr = [f"ds_read_b128 {v(f+4*i, 4)}, v{XA0 + (st & 1)} offset:{xs + i*2048}" for i in range(RT)]
        inc = INCW if sl == NW-1 else INC
        up = [f"v_add_u32{'_e64' if cfg.get('e64', 1) else ''} v{WX+h}, v{WX+h}, v{inc}" for h in range(2)] if st < 19 else []
        if "noup" in cfg.get("exp", ""): up = []
        if "nord" in cfg.get("exp", ""): return up
        return xr[:1] + out + xr[1:] + up
    def mf(st, i):
        f = FR[st & 1]; out = []
        for j in (2, 0, 1, 3):
            d = v(ACC + 16*i + 4*j, 4); cc = d if st else "0"
            x, w = v(f+4*i, 4), v(f+28+4*j, 4)
            out.append(f"v_mfma_f32_16x16x32_bf16 {d}, {x}, {w}, {cc}" if j == 3 else f"v_mfma_f32_16x16x32_bf16 {d}, {w}, {x}, {cc}")
        return out
    a("s_barrier"); stamp(a, cfg, 1)
    a.ext(reads(0))
    a(".p2align 3")
    for st in range(18):
        a("s_waitcnt lgkmcnt(0)")
        a("s_barrier" if st + 1 in bars else "s_nop 0")
        if st == cfg.get("cst", [99, 9])[1]: stamp(a, cfg, 2)
        if st == cfg.get("cst", [99, 9])[0]: stamp(a, cfg, 1)
        ex = [f"ds_read_b64 {v(TG,2)}, v{TG}"] if st == 13 else []
        ex += later[:cfg["cl"]]; later = later[cfg["cl"]:]
        assert st < 12 or not later
        a.ext(interleave(sum((mf(st, i) for i in range(RT)), []), reads(st+1) + ex))
    VPK, VT = FR[1], FR[0]
    A = lambda i, j, r=0: ACC + 16*i + 4*j + r
    cv = lambda d, s0: f"v_cvt_pk_bf16_f32 v{d}, v{s0}, v{s0+1}"
    def pack(i):
        o = [cv(A(i,2,0), A(i,2,0)), cv(A(i,2,1), A(i,2,2)),
             f"ds_write_b64 v{MSW}, {v(A(i,2),2)} offset:{512*i}",
             cv(A(i,0,0), A(i,0,0)), cv(A(i,0,1), A(i,0,2)),
             cv(A(i,1,0), A(i,1,0)), cv(A(i,1,1), A(i,1,2)),
             f"ds_read_b64 {v(A(i,1,2),2)}, v{KTR} offset:{512*i}",
             f"v_and_b32 v{A(i,0,2)}, v{MG0}, v{A(i,2,0)}", f"v_and_b32 v{A(i,0,3)}, v{MG0}, v{A(i,2,1)}",
             f"ds_read_b64_tr_b16 {v(VT+2+2*i, 2)}, v{MSR} offset:{512*i}",
             cv(VPK+2+2*i, A(i,3,0)), cv(VPK+3+2*i, A(i,3,2))]
        if i == 0: o += [f"v_mov_b32 v{r}, 0" for r in (VPK, VPK+1, VT, VT+1)]
        return o
    def smf(i):
        o = [f"v_mfma_f32_16x16x32_bf16 {v(A(i,2),4)}, {v(A(i,1),4)}, {v(A(i,0),4)}, {v(CC,4)}"]
        if i: o.append(f"v_mfma_f32_16x16x32_bf16 {v(A(i,3),4)}, {v(A(i-1,1),4)}, {v(A(i,0),4)}, {v(CP,4)}")
        return o
    def lmax(i):
        o = [f"v_max_f32 v{A(i,2,r)}, v{A(i,2,r)}, v{A(i,3,r)}" for r in range(4)] if i else []
        return o + [f"v_max3_f32 v{T+2*i}, v{A(i,2,0)}, v{A(i,2,1)}, v{A(i,2,2)}", f"v_max_f32 v{T+2*i}, v{T+2*i}, v{A(i,2,3)}"]
    a("s_waitcnt lgkmcnt(0)")
    a("s_barrier" if 19 in bars else "s_nop 0")
    a.ext(interleave(mf(18,0) + mf(18,1) + mf(18,2), reads(19), per=2))
    a("s_waitcnt lgkmcnt(0)\ns_barrier")
    a.ext(mf(19,0))
    for k in range(4):
        mm = mf(18, 3+k) + mf(19, 1+k)
        a.ext(interleave(mm, pack(k), per=2, start=1))
    a.ext(interleave(mf(19,5) + mf(19,6), pack(4), per=2, start=1))
    stamp(a, cfg, 3)
    hint(0)
    a("s_waitcnt lgkmcnt(3)" if not cfg.get("stamps") else "s_waitcnt lgkmcnt(0)")
    a.ext(interleave(smf(0) + smf(1) + smf(2) + smf(3), pack(5), per=2))
    a("s_waitcnt lgkmcnt(3)" if not cfg.get("stamps") else "s_waitcnt lgkmcnt(0)")
    a.ext(interleave(smf(4), pack(6), per=3))
    a.ext(lmax(0) + lmax(1))
    a("s_waitcnt lgkmcnt(0)")
    a.ext(interleave(smf(5) + smf(6), lmax(2) + lmax(3), per=3))
    a.ext(lmax(4) + lmax(5) + lmax(6))
    hint(1)
    m = lambda i: T + 2*i
    a(f"v_mov_b32 v{m(7)}, v{m(6)}")
    for i in (0, 2, 4, 6): a(f"v_permlane16_swap_b32 v{m(i)}, v{m(i+1)}")
    for i in (0, 2, 4, 6): a(f"v_max_f32 v{m(i)}, v{m(i)}, v{m(i+1)}")
    for i in (0, 4): a(f"v_permlane32_swap_b32 v{m(i)}, v{m(i+2)}")
    for i in (0, 4): a(f"v_max_f32 v{m(i)}, v{m(i)}, v{m(i+2)}")
    for i in (0, 4): a(f"v_mul_f32 v{m(i+2)}, s34, v{m(i)}\nv_mul_f32 v{m(i)}, s34, v{m(i)}")
    for i in (0, 4): a(f"v_permlane32_swap_b32 v{m(i)}, v{m(i+2)}")
    for i in (0, 2, 4, 6): a(f"v_mov_b32 v{m(i+1)}, v{m(i)}")
    for i in (0, 2, 4, 6): a(f"v_permlane16_swap_b32 v{m(i)}, v{m(i+1)}")
    for i in range(RT):
        for u in range(2):
            a(f"v_pk_fma_f32 {v(A(i,2,2*u),2)}, {v(A(i,2,2*u),2)}, s[32:33], {v(m(i),2)} op_sel_hi:[1,1,0]")
    def prob(i):
        return [f"v_exp_f32 v{A(i,2,r)}, v{A(i,2,r)}" for r in range(4)] + [cv(m(i), A(i,2,0)), cv(m(i)+1, A(i,2,2))] + \
               [f"v_and_b32 v{A(i,0,u)}, v{MP}, v{m(i)+u}" for u in range(2)] + [f"v_and_b32 v{A(i,0,2+u)}, v{MC}, v{m(i)+u}" for u in range(2)]
    def pv(i):
        return [f"v_mfma_f32_16x16x32_bf16 {v(A(i,1),4)}, {v(ONES,4)}, {v(A(i,0),4)}, 0",
                f"v_mfma_f32_16x16x32_bf16 {v(A(i,2),4)}, {v(VPK+2*i,4)}, {v(A(i,0),4)}, 0",
                f"v_mfma_f32_16x16x32_bf16 {v(A(i,3),4)}, {v(VT+2*i,4)}, {v(A(i,0),4)}, 0"]
    hint(2)
    a.ext(prob(0))
    for i in range(1, RT):
        if i == 4: hint(3)
        p, w = prob(i), pv(i-1)
        a.ext(p[:2] + w[:1] + p[2:4] + w[1:2] + p[4:7] + w[2:] + p[7:])
    rc = lambda k: f"v_rcp_f32 v{m(k)}, v{A(k,1)}"
    w = pv(RT-1)
    a.ext([rc(0), rc(1)] + w[:1] + [rc(2)] + w[1:2] + [rc(3)] + w[2:] + [rc(4), rc(5)])
    def fin(k):
        for u in range(4):
            a(f"v_pk_mul_f32 {v(A(k,2,2*u),2)}, {v(A(k,2,2*u),2)}, {v(m(k),2)} op_sel_hi:[1,0]")
        a(cv(A(k,0,0), A(k,2,0))); a(cv(A(k,0,1), A(k,2,2)))
        a(f"ds_write_b64 v{OSW}, {v(A(k,0),2)} offset:{16*OP*k}")
        a(cv(A(k,0,2), A(k,3,0))); a(cv(A(k,0,3), A(k,3,2)))
    hint(4)
    fin(0); a(rc(6))
    for k in range(1, RT): fin(k)
    a("s_mov_b32 exec_lo, 0\ns_mov_b32 exec_hi, 0xffff")
    for k in range(RT): a(f"ds_write_b64 v{OSW}, {v(A(k,0,2),2)} offset:{16*OP*k + 16}")
    a("s_mov_b64 exec, -1")
    hint(5)
    stamp(a, cfg, 4)
    a("s_waitcnt lgkmcnt(0)")
    a("s_barrier")
    stamp(a, cfg, 6)
    if cfg.get("stopf"):
        a(f"s_cmp_lg_u32 s{sWAVE}, 0\ns_cbranch_scc1 L_end"); stamp_out(a, cfg); a("s_endpgm")
    hint(6)
    a(f"v_mov_b32 v20, v{TG}\nv_mov_b32 v21, v{TG+1}")
    import fz_2
    fz_2.comp_setup(a)
    stamp(a, cfg, 7)
    a("s_branch L_2_go")

def loader_fin(a, cfg):
    import fz_2
    a(f"""L_a_fin:
    v_mov_b32 v2, {LF}
    v_mov_b32 v4, 0
    ds_write_b32 v{fz_2.YF}, v4
    ds_write_b32 v{fz_2.YF}, v4 offset:16
    ds_write_b32 v2, v4
    ds_write_b32 v2, v4 offset:8
    s_waitcnt lgkmcnt(0)
    s_barrier""")
    if cfg.get("stopf"): a("s_endpgm")
    final_store(a, cfg)
    a(f"""s_waitcnt vmcnt(6)
    s_cmp_eq_u32 s48, 0
    s_cbranch_scc1 L_a_nlf
    ds_write_b32 v2, v2
L_a_nlf:""")
    wo_put(a)
    a(f"ds_write_b32 v{fz_2.YF}, v2 offset:16\ns_branch L_2_lb")

def wissue(a, st, pre=None):
    a(f"s_add_u32 m0, s37, {(st % NW) * WS_}")
    for i in range(5):
        if pre: pre(i)
        a(f"buffer_load_dwordx4 v{20+i}, s[{SW}:{SW+3}], s36 offen lds")
        a("s_add_u32 m0, m0, 1024" if i < 4 else f"s_add_u32 s36, s36, {32*3840}")
def xissue(a, c):
    a(f"s_mov_b32 m0, {XB + (c % NX)*XS}\ns_add_u32 s37, s36, {128*c}")
    for i in range(2*RT):
        a(f"buffer_load_dwordx4 v{20 + (i & 1)}, s[{SX}:{SX+3}], s37 offen lds")
        if i < 2*RT-1: a("s_add_u32 m0, m0, 1024\ns_add_u32 s37, s37, 20480")

def xissue_h(a, u):
    c, hf = u >> 1, u & 1
    a(f"s_mov_b32 m0, {XB + (c % NX)*XS + hf*RT*1024}\ns_add_u32 s37, s36, {128*c + hf*RT*20480}")
    for i in range(hf*RT, hf*RT + RT):
        a(f"buffer_load_dwordx4 v{20 + (i & 1)}, s[{SX}:{SX+3}], s37 offen lds")
        if i < hf*RT + RT - 1: a("s_add_u32 m0, m0, 1024\ns_add_u32 s37, s37, 20480")

def loaders_head(a, cfg):
    if cfg.get("lprio"): a(f"s_setprio {cfg['lprio']}")
    a(f"""s_cmp_lg_u32 s{sWAVE}, 7
    s_cbranch_scc1 L_a_wl
    v_lshrrev_b32 v2, 3, v0
    v_and_b32 v3, 7, v0
    v_lshrrev_b32 v4, 4, v0
    v_xor_b32 v3, v3, v4
    v_mul_u32_u24 v2, 2560, v2
    v_lshl_add_u32 v20, v3, 4, v2
    v_xor_b32 v21, 64, v20
    s_lshl_b32 s36, s{sP0}, 1
    s_add_u32 s36, s36, s{sPAR}
    s_mul_i32 s36, s36, 1280
    s_mov_b32 m0, {XB}
    s_mov_b32 s37, s36
    s_movk_i32 s27, {RT}
    s_waitcnt lgkmcnt(0)""")
    if cfg.get("stw"): stamp(a, cfg, 1)
    a(f"""L_a_x0:
    buffer_load_dwordx4 v20, s[{SX}:{SX+3}], s37 offen lds
    s_add_u32 m0, m0, 1024
    s_add_u32 s37, s37, 20480
    buffer_load_dwordx4 v21, s[{SX}:{SX+3}], s37 offen lds
    s_add_u32 m0, m0, 1024
    s_add_u32 s37, s37, 20480
    s_sub_u32 s27, s27, 1
    s_cmp_lg_u32 s27, 0
    s_cbranch_scc1 L_a_x0
    s_branch L_a_xl
L_a_wl:
    s_sub_u32 s27, s{sWAVE}, 4
    s_mul_i32 s28, s27, 320
    v_add_u32 v3, s28, v0
    s_mul_i32 s36, s{sGAM}, 160
    s_mul_i32 s37, s27, 5120
    s_add_u32 s37, s37, {WB}
    s_movk_i32 s28, 2185
    s_movk_i32 s29, 6554
    s_movk_i32 s30, 1120
    s_movk_i32 s31, {4*3840}""")
    for i in range(5):
        a(f"""v_mul_u32_u24 v4, s28, v3
        v_mul_u32_u24 v5, s29, v3
        v_lshrrev_b32 v5, 16, v5
        v_mul_u32_u24 v5, s30, v5
        v_lshl_add_u32 v5, v3, 4, v5
        v_bfe_u32 v6, v4, 18, 1
        v_bfe_u32 v4, v4, 19, 1
        v_sub_u32 v4, v6, v4
        v_mad_i32_i24 v{20+i}, s31, v4, v5""")
        if i < 4: a("v_add_u32 v3, 64, v3")
    a("s_waitcnt lgkmcnt(0)")
    if cfg.get("stw"): stamp(a, cfg, 1)
    wissue(a, 0)
    a("s_branch L_a_w2")

def loaders(a, cfg):
    bars = cfg["bars"]; D = cfg["D"]
    nb = lambda st: min([b for b in bars if b > st] + [20])
    ops = []
    def run(issue, nper, per_steps, nslots, first):
        nonlocal ops
        half = first and cfg.get("xh", 1)
        ops = []; n = 20 // per_steps; issued = 0; wo = 0; hu = 2
        def go():
            nonlocal issued
            if "nodma" not in cfg.get("exp", ""): issue(a, issued)
            ops.extend([issued]*nper); issued += 1
        def goh():
            nonlocal issued, hu
            if "nodma" not in cfg.get("exp", ""): xissue_h(a, hu)
            ops.extend([hu >> 1]*RT); hu += 1; issued = hu >> 1
        ops.extend([0]*nper); issued = 1
        stamp(a, cfg, 2) if cfg.get("stw") else None
        if half:
            while hu < cfg["pro"] + 1: goh()
        else:
            while issued*per_steps < cfg["pro"]: go()
        import fz_2
        later = Asm()
        tag_ptr(later); p2_decode(later); store_addr(later, 32); wo_setup(later); fz_2.load_setup(later)
        parts = []; cur = []; L = later.l; per = len(L) // len(cfg["lsb"]) + 1
        for i, x in enumerate(L):
            cur.append(x)
            nxt = L[i+1] if i + 1 < len(L) else ""
            if len(cur) >= per and not any(t.startswith(("s_cselect", "s_addc", "s_cbranch")) for t in L[i+1:i+4]): parts.append(cur); cur = []
        parts.append(cur)
        if cfg["lsb"] == [-1]:
            for p_ in parts: a.ext(p_)
        wo_any = lambda c: wo_load(a, c)
        def rdy_check():
            if not first: return
            a(f"s_waitcnt vmcnt({len(ops) - 1 - ops.index('rdy')})\nv_cmp_ne_u64 vcc, {s(sNC,2)}, v[84:85]\ns_cmp_eq_u32 vcc_lo, 0\ns_cbranch_scc1 L_a_rdy")
            poll(a, fz_2.FV, "s56", -1, 0, 84, sleep=4)
            a("L_a_rdy:")
        for b in bars:
            if b == cfg["rdy"][1]: rdy_check()
            last = (nb(b) - 1) // per_steps
            assert issued > last
            k = max(i for i, t in enumerate(ops) if t == last)
            a(f"s_waitcnt vmcnt({len(ops) - 1 - k})")
            if cfg.get("stw") and 0 <= b - cfg.get("stb", 0) < 6: stamp(a, cfg, 3 + b - cfg.get("stb", 0))
            a("s_barrier")
            if b == 8: a("s_waitcnt lgkmcnt(0)"); tag_load(a)
            if b == 10:
                tag_check(a, 84)
                if first: a(f"v_mov_b32 v84, s{sNC}\nv_mov_b32 v85, s{sNC+1}\nv_mov_b32 v86, {LN}\nds_write_b64 v86, v[84:85]\ns_waitcnt lgkmcnt(0)")
            if first and b == cfg["rdy"][0]:
                a(f"""s_mov_b32 exec_hi, 0
                buffer_load_dwordx2 v[84:85], v{fz_2.FV}, s[{SWS}:{SWS+3}], s56 offen sc1
                s_mov_b32 exec_hi, -1"""); ops.append("rdy")
            if half:
                while hu < 20 and hu < nb(b) + D + 1 and (hu >> 1) < b//2 + nslots: goh()
            else:
                while issued < n and issued*per_steps < nb(b) + D and issued < b//per_steps + nslots: go()
            if b in cfg["lsb"]:
                a.ext(parts.pop(0) if parts else [])
                if b == cfg["lsb"][-1]:
                    for p_ in parts: a.ext(p_)
                    parts = []
            if b in cfg["wob"]:
                assert b >= cfg["rdy"][1]
                wo_any(wo); ops.extend(["wo"]*5); wo += 1
        if cfg["rdy"][1] == 20: rdy_check()
        a("s_barrier")
        if not first: fz_2.v_peek(a)
        npre = 5 - wo
        nv = min(npre, cfg["vat"])
        def lhint(k):
            if first and cfg["hint"] == 20 + k: flag_store(a, 38, "s55", 82)
        for k in range(nv): lhint(k); wo_any(wo + k)
        a(f"s_waitcnt vmcnt({5*nv})" if not first else "")
        if not first: fz_2.v_try(a, cfg)
        for k in range(nv, npre): lhint(k); wo_any(wo + k)
        lhint(npre)
        if first and cfg["hint"] == 29: a("s_waitcnt vmcnt(0)"); lhint(9)
    a("L_a_w2:")
    run(wissue, 5, 1, NW, False)
    a("s_branch L_a_fin\nL_a_xl:")
    run(xissue, 2*RT, 2, NX, True)
    loader_fin(a, cfg)

def helper(a, cfg):
    a(f"""L_h_o:
    ; re-lay wo in MFMA fragment order (5 waves, one k-step each); workgroups 0..7 also clear one replica of
    s_load_dwordx2 s[{SAUX}:{SAUX+1}], s[0:1], 80
    s_load_dwordx2 s[{SWO}:{SWO+1}], s[0:1], 16
    s_memrealtime s[34:35]
    s_mov_b32 s{SAUX+2}, 256
    s_mov_b32 s{SWO+2}, 819200
    s_mov_b32 s{SWO+3}, 0x20000""")
    p2_decode(a)
    a(f"""v_mov_b32 v3, 0
    s_cmp_ge_u32 s{sWAVE}, 5
    s_cbranch_scc1 L_h_f""")
    for i in range(5):
        a(f"""v_add_u32 v7, {64*i}, v0
        v_mul_u32_u24 v4, 6554, v7
        v_lshrrev_b32 v4, 16, v4
        v_mul_u32_u24 v5, 1120, v4
        v_lshl_add_u32 v5, v7, 4, v5
        v_bfe_u32 v6, v4, 2, 1
        v_bfe_u32 v4, v4, 3, 1
        v_sub_u32 v4, v6, v4
        v_mul_i32_i24 v4, {4*1280}, v4
        v_add_u32 v{26+i}, v5, v4""")
    a(f"""s_mul_i32 s27, s{sN}, 5
    s_add_u32 s27, s27, s{sWAVE}           ; k-step
    s_mul_i32 s38, s27, {32*1280}
    s_mul_i32 s28, s{sXCD}, 160
    s_add_u32 s38, s38, s28
    s_mul_i32 s39, s{sWAVE}, 5120
    s_mov_b32 m0, s39
    s_mul_i32 s28, s{sXCD}, 20
    s_add_u32 s28, s28, s27
    s_mul_i32 s30, s28, 5120
    s_add_u32 s30, s30, {WP_OFF}
    s_add_u32 s31, s30, 4096
    v_lshrrev_b32 v6, 5, v0
    v_bfe_u32 v7, v0, 2, 3
    v_lshl_add_u32 v6, v6, 4, v7
    v_mul_u32_u24 v6, 160, v6
    v_and_b32 v7, 3, v0
    v_lshl_add_u32 v6, v7, 3, v6
    v_add_u32 v6, s39, v6
    v_lshlrev_b32 v5, 4, v0
    s_waitcnt lgkmcnt(0)""")
    for i in range(5):
        a(f"buffer_load_dwordx4 v{26+i}, s[{SWO}:{SWO+3}], s38 offen lds")
        if i < 4: a("s_add_u32 m0, m0, 1024")
    a("s_waitcnt vmcnt(0)")
    for t in range(5):
        for h in range(2): a(f"ds_read_b64_tr_b16 {v(40+4*t+2*h,2)}, v6 offset:{h*1280 + 32*t}")
    a("s_waitcnt lgkmcnt(0)")
    for t in range(5):
        a(f"buffer_store_dwordx4 {v(40+4*t,4)}, v5, s[{SWS}:{SWS+3}], s{30 + t//4} offen offset:{1024*(t & 3)} sc1")
    a(f"""s_branch L_h_p
L_h_f:
    s_xor_b32 s27, s{sWAVE}, 7
    s_or_b32 s27, s27, s2
    s_cbranch_scc1 L_h_p
    s_waitcnt lgkmcnt(0)
    s_or_b32 s34, s34, 1
    v_mov_b32 v4, s34
    v_mov_b32 v5, s35
    s_mov_b64 exec, 1
    buffer_store_dwordx2 v[4:5], v3, s[{SAUX}:{SAUX+3}], 0 offen sc1
    s_mov_b64 exec, -1
L_h_p:
    ; write the "not yet produced" pattern over 1/32 of the hand-off buffer
    v_lshlrev_b32 v5, 4, v0
    v_mov_b32 v8, -1
    v_mov_b32 v9, -1
    v_mov_b32 v10, -1
    v_mov_b32 v11, -1
    s_lshl_b32 s30, s2, 3
    s_add_u32 s30, s30, s{sWAVE}
    s_lshl_b32 s31, s30, 5
    s_add_u32 s31, s31, {Z_OFF}
    s_mul_i32 s30, s30, 10240
    s_add_u32 s30, s30, {O_OFF}
    s_waitcnt lgkmcnt(0)""")
    for k in range(cfg.get("npoi", 10)):
        a(f"buffer_store_dwordx4 v[8:11], v5, s[{SWS}:{SWS+3}], s30 offen offset:{1024*(k & 3)} sc1")
        if k & 3 == 3: a("s_add_u32 s30, s30, 4096")
    a(f"""s_cmp_lg_u32 s{sWAVE}, 0
    s_cbranch_scc1 L_h_nz
    s_mov_b64 exec, 0xffff
    buffer_store_dwordx4 v[8:11], v5, s[{SWS}:{SWS+3}], s31 offen sc1
    s_mov_b64 exec, -1
L_h_nz:""")
    stamp(a, cfg, 4)
    a("s_waitcnt vmcnt(0)")
    tag_load(a)
    a("s_barrier")
    stamp(a, cfg, 5)
    tag_check(a, 2)
    a(f"""s_cmp_lg_u32 s{sWAVE}, 6
    s_cbranch_scc1 L_2_ent
    s_lshl_b32 s27, s2, 7
    s_add_u32 s27, s27, {FA_OFF + 96*128}
    v_lshlrev_b32 v5, 14, v0""")
    flag_store(a, 5, "s27", 2, "0xff")
    a("s_branch L_2_ent")
```

```python
from fz_common import *
UB, SB = 81920, 122880
sJ, sT, sH, sE, sBETA = 23, 24, 25, 26, 33
SBG = 40

def gen_tile(a, dst, vE, vD, tmp):
    A, B, K, th = tmp, tmp + 8, tmp + 16, tmp + 18
    for m, S in ((0, A), (1, B)):
        for j in range(4):
            if m == 0: a(f"v_mul_f32 v{th+j}, v{vE}, v{vD+j}")
            else: a(f"v_add_f32 v{th+j}, v{K+1}, v{th+j}")
        if m == 0: a(f"v_mul_f32 v{K+1}, 0x41800000, v{vE}")
        for j in range(4): a(f"v_cos_f32 v{S+j}, v{th+j}\nv_sin_f32 v{S+4+j}, v{th+j}")
    a(f"v_cos_f32 v{K}, v{K+1}")
    def pack(m, S):
        d = dst + 4*(m >> 1) + 2*(m & 1)
        a(f"v_cvt_pk_bf16_f32 v{d}, v{S}, v{S+1}\nv_cvt_pk_bf16_f32 v{d+1}, v{S+2}, v{S+3}")
        a(f"v_cvt_pk_bf16_f32 v{d+20}, v{S+4}, v{S+5}\nv_cvt_pk_bf16_f32 v{d+21}, v{S+6}, v{S+7}")
    pack(0, A)
    a(f"v_add_f32 v{K}, v{K}, v{K}")
    pack(1, B)
    for m in range(2, 10):
        P, C = (A, B) if m % 2 == 0 else (B, A)
        for u in range(4):
            a(f"v_pk_fma_f32 {v(P+2*u,2)}, {v(C+2*u,2)}, {v(K,2)}, {v(P+2*u,2)} op_sel_hi:[1,0,1] neg_lo:[0,0,1] neg_hi:[0,0,1]")
        pack(m, P)

_bg = [0]
def bg(a):
    _bg[0] += 1
    a(f"""s_sub_i32 s46, s46, 1
    s_cmp_lt_i32 s46, 0
    s_cbranch_scc1 L_bg{_bg[0]}
    buffer_load_dword v1, v12, s[{SBG}:{SBG+3}], s44 offen
    s_add_u32 s44, s44, s45
L_bg{_bg[0]}:""")

def b1(a, cfg):
    MAT = 40
    GF = 120
    TMP = 216
    c0 = cfg.get("bstart", 5)
    a(f"""L_b1:
    s_sub_u32 s{sBETA}, s{sN}, 4""")
    a(f"""s_cmp_ge_u32 s{sWAVE}, 3
    s_cselect_b32 s27, {c0+1}, {c0}
    s_mul_i32 s28, s27, s45
    s_add_u32 s44, s44, s28
    s_lshl_b32 s45, s45, 1
    s_sub_u32 s46, 11, s27
    s_lshr_b32 s46, s46, 1
    s_cmp_ge_u32 s{sWAVE}, 6
    s_cselect_b32 s46, 0, s46
    s_lshr_b32 s{sJ}, s{sBETA}, 1
    s_lshl_b32 s{sJ}, s{sJ}, 3
    s_add_u32 s{sJ}, s{sJ}, s{sXCD}
    s_and_b32 s{sE}, s{sBETA}, 1
    s_and_b32 s{sT}, s{sWAVE}, 3
    s_lshr_b32 s{sH}, s{sWAVE}, 2
    s_sub_u32 s27, 2048, s{sJ}
    s_cmp_eq_u32 s{sJ}, 0
    s_cselect_b32 s27, 32, s27
    s_cselect_b32 s28, 64, -64
    s_cmp_eq_u32 s{sH}, 0
    s_cselect_b32 s27, s{sJ}, s27
    s_cselect_b32 s28, 64, s28
    s_lshl_b32 s29, s{sT}, 3
    v_lshrrev_b32 v2, 3, v0
    v_add_u32 v2, s29, v2
    v_mul_i32_i24 v2, s28, v2
    v_add_u32 v2, s27, v2
    v_lshrrev_b32 v3, 4, v0
    v_lshlrev_b32 v3, 1, v3
    v_and_b32 v4, 7, v0
    v_xor_b32 v3, v3, v4
    v_mul_u32_u24 v2, 1280, v2
    v_lshl_add_u32 v15, v3, 4, v2
    s_mul_i32 s30, s{sE}, 640
    s_lshl_b32 s31, s{sWAVE}, 10
    s_lshl_b32 s29, s30, 6
    s_add_u32 m0, s29, s31""")
    nx = [0]
    def xdma(n):
        for _ in range(n):
            a(f"buffer_load_dwordx4 v15, s[{SX}:{SX+3}], s30 offen lds")
            nx[0] += 1
            if nx[0] == 5:
                a(f"s_xor_b32 s30, s{sE}, 1\ns_mul_i32 s30, s30, 640\ns_lshl_b32 s29, s30, 6\ns_add_u32 m0, s29, s31")
            else:
                a("s_add_u32 m0, m0, 8192\ns_add_u32 s30, s30, 128")
    xdma(4)
    p2_decode(a); tag_ptr(a)
    p, g = 13, 14
    a(f"""v_and_b32 v{p}, 15, v0
    v_lshrrev_b32 v{g}, 4, v0
    s_add_u32 s27, s{sT}, 1
    s_and_b32 s27, s27, 2                  ; T in (1,2)
    s_cselect_b32 s48, 0x41800000, 0
    s_cselect_b32 s49, {fbits(-0.25)}, 0
    s_mov_b32 s50, 0
    s_mov_b32 s51, 1.0
    s_mov_b32 s53, 1.0
    s_and_b32 s27, s{sT}, 1
    s_cselect_b32 s52, -1.0, 1.0
    s_mov_b32 s54, s52
    s_cmp_lg_u32 s{sJ}, 0
    s_cbranch_scc1 L_b_g
    s_and_b32 s27, s{sT}, 1
    s_cselect_b32 s49, {fbits(-0.25)}, 0
    s_cselect_b32 s53, 0, 1.0
    s_cmp_ge_u32 s{sT}, 2
    s_cselect_b32 s50, {fbits(1/64)}, 0
    s_cselect_b32 s51, 0, 1.0
    s_cselect_b32 s52, s52, 0
    s_cselect_b32 s54, 1.0, -1.0
    s_and_b32 s27, s{sT}, 1
    s_cselect_b32 s54, s54, 0
L_b_g:
    v_cvt_f32_u32 v4, v{p}
    v_cmp_eq_u32 vcc, 0, v{p}
    v_mov_b32 v5, s49
    v_fmac_f32 v5, s50, v4                 ; phi (p != 0)
    v_mov_b32 v6, s48
    v_cndmask_b32 v4, v4, v6, vcc          ; P
    v_mul_f32 v4, {fbits(1/32)}, v4
    v_cndmask_b32 v5, v5, 0, vcc
    v_mov_b32 v6, s51
    v_mov_b32 v7, s53
    v_cndmask_b32 v6, v6, v7, vcc          ; A0
    v_mov_b32 v7, s52
    v_mov_b32 v8, s54
    v_cndmask_b32 v7, v7, v8, vcc          ; A1
    v_lshrrev_b32 v8, 1, v{g}
    v_and_b32 v9, 1, v{g}
    v_lshlrev_b32 v9, 2, v9
    v_lshl_add_u32 v8, v8, 4, v9
    v_cvt_f32_u32 v8, v8
    v_fmac_f32 v5, v4, v8""")
    for sl in range(8):
        k = 8*(sl >> 2) + (sl & 3)
        a(f"v_mov_b32 v9, {fbits(float(k))}\nv_fma_f32 v{TMP+sl}, v4, v9, v5\nv_cos_f32 v{TMP+sl}, v{TMP+sl}")
    for ks in range(2):
        for sl in range(8): a(f"v_mul_f32 v{TMP+8+sl}, v{6+ks}, v{TMP+sl}")
        for u in range(4): a(f"v_cvt_pk_bf16_f32 v{GF+4*ks+u}, v{TMP+8+2*u}, v{TMP+9+2*u}")
    XA, AR, AI = 2, 6, 7
    a(f"""v_bfe_u32 v10, v0, 2, 3
    v_lshrrev_b32 v11, 5, v0
    v_lshl_add_u32 v11, v11, 4, v10
    v_lshlrev_b32 v11, 7, v11
    v_and_b32 v10, 6, v10                  ; swizzle
    v_bfe_u32 v8, v0, 1, 1
    s_lshl_b32 s27, s{sH}, 1
    v_or_b32 v8, s27, v8
    v_xor_b32 v10, v10, v8
    v_lshl_add_u32 v11, v10, 4, v11
    v_and_b32 v10, 1, v0
    v_lshl_add_u32 v{XA}, v10, 3, v11
    v_xor_b32 v{XA+1}, 64, v{XA}
    v_add_u32 v{XA+2}, 40960, v{XA}
    v_add_u32 v{XA+3}, 40960, v{XA+1}
    s_mul_i32 s27, s{sT}, 5120
    s_lshl_b32 s28, s{sH}, 3
    s_add_u32 s27, s27, s28
    s_add_u32 s27, s27, {UB}
    v_lshl_add_u32 v10, v0, 4, s27
    v_add_u32 v11, 20480, v10
    s_and_b32 s27, s{sT}, s{sE}
    s_cselect_b64 vcc, 0, -1
    s_xor_b32 s27, s{sT}, 3
    s_or_b32 s27, s27, s{sJ}
    s_cselect_b32 s28, 0, 0x00010001
    s_or_b32 vcc_lo, vcc_lo, s28
    s_or_b32 vcc_hi, vcc_hi, s28
    s_mul_i32 s28, s{sE}, 0x80008000
    v_cndmask_b32 v{AR}, v11, v10, vcc
    v_cndmask_b32 v{AI}, v10, v11, vcc
    v_mov_b32 v10, s28
    v_cndmask_b32 v10, 0, v10, vcc""")
    for u in range(8):
        a(f"v_xor_b32 v{GF+16+u}, s28, v{GF+u}\nv_xor_b32 v{GF+8+u}, v10, v{GF+u}\nv_xor_b32 v{GF+24+u}, s28, v{GF+8+u}")
    xdma(2)
    a(f"""s_sub_u32 s27, 3, s{sE}
    s_cmp_lt_u32 s{sWAVE}, s27
    s_cselect_b32 s50, 1, 0
    s_cselect_b32 s49, 0, 2
    s_mul_i32 s28, s{sE}, 5
    s_add_u32 s28, s28, s{sWAVE}
    s_sub_u32 s28, s28, 3
    s_lshl_b32 s29, s{sWAVE}, 1
    s_cmp_lg_u32 s50, 0
    s_cselect_b32 s48, s29, s28
    s_cmp_lg_u32 s{sE}, 0
    s_cselect_b32 s49, 1, s49
    v_lshlrev_b32 v8, 2, v{g}
    v_cvt_f32_u32 v208, v8
    v_add_f32 v209, 1.0, v208
    v_add_f32 v210, 2.0, v208
    v_add_f32 v211, 2.0, v209""")
    for k in range(2):
        if k == 1: a("s_cmp_eq_u32 s50, 0\ns_cbranch_scc1 L_b_gd")
        a(f"""s_lshl_b32 s27, s48, 6
        s_add_u32 s27, s27, s49
        s_add_u32 s27, s27, {64*k}
        v_lshl_add_u32 v8, v{p}, 2, s27
        v_cvt_f32_u32 v8, v8
        v_mul_f32 v8, {fbits(1/640)}, v8""")
        gen_tile(a, MAT + 40*k, 8, 208, TMP)
        if k == 0:
            xdma(4)
            if -1 in cfg["bgs"]:
                a(f"buffer_load_dword v1, v12, s[{SBG}:{SBG+3}], s44 offen\ns_add_u32 s44, s44, s45\ns_sub_i32 s46, s46, 1")
    a("L_b_gd:")
    gP, gM, gM0, UA = 8, 9, 10, 11
    a(f"""s_lshl_b32 s51, s{sE}, 8
    s_add_u32 s51, s51, 768
    s_lshl_b32 s27, s51, 2
    v_mul_u32_u24 v{gP}, s27, v{g}
    s_mul_i32 s27, s51, 29
    v_sub_u32 v{gM}, s27, v{gP}
    v_cmp_eq_u32 s[54:55], 0, v{g}
    s_mul_i32 s27, s51, 13
    v_mov_b32 v{gM0}, s27
    s_cmp_eq_u32 s{sJ}, 0
    v_cndmask_b32 v{gM0}, v{gM}, v{gM0}, s[54:55]
    s_cselect_b64 s[56:57], s[54:55], 0
    s_lshr_b32 s27, s49, 1
    s_mul_i32 s27, s27, 20480
    s_add_u32 s27, s27, {UB}
    v_lshl_add_u32 v{UA}, v0, 4, s27""")
    stamp(a, cfg, 1)
    a(f"s_waitcnt vmcnt({1 if -1 in cfg['bgs'] else 0}) lgkmcnt(0)\ns_barrier")
    stamp(a, cfg, 2)
    if cfg.get("stamps"): a("s_waitcnt lgkmcnt(0)")
    XF = (152, 184); AC = (216, 224); T = 232
    cv = lambda d, s0: f"v_cvt_pk_bf16_f32 v{d}, v{s0}, v{s0+1}"
    def rd(tp):
        out = []
        for r in range(4):
            cb = (10*r + 2*tp) // 4; reg = XA + ((r + tp) & 1) + 2*(cb // 5)
            for ks in range(2):
                for h in range(2):
                    out.append(f"ds_read_b64_tr_b16 {v(XF[tp&1] + 8*r + 4*ks + 2*h, 2)}, v{reg} offset:{(cb % 5)*8192 + ks*4096 + h*1024}")
        return out
    def mf(tp):
        out = []
        for r0 in (0, 2):
            for ks in range(2):
                for r in (r0, r0+1):
                    d = v(AC[tp&1] + 4*(r & 1), 4)
                    out.append(f"v_mfma_f32_16x16x32_bf16 {d}, {v(XF[tp&1] + 8*r + 4*ks, 4)}, {v(GF + 8*r + 4*ks, 4)}, {d if (ks or r0) else 0}")
        return out
    def fin1(tp, odd):
        c = AC[tp & 1]; out = []; P = c
        if not odd:
            out += [f"v_add_f32 v{T+4+u}, v{c+u}, v{c+4+u}" for u in range(4)] + [f"v_sub_f32 v{c+4+u}, v{c+u}, v{c+4+u}" for u in range(4)]
            P = T + 4
        out += [cv(T, P), cv(T+1, P+2), cv(T+2, c+4), cv(T+3, c+6),
                f"ds_write_b64 v{AR}, {v(T,2)} offset:{1024*tp}", f"ds_write_b64 v{AI}, {v(T+2,2)} offset:{1024*tp}"]
        return out
    UF = (128, 160); HA = 192; E = 216; PK = 232
    def rdh(kp, odd):
        return [f"ds_read_b128 {v(UF[kp&1] + 16*ab + 4*t, 4)}, v{UA} offset:{ab*20480 + (5*t + kp)*1024}" for ab in range(2 if odd else 1) for t in range(4)]
    def mfh(kp, odd, m):
        out = []
        if odd:
            for ab in range(2):
                for t in range(4):
                    d = v(HA + 4*t, 4)
                    out.append(f"v_mfma_f32_16x16x32_bf16 {d}, {v(UF[kp&1] + 16*ab + 4*t, 4)}, {v(m + 20*ab + 4*kp, 4)}, {d if (kp or ab) else 0}")
        else:
            for k, (t, sn) in enumerate(((0, 0), (1, 1), (2, 0), (3, 1), (3, 0))):
                d = v(HA + 4*k, 4)
                out.append(f"v_mfma_f32_16x16x32_bf16 {d}, {v(UF[kp&1] + 4*t, 4)}, {v(m + 20*sn + 4*kp, 4)}, {d if kp else 0}")
        return out
    def put(pitch):
        a(f"v_add_u32 v3, v2, v{gP}\nv_add_u32 v4, v2, v{gM}\nv_add_u32 v5, v2, v{gM0}")
        for rr in range(4):
            a(f"ds_write_b32 v3, v{PK+rr} offset:{rr*pitch}")
            a(f"ds_write_b32 v{4 if rr else 5}, v{PK+4+rr} offset:{(3-rr)*pitch}")
    def tile(odd, k):
        a.ext(rdh(0, odd))
        a(f"""s_add_u32 s27, s48, {k}
        s_lshl_b32 s27, s27, 4
        v_add_u32 v7, s27, v{p}
        v_mul_u32_u24 v6, 3277, v7
        v_lshrrev_b32 v6, 16, v6
        v_mul_u32_u24 v2, 20, v6
        v_sub_u32 v7, v7, v2""")
        if odd:
            a(f"v_lshlrev_b32 v2, 7, v6\nv_lshl_add_u32 v2, v7, 2, v2\nv_add_u32 v2, {SB}, v2")
        else:
            a(f"""s_cmp_eq_u32 s49, 0
            s_cselect_b32 s27, 80, 0
            s_add_u32 s27, s27, {SB}
            v_mul_u32_u24 v2, 192, v6
            v_lshl_add_u32 v2, v7, 2, v2
            v_add_u32 v2, s27, v2
            v_cmp_gt_u32 vcc, 4, v6
            v_mov_b32 v15, {SB + 176}
            v_cndmask_b32 v2, v15, v2, vcc""")
        for kp in range(5):
            a("s_waitcnt lgkmcnt(0)")
            a.ext(interleave(mfh(kp, odd, MAT + 40*k), rdh(kp+1, odd) if kp < 4 else []))
        if not odd: a(f"v_cndmask_b32 v{HA+12}, v{HA+12}, v{HA+16}, s[56:57]")
        for op, d, x, y in (("sub", E, HA, HA+4), ("add", E+8, HA, HA+4), ("add", E+4, HA+12, HA+8), ("sub", E+12, HA+12, HA+8)):
            for u in range(4): a(f"v_{op}_f32 v{d+u}, v{x+u}, v{y+u}")
        for kk, t in enumerate((0, 3, 2, 1)):
            a(f"v_cndmask_b32 v{E+4*kk}, v{E+4*kk}, v{HA+4*t}, s[54:55]")
        for rr in range(4):
            a(f"v_cvt_pk_bf16_f32 v{PK+rr}, v{E+rr}, v{E+4+rr}\nv_cvt_pk_bf16_f32 v{PK+4+rr}, v{E+8+rr}, v{E+12+rr}")
        put(1024 if odd else 768)
        if not odd:
            a(f"""s_cmp_lg_u32 s49, 0
            s_cbranch_scc1 L_b_nd{k}
            v_mul_u32_u24 v2, 192, v6
            v_add_u32 v2, {SB - 192 + 160}, v2
            v_cmp_eq_u32 vcc, 0, v7
            v_cmp_lt_u32 s[28:29], 0, v6
            s_and_b64 vcc, vcc, s[28:29]
            v_cndmask_b32 v2, v15, v2, vcc""")
            put(768)
            a(f"L_b_nd{k}:")
    a.ext(rd(0))
    a(f"s_cmp_eq_u32 s{sE}, 0\ns_cbranch_scc1 L_b_ev")
    for odd in (1, 0):
        if not odd: a("L_b_ev:")
        for tp in range(5):
            if tp in cfg["bgs"]: bg(a)
            a(f"s_waitcnt lgkmcnt({2 if tp >= 2 else 0})")
            a.ext(interleave(mf(tp), rd(tp+1) if tp < 4 else [], per=2))
            if tp: a.ext(fin1(tp-1, odd))
        a.ext(fin1(4, odd))
        if 5 in cfg["bgs"]: bg(a)
        a("s_waitcnt lgkmcnt(0)\ns_barrier")
        stamp(a, cfg, 3)
        tile(odd, 0)
        if 6 in cfg["bgs"]: bg(a)
        a("s_cmp_eq_u32 s50, 0\ns_cbranch_scc1 L_b_end")
        tile(odd, 1)
        if odd: a("s_branch L_b_end")
    a("L_b_end:")
    tag_load(a)
    stamp(a, cfg, 4)
    a(f"""s_lshl_b32 s27, s{sWAVE}, 10
    v_lshl_add_u32 v2, v0, 4, s27
    v_add_u32 v3, {SB}, v2
    s_mul_i32 s28, s{sJ}, {VJ}
    s_add_u32 s28, s28, {V_OFF + 32768}
    s_lshl_b32 s27, s{sE}, 15
    s_sub_u32 s28, s28, s27
    s_waitcnt lgkmcnt(0)
    s_barrier""")
    for k in range(4): a(f"ds_read_b128 {v(16+4*k,4)}, v3 offset:{8192*k}")
    for k in range(4):
        if k == 3: a(f"s_cmp_eq_u32 s{sE}, 0\ns_cbranch_scc1 L_b_n6")
        a(f"s_waitcnt lgkmcnt({3-k})\nbuffer_store_dwordx4 {v(16+4*k,4)}, v2, s[{SWS}:{SWS+3}], s28 offen sc1\ns_add_u32 s28, s28, 8192")
    a("L_b_n6:")
    tag_check(a, 4)
    a(f"""s_waitcnt vmcnt(0) lgkmcnt(0)
    s_barrier""")
    stamp(a, cfg, 5)
    a(f"""s_cmp_lg_u32 s{sWAVE}, 0
    s_cbranch_scc1 L_2_ent
    s_lshl_b32 s27, s{sJ}, 1
    s_add_u32 s27, s27, s{sE}
    s_lshl_b32 s27, s27, 7
    s_add_u32 s27, s27, {FB_OFF}
    v_lshlrev_b32 v2, 13, v0
""")
    flag_store(a, 2, "s27", 4, "0xff")
    a("s_branch L_2_ent")
```

```python
import os
from gl import *
RT = 7; STEP = 16*RT - 7
if os.environ.get("BIGRING"):
    XB, XS, NX = 0, 14336, 4
    WB, WS_, NW = 57344, 15360, 6
else:
    XB, XS, NX = 40960, 14336, 3
    WB, WS_, NW = 83968, 15360, 4
MS = 149504
OP = 176
OS = MS - 112*OP
VB, VP = 102400, 2576
OB = 112896
LF = 112800
YB = OS
O_OFF, V_OFF, Z_OFF, FA_OFF, FB_OFF, ST_OFF, WP_OFF = 0, 0x300000, 0x280000, 0x500000, 0x520000, 0x600000, 0x700000
VJ = 57344
WSREC = 0x800000
BIG = 0x40000000
SPIN = int(os.environ.get('SPIN', 3000))
SX, SW, SWS, SAUX = 4, 8, 12, 16
sWAVE, sXCD, sN = 20, 21, 22
sCB, sT1 = 84, 85
SWO, SO = 88, 92

def stamp(a, cfg, k):
    if cfg.get("stamps"): a(f"{'s_memtime' if cfg['stamps'] == 'cyc' else 's_memrealtime'} s[{60+2*k}:{61+2*k}]")
def stamp_out(a, cfg, n=12):
    if not cfg.get("stamps"): return
    a(f"s_waitcnt lgkmcnt(0)\ns_mul_i32 s58, s2, {8*12}\ns_add_u32 s58, s58, {ST_OFF}\nv_mov_b32 v1, 0")
    for k in range(n):
        a(f"v_mov_b32 v2, s{60+2*k}\nv_mov_b32 v3, s{61+2*k}\nbuffer_store_dwordx2 v[2:3], v1, s[{SWS}:{SWS+3}], s58 offen offset:{8*k}\ns_nop 1")

def p2_decode(a):
    a(f"""s_load_dwordx2 s[{SO}:{SO+1}], s[0:1], 72
    s_and_b32 s{sCB}, s{sN}, 7
    s_lshr_b32 s86, s{sN}, 4
    s_lshl_b32 s86, s86, 3
    s_add_u32 s86, s86, s{sXCD}
    s_sub_u32 s87, 32, s86
    s_cmp_eq_u32 s86, 0
    s_cselect_b32 s87, 16, s87
    s_bitcmp1_b32 s{sN}, 3
    s_cselect_b32 s{sT1}, s87, s86
    s_mov_b32 s{SO+2}, 2621440
    s_mov_b32 s{SO+3}, 0x20000""")

_uid = [0]
sNC = 96
LN = MS + 8192
LG = LF + 8
LY = LF + 16
def poll(a, voff, soff, lo, hi, tmp, sleep=1, tag=None, issued=False):
    _uid[0] += 1; u = _uid[0]
    a(f"""s_mov_b32 exec_lo, {lo}
    s_mov_b32 exec_hi, {hi}
    s_movk_i32 s59, {SPIN}
    {f"s_branch L_pm{u}" if issued else ""}
L_pl{u}:
    buffer_load_dwordx2 {v(tmp,2)}, v{voff}, s[{SWS}:{SWS+3}], {soff} offen sc1
L_pm{u}:
    s_sub_u32 s59, s59, 1
    s_cbranch_scc1 L_pd{u}
    s_waitcnt vmcnt(0)
    v_cmp_ne_u64 vcc, {tag or s(sNC,2)}, {v(tmp,2)}
    s_cbranch_vccz L_pd{u}
    s_mov_b64 exec, vcc
    s_sleep {sleep}
    s_branch L_pl{u}
L_pd{u}:
    s_mov_b64 exec, -1""")

def tag_ptr(a):
    a(f"s_load_dwordx2 s[{SAUX}:{SAUX+1}], s[0:1], 80\ns_mov_b32 s{SAUX+2}, 256")
def tag_load(a):
    a(f"s_load_dwordx2 {s(sNC,2)}, s[{SAUX}:{SAUX+1}], 0")
def tag_check(a, tmp):
    _uid[0] += 1; u = _uid[0]
    a(f"""s_waitcnt lgkmcnt(0)
    s_cmp_lg_u32 s{sNC}, 0
    s_cbranch_scc1 L_tg{u}
    s_movk_i32 s59, {SPIN}
    v_mov_b32 v{tmp+2}, 0
L_th{u}:
    s_sleep 8
    buffer_load_dwordx2 {v(tmp,2)}, v{tmp+2}, s[{SAUX}:{SAUX+3}], 0 offen sc1
    s_waitcnt vmcnt(0)
    v_readfirstlane_b32 s{sNC}, v{tmp}
    v_readfirstlane_b32 s{sNC+1}, v{tmp+1}
    s_sub_u32 s59, s59, 1
    s_cbranch_scc1 L_tg{u}
    s_cmp_eq_u32 s{sNC}, 0
    s_cbranch_scc1 L_th{u}
    s_nop 1
L_tg{u}:""")
def flag_store(a, vo, soff, tmp, mask=None):
    a(f"v_mov_b32 v{tmp}, s{sNC}\nv_mov_b32 v{tmp+1}, s{sNC+1}")
    if mask: a(f"s_mov_b64 exec, {mask}")
    a(f"buffer_store_dwordx2 {v(tmp,2)}, v{vo}, s[{SWS}:{SWS+3}], {soff} offen sc1")
    if mask: a("s_mov_b64 exec, -1")

def wo_setup(a):
    a(f"""v_lshlrev_b32 v26, 4, v0
    s_sub_u32 s27, s{sWAVE}, 4
    s_mul_i32 s39, s27, 5120
    s_mul_i32 s38, s{sCB}, 102400
    s_add_u32 s38, s38, s39
    s_add_u32 s38, s38, {WP_OFF}""")
def wo_issue(a):
    a("s_mov_b32 m0, s39\ns_add_u32 s39, s39, 20480")
    for i in range(4):
        a(f"buffer_load_dwordx4 v26, s[{SWS}:{SWS+3}], s38 offen offset:{1024*i} sc1 lds")
    a(f"""s_add_u32 m0, m0, 4096
    s_add_u32 s38, s38, 4096
    buffer_load_dwordx4 v26, s[{SWS}:{SWS+3}], s38 offen sc1 lds
    s_add_u32 s38, s38, {20480-4096}""")

WR = 156
def wo_load(a, c):
    for i in range(5):
        if i == 4: a("s_add_u32 s38, s38, 4096")
        a(f"buffer_load_dwordx4 {v(WR+20*c+4*i,4)}, v26, s[{SWS}:{SWS+3}], s38 offen offset:{1024*(i & 3)} sc1")
    a(f"s_add_u32 s38, s38, {20480-4096}")
def wo_put(a):
    a("v_add_u32 v26, s39, v26\nv_add_u32 v27, 61440, v26")
    for c in range(5):
        for i in range(5):
            a(f"ds_write_b128 v{26 + c//3}, {v(WR+20*c+4*i,4)} offset:{(c % 3)*20480 + 1024*i}")

LW = LF + 32
def wait_lw(a, t):
    _uid[0] += 1; u = _uid[0]
    a(f"""v_mov_b32 v{t+4}, {LW}
    s_mov_b32 s59, {1 << 17}
L_lw{u}:
    ds_read_b128 {v(t,4)}, v{t+4}
    s_sub_u32 s59, s59, 1
    s_cbranch_scc1 L_lx{u}
    s_waitcnt lgkmcnt(0)
    v_min3_u32 v{t}, v{t}, v{t+1}, v{t+2}
    v_min_u32 v{t}, v{t}, v{t+3}
    v_cmp_eq_u32 vcc, 0, v{t}
    s_cbranch_vccnz L_lw{u}
L_lx{u}:""")

def touch_slot(a, u, slot, vo, srd, so, ss):
    a(f"""s_lshl_b32 s28, s{slot}, 6
    v_add_u32 v3, s28, v0
    s_cmp_ge_u32 s{slot}, 15
    s_cbranch_scc1 L_ts_x{u}
    v_mul_u32_u24 v4, 13108, v3
    v_lshrrev_b32 v4, 16, v4
    v_mul_u32_u24 v4, 640, v4
    v_lshl_add_u32 v{vo}, v3, 7, v4
    s_lshr_b32 s{so}, s{sXCD}, 2
    s_mul_i32 s{so}, s{so}, 640
    s_mov_b32 s{ss}, {64*3840}
    s_mov_b32 s{srd+2}, 2457600
    s_waitcnt lgkmcnt(0)
    s_mov_b32 s{srd}, s{SW}
    s_mov_b32 s{srd+1}, s{SW+1}
    s_branch L_ts_d{u}
L_ts_x{u}:
    v_subrev_u32 v3, 960, v3
    v_mul_u32_u24 v{vo}, 2560, v3
    s_bfe_u32 s28, s{sXCD}, 0x10001
    s_mul_i32 s28, s28, {5*STEP*2}
    s_and_b32 s29, s{sXCD}, 1
    s_add_u32 s28, s28, s29
    s_mul_i32 s{so}, s28, 1280
    s_movk_i32 s{ss}, 128
    s_mov_b32 s{srd+2}, 2621440
    s_waitcnt lgkmcnt(0)
    s_mov_b32 s{srd}, s{SX}
    s_mov_b32 s{srd+1}, s{SX+1}
L_ts_d{u}:""")

def poll80(a, cfg, pre):
    _uid[0] += 1; u = _uid[0]
    a(f"""v_mov_b32 v9, {LG}
    s_cmp_lg_u32 s{sWAVE}, 0
    s_cbranch_scc1 L_gw{u}""")
    if pre: poll(a, 4, "s47", 1, 0, 22, sleep=cfg.get("slp", 4), tag="v[20:21]")
    a(f"""s_mov_b32 exec_lo, -1
    s_mov_b32 exec_hi, 0xff
    s_add_u32 s58, s47, 5120
    s_movk_i32 s59, {SPIN}
L_gp{u}:
    buffer_load_dwordx2 v[22:23], v4, s[{SWS}:{SWS+3}], s47 offen sc1
    buffer_load_dwordx2 v[10:11], v4, s[{SWS}:{SWS+3}], s58 offen sc1
    s_sub_u32 s59, s59, 1
    s_cbranch_scc1 L_gq{u}
    s_waitcnt vmcnt(0)
    v_cmp_ne_u64 vcc, v[20:21], v[22:23]
    v_cmp_ne_u64 s[30:31], v[20:21], v[10:11]
    s_or_b64 s[30:31], s[30:31], vcc
    s_cbranch_scc0 L_gq{u}
    s_mov_b64 exec, s[30:31]
    s_sleep {cfg.get("sla", 1)}
    s_branch L_gp{u}
L_gq{u}:
    s_mov_b64 exec, -1
    ds_write_b32 v9, v9
    s_branch L_gd{u}
L_gw{u}:
    s_mov_b32 s59, {1 << 18}
L_gx{u}:
    ds_read_b32 v10, v9
    s_sub_u32 s59, s59, 1
    s_cbranch_scc1 L_gd{u}
    s_waitcnt lgkmcnt(0)
    v_cmp_eq_u32 vcc, 0, v10
    s_cbranch_vccnz L_gx{u}
L_gd{u}:""")
```

```python
import sys, json
from fz_common import *
import fz_a, fz_b, fz_2

def build(fn, **kw):
    cfg = dict(bars=list(range(20)), D=2, pro=2, init=1, hstart=2, wob=[], vat=1, vpk=4, s2=20, hint=3, two=0, lsb=[-1], cl=0, rdy=[18, 20], bstart=5, pat=2, ppk=4, bgs=[0, 1, 2])
    cfg.update(kw)
    a = Asm()
    K = NAME + "_kernel"
    a(khead(K))
    a(f"""s_load_dwordx2 s[{SX}:{SX+1}], s[0:1], 0
    s_load_dwordx2 s[{SW}:{SW+1}], s[0:1], 8
    s_load_dwordx2 s[{SWS}:{SWS+1}], s[0:1], 88
    s_load_dwordx2 s[{SAUX}:{SAUX+1}], s[0:1], 64""")
    stamp(a, cfg, 0)
    if cfg.get("stamps"): a("s_mov_b32 s82, 0\ns_mov_b32 s83, 0")
    a(f"""s_cmp_ge_u32 s2, 8
    s_cbranch_scc1 L_npf
    s_getpc_b64 s[28:29]
    v_lshlrev_b32 v2, 7, v0
    v_min_u32 v2, 0xb800, v2
    global_load_dword v39, v2, s[28:29]
L_npf:
    s_cmp_ge_u32 s2, 256
    s_cbranch_scc1 L_end
    v_lshrrev_b32 v1, 6, v0
    s_and_b32 s{sXCD}, s2, 7
    v_readfirstlane_b32 s{sWAVE}, v1
    v_and_b32 v0, 63, v0
    s_lshr_b32 s{sN}, s2, 3
    s_mov_b32 s{SX+2}, 2621440
    s_mov_b32 s{SX+3}, 0x20000
    s_mov_b32 s{SW+2}, 2457600
    s_mov_b32 s{SW+3}, 0x20000
    s_mov_b32 s{SWS+2}, {WSREC}
    s_mov_b32 s{SWS+3}, 0x20000
    s_mov_b32 s{SAUX+3}, 0x20000
    s_mov_b32 s43, 0x20000
    s_cmp_lt_u32 s{sN}, 12
    s_cbranch_scc1 L_na""")
    fz_a.decode(a)
    a(f"s_cmp_lt_u32 s{sWAVE}, 4\ns_cbranch_scc1 L_ac")
    fz_a.loaders_head(a, cfg)
    a("L_ac:")
    fz_a.gate_loads(a, cfg)
    a(f"""    s_mul_i32 s27, s{sWAVE}, 20
    s_add_u32 s27, s27, s{sN}
    s_sub_u32 s27, s27, 12
    s_mul_i32 s46, s27, 2731
    s_lshr_b32 s46, s46, 16
    s_mul_i32 s28, s46, 24
    s_sub_u32 s27, s27, s28
    s_add_u32 s46, s46, {cfg.get("i0", 0)}
    s_mov_b32 s47, 1
    s_cmp_lt_u32 s46, {cfg["init"]}
    s_cbranch_scc1 L_tt
    s_branch L_a_comp
L_na:
    {"s_endpgm" if cfg.get("onlya") else ""}
    s_cmp_ge_u32 s{sWAVE}, 6
    s_cbranch_scc1 L_tn
    s_lshl_b32 s27, s{sWAVE}, 2
    s_add_u32 s27, s27, s{sN}
    s_mov_b32 s46, {cfg["hstart"]}
    s_mov_b32 s47, {cfg["bstart"] - cfg["hstart"]}
    s_cmp_lt_u32 s{sN}, 4
    s_cbranch_scc1 L_tt
    s_cmp_ge_u32 s{sWAVE}, 3
    s_cselect_b32 s27, 3, 0
    s_cselect_b32 s47, {1 if cfg["hstart"] - cfg["init"] > 1 else 0}, {1 if cfg["hstart"] > cfg["init"] else 0}
    s_cselect_b32 s46, {cfg["init"] + 1}, {cfg["init"]}
    s_sub_u32 s27, s{sWAVE}, s27
    s_lshl_b32 s27, s27, 3
    s_add_u32 s27, s27, s{sN}
    s_sub_u32 s27, s27, 4
L_tt:""")
    touch_slot(a, "e", 27, 12, 40, 44, 45)
    a(f"""s_mul_i32 s46, s46, s45
    s_add_u32 s46, s46, s44
L_tl:
    s_sub_u32 s47, s47, 1
    s_cbranch_scc1 L_td
    buffer_load_dword v39, v12, s[40:43], s46 offen
    s_add_u32 s46, s46, s45
    s_branch L_tl
L_tn:
    s_mov_b32 s42, 0
    s_mov_b32 s44, 0
    s_mov_b32 s45, 0
    v_mov_b32 v12, 0
    s_waitcnt lgkmcnt(0)
    s_mov_b32 s40, s{SX}
    s_mov_b32 s41, s{SX+1}
L_td:
    s_cmp_ge_u32 s{sN}, 12
    s_cbranch_scc1 L_a_comp
    {"s_endpgm" if cfg.get("tonly") else ""}
    s_cmp_ge_u32 s{sN}, 4
    s_cbranch_scc1 L_b1""")
    fz_a.helper(a, cfg)
    fz_a.loaders(a, cfg)
    fz_a.compute(a, cfg)
    fz_b.b1(a, cfg)
    fz_2.p2(a, cfg)
    a(f"L_code_end:\n.fill (0xb880-(L_code_end-{K}))/4, 4, 0xbf810000")
    body = fix_hazards(a.l, report=True)
    hdr = ["; @launch grid=(256,1,1) block=(512,1,1) lds=163840", '.amdgcn_target "amdgcn-amd-amdhsa--gfx950"', ".text"]
    tail = ['.section .rodata,"a"', kd(K, 256, 100)]
    open(fn, "w").write("\n".join(hdr + body + tail) + "\n")

if __name__ == "__main__":
    for arg in sys.argv[1:]:
        n, _, j = arg.partition("=")
        build(n + ".s", **(json.loads(j) if j else {}))
```

```python
from fz_common import *
WA, OW, YR = 26, 29, 28

def comp_setup(a):
    q, g = 13, 14
    a(f"""v_and_b32 v{q}, 15, v0
    v_lshrrev_b32 v{g}, 4, v0
    v_lshlrev_b32 v{WA}, 4, v0
    v_add_u32 v{WA+1}, 51200, v{WA}
    s_mul_i32 s28, s{sWAVE}, {16*OP}
    s_add_u32 s28, s28, {OB}
    v_mul_u32_u24 v6, {OP}, v{q}
    v_lshl_add_u32 v6, v{g}, 3, v6
    v_add_u32 v{OW}, s28, v6""")
    for r in range(3):
        a(f"""v_add_u32 v6, {64*r}, v0
        v_mul_u32_u24 v7, 6554, v6
        v_lshrrev_b32 v7, 16, v7
        v_add_u32 v8, v6, v7
        v_lshl_add_u32 v{30+r}, v8, 4, s28
        v_mul_u32_u24 v7, {40960-160}, v7
        v_lshl_add_u32 v{33+r}, v6, 4, v7""")
    a(f"""s_lshl_b32 s45, s{sWAVE}, 9
    s_add_u32 s45, s45, s{sT1}
    s_mul_i32 s45, s45, 1280
    s_mul_i32 s30, s{sCB}, 160
    s_add_u32 s45, s45, s30
    s_mul_i32 s44, s{sT1}, 81920
    s_mul_i32 s30, s{sWAVE}, 20480
    s_add_u32 s44, s44, s30
    s_add_u32 s44, s44, {O_OFF}            ; o base
    s_lshl_b32 s46, s{sT1}, 2
    s_add_u32 s46, s46, s{sWAVE}
    s_lshl_b32 s46, s46, 6
    s_add_u32 s46, s46, {Z_OFF}            ; z base
    s_lshl_b32 s47, s{sXCD}, 14
    s_add_u32 s47, s47, {FA_OFF}
    s_mul_i32 s30, s{sWAVE}, 5120
    s_add_u32 s30, s30, {YB}
    v_lshlrev_b32 v2, 4, v0
    v_lshlrev_b32 v3, 2, v{q}
    v_lshlrev_b32 v4, 7, v0
    v_add_u32 v{YR}, s30, v2
    v_lshrrev_b32 v6, 5, v0
    v_lshlrev_b32 v6, 9, v6
    v_lshl_add_u32 v6, v{q}, 5, v6
    v_and_b32 v7, 16, v0
    v_add_u32 v2, v6, v7
    s_lshl_b32 s30, s{sWAVE}, 2
    s_add_u32 s30, s30, {LY}
    v_mov_b32 v24, s30
    s_mov_b32 s51, s44
    s_movk_i32 s52, {SPIN}""")

VF, MF, VA, SG, SG0, YW, FV, VS, YF = 90, 60, 68, 73, 74, 75, 76, 77, 80
OF = 40
def load_setup(a):
    q, g = 13, 14
    a(f"""v_lshlrev_b32 v{FV}, 7, v0
    s_lshl_b32 s49, s{sXCD}, 13
    s_add_u32 s49, s49, {FB_OFF}
    s_lshl_b32 s56, s{sXCD}, 14
    s_add_u32 s56, s56, {FA_OFF + 96*128}
    s_mov_b32 s48, 0""")
    for i in range(3):
        a(f"""v_add_u32 v4, {64*i}, v0
        v_mul_u32_u24 v5, 13108, v4
        v_lshrrev_b32 v5, 16, v5
        v_mul_u32_u24 v5, {VJ-80}, v5
        v_lshl_add_u32 v{VS+i}, v4, 4, v5""")
    a(f"""s_sub_u32 s28, 7, s{sCB}
    s_sub_u32 s29, 32, s{sT1}
    s_and_b32 s29, s29, 31
    s_lshl_b32 s43, s29, 3
    s_add_u32 s43, s43, s28
    s_lshl_b32 s43, s43, 7
    s_add_u32 s43, s43, {V_OFF}
    s_lshl_b32 s41, s{sT1}, 3
    s_add_u32 s41, s41, s{sCB}
    s_lshl_b32 s41, s41, 7
    s_add_u32 s41, s41, {V_OFF}            ; class 1
    s_cmp_ge_u32 s{sCB}, 4
    s_cselect_b32 s28, s28, s{sCB}
    s_cselect_b32 s29, s29, s{sT1}
    s_cselect_b32 s40, 4, 0
    s_lshl_b32 s29, s29, 2
    s_add_u32 s28, s28, s29
    s_mul_i32 s28, s28, 192
    s_add_u32 s42, s28, {V_OFF + 32768}    ; class 2
    s_add_u32 s40, s40, s42
    s_add_u32 s40, s40, 80                 ; class 0
    s_lshl_b32 s28, s{sWAVE}, 2
    s_add_u32 s28, s28, {LY - 16}
    v_mov_b32 v{YF}, s28""")

def load_setup2(a):
    q, g = 13, 14
    a(f"""v_and_b32 v{q}, 15, v0
    v_lshrrev_b32 v{g}, 4, v0
    s_sub_u32 s50, s{sWAVE}, 4
    s_lshl_b32 s28, s50, 9
    s_add_u32 s28, s28, s{sT1}
    v_lshl_add_u32 v3, v{q}, 5, s28        ; t
    v_cvt_f32_u32 v4, v3
    v_mul_f32 v4, {fbits(1/2048)}, v4
    v_lshlrev_b32 v5, 2, v{g}
    v_cvt_f32_u32 v5, v5
    v_mul_f32 v5, v4, v5""")
    for ks in range(2):
        for u in range(4):
            a(f"""v_mov_b32 v6, {fbits(float(16*ks+u))}
            v_fma_f32 v6, v4, v6, v5
            v_cos_f32 v7, v6
            v_sin_f32 v6, v6
            v_cvt_pk_bf16_f32 v{MF+4*ks+u}, v7, -v6""")
    a(f"""v_lshlrev_b32 v6, 31, v0
    v_xor_b32 v6, 0x3f803f80, v6
    v_cmp_gt_u32 vcc, 16, v0
    s_cmp_ge_u32 s{sCB}, 4
    s_cselect_b32 s30, 0x55555555, 0
    v_cndmask_b32 v{MF}, v{MF}, v6, vcc
    s_or_b32 s30, s30, 0x88888888
    s_mov_b32 s31, s30
    s_mov_b32 s28, {VB}
    v_and_b32 v6, 3, v0
    v_mul_u32_u24 v6, {VP}, v6
    v_mul_u32_u24 v7, 320, v{g}
    v_add3_u32 v6, v6, v7, s28
    v_and_b32 v7, 12, v0
    v_sub_u32 v8, 76, v7
    v_cndmask_b32 v7, v7, v8, s[30:31]
    v_add_u32 v{VA}, v6, v7
    v_cndmask_b32 v7, 16, -16, s[30:31]""")
    for t in range(1, 5): a(f"v_add_u32 v{VA+t}, v{VA+t-1}, v7")
    a(f"""v_bfrev_b32 v7, 1
    v_cndmask_b32 v{SG}, 0, v7, s[30:31]
    s_cmp_eq_u32 s{sT1}, 0
    s_cselect_b32 s28, 0xffff0000, -1
    s_and_b32 s30, s30, s28
    v_cndmask_b32 v{SG0}, 0, v7, s[30:31]
    s_mul_i32 s28, s50, 5120
    s_add_u32 s28, s28, {YB}
    v_lshl_add_u32 v{YW}, v0, 4, s28""")

def v_dma(a):
    for c in range(4):
        for i in range(3):
            a(f"s_mov_b32 m0, {VB + c*VP + 1024*i}")
            a("s_mov_b32 exec_hi, 0" if i == 2 else ("s_mov_b32 exec_hi, -1" if i == 0 else "s_nop 0"))
            a(f"buffer_load_dwordx4 v{VS+i}, s[{SWS}:{SWS+3}], s{40+c} offen sc1 lds")
    a("s_mov_b32 exec_hi, -1")

_pk = [0]
def v_peek(a):
    _pk[0] += 1
    a(f"""v_mov_b32 v16, 0
    v_mov_b32 v17, 0
    s_cmp_lg_u32 s{sWAVE}, 4
    s_cbranch_scc1 L_2_pk{_pk[0]}
    buffer_load_dwordx2 v[16:17], v{FV}, s[{SWS}:{SWS+3}], s49 offen sc1
L_2_pk{_pk[0]}:""")

def v_try(a, cfg):
    if not cfg.get("vtry", 1): return
    a(f"""v_cmp_ne_u64 vcc, {s(sNC,2)}, v[16:17]
    s_cbranch_vccnz L_2_nt{_pk[0]}
    s_mov_b32 s48, 1""")
    v_dma(a)
    a(f"L_2_nt{_pk[0]}:")

def old(ks):
    o = [f"buffer_load_dwordx4 {v(OF+4*ks,4)}, v2, s[{SWS}:{SWS+3}], s44 offen offset:{1024*(ks & 3)} sc1"]
    if ks & 3 == 3 and ks < 19: o.append("s_add_u32 s44, s44, 4096")
    return o
def first(a, cfg):
    a(f"buffer_load_dword v16, v3, s[{SWS}:{SWS+3}], s46 offen sc1")
    for ks in range(cfg.get("lead", 8)): a.ext(old(ks))

def p2(a, cfg):
    a(f"""L_2_ent:
    s_cmp_lg_u32 s{sWAVE}, 7
    s_cbranch_scc1 L_2_nr""")
    a(f"""s_lshl_b32 s57, 0x01010101, s{sCB}
    v_lshlrev_b32 v4, 7, v0
    s_lshl_b32 s56, s{sXCD}, 14
    s_add_u32 s56, s56, {FA_OFF + 96*128}""")
    poll(a, 4, "s56", "s57", 0, 2, sleep=8)
    a(f"""L_2_nr:
    s_barrier
    s_cmp_lt_u32 s{sWAVE}, 4
    s_cbranch_scc1 L_2_comp""")
    wo_setup(a)
    for c in range(5): wo_issue(a)
    load_setup(a); load_setup2(a)
    a(f"""v_mov_b32 v2, {LF}
    v_mov_b32 v3, 0
    ds_write_b32 v2, v3
    ds_write_b32 v2, v3 offset:8
    ds_write_b32 v{YF}, v3
    ds_write_b32 v{YF}, v2 offset:16
    s_waitcnt vmcnt(0) lgkmcnt(0)
    s_barrier
L_2_lb:""")
    a(f"""s_cmp_lg_u32 s{sWAVE}, 4
    s_cbranch_scc1 L_2_nv
    s_cmp_lg_u32 s48, 0
    s_cbranch_scc1 L_2_nv""")
    poll(a, FV, "s49", -1, -1, 4, sleep=cfg.get("slb", 8))
    v_dma(a)
    a("s_mov_b32 s48, 2\nL_2_nv:")
    a(f"""v_mov_b32 v2, {LF}
    s_cmp_eq_u32 s48, 1
    s_cbranch_scc1 L_2_vr
    s_cmp_eq_u32 s48, 0
    s_cbranch_scc1 L_2_wf
    s_waitcnt vmcnt(0)
    ds_write_b32 v2, v2
    s_branch L_2_vr
L_2_wf:
    s_mov_b32 s59, {1 << 17}
L_2_wf2:
    ds_read_b32 v3, v2
    s_sub_u32 s59, s59, 1
    s_cbranch_scc1 L_2_vr
    s_waitcnt lgkmcnt(0)
    v_cmp_eq_u32 vcc, 0, v3
    s_cbranch_vccz L_2_vr
    s_sleep 2
    s_branch L_2_wf2
L_2_vr:
    s_waitcnt lgkmcnt(0)""")
    AB = 132
    if cfg.get("stw"): stamp(a, cfg, 9); a("s_waitcnt lgkmcnt(0)")
    mm = lambda t: [f"v_mfma_f32_16x16x32_bf16 {v(AB+4*t,4)}, {v(VF+8*t+4*ks,4)}, {v(MF+4*ks,4)}, {v(AB+4*t,4) if ks else 0}" for ks in range(2)]
    for t in range(6):
        if t < 5:
            for ks in range(2):
                for u in range(4):
                    a(f"ds_read_b32 v{VF+8*t+4*ks+u}, v{VA+t} offset:{(16*ks+u)*80}")
        if t:
            k = t - 1
            a(f"s_waitcnt lgkmcnt({8 if t < 5 else 0})")
            for i in range(8): a(f"v_xor_b32 v{VF+8*k+i}, v{SG if i else SG0}, v{VF+8*k+i}")
            a.ext(mm(k))
    wait_lw(a, 4)
    for t in range(5): a(f"ds_write_b128 v{YW}, {v(AB+4*t,4)} offset:{1024*t}")
    if cfg.get("stw"): stamp(a, cfg, 10)
    a(f"ds_write_b32 v{YF}, v{YF}\ns_waitcnt lgkmcnt(0)")
    if cfg.get("stw"):
        a(f"s_cmp_lg_u32 s{sWAVE}, {cfg['stw']}\ns_cbranch_scc1 L_end"); stamp_out(a, cfg)
    a("L_end:\ns_endpgm")
    NB = 4
    OF, WF, AA, AB = 40, (120, 140, 200, 220), 160, 180
    LEAD = cfg.get("lead", 8)
    a("L_2_comp:")
    a(f"v_mov_b32 v20, s{sNC}\nv_mov_b32 v21, s{sNC+1}")
    comp_setup(a)
    stamp(a, cfg, 6)
    a("s_barrier")
    a(f"s_cmp_lg_u32 s{sWAVE}, 0\ns_cbranch_scc1 L_2_go")
    poll(a, 4, "s47", 1, 0, 22, sleep=cfg.get("slp", 4), tag="v[20:21]")
    a("L_2_go:")
    def reads(st):
        f = WF[st % NB]
        return [f"ds_read_b128 {v(f+4*t,4)}, v{WA + st//10} offset:{(st % 10)*5120 + 1024*t}" for t in range(5)]
    def mfmas(st):
        f = WF[st % NB]
        return [f"v_mfma_f32_16x16x32_bf16 {v(AA+4*t,4)}, {v(f+4*t,4)}, {v(OF+4*st,4)}, {v(AA+4*t,4) if st else 0}" for t in range(5)]
    poll80(a, cfg, False)
    a("L_2_g2:")
    stamp(a, cfg, 8)
    a("L_2_st:")
    first(a, cfg)
    wait_lw(a, 6)
    stamp(a, cfg, 7)
    a.ext(reads(0) + reads(1) + reads(2))
    sig = ["v_lshlrev_b32 v18, 16, v16", f"v_mul_f32 v18, {fbits(-1.4426950408889634)}, v18", "v_exp_f32 v18, v18", "v_add_f32 v18, 1.0, v18", "v_rcp_f32 v18, v18"]
    yb = ["ds_read_b32 v25, v24"] + [f"ds_read_b128 {v(AB+4*t,4)}, v{YR} offset:{1024*t}" for t in range(5)]
    def check(G):
        r = OF + 8*G
        return [f"v_max3_u32 v5, v{16 if G == 0 else r+7}, v{r}, v{r+4}", "v_cmp_eq_u32 vcc, -1, v5"]
    handlers = []
    issued = LEAD
    a(f"s_waitcnt vmcnt({issued - 2})")
    if cfg.get("st2"): stamp(a, cfg, 8)
    a.ext(check(0)); a("s_cbranch_vccnz L_2_h0\nL_2_r0:"); handlers.append((0, issued))
    for st in range(20):
        lg = 0 if st == 0 else (10 if st < 18 else (11, 6)[st-18])
        a(f"s_waitcnt lgkmcnt({lg})")
        rr = reads(st+3) if st < 17 else (yb if st == 17 else [])
        ex = []
        if st % 2 == 0:
            while issued < min(20, st + LEAD + 2): ex += old(issued); issued += 1
            if 10 <= st: ex += [sig[(st-10)//2]]
        elif st < 19:
            G = st // 2 + 1
            ck = check(G)
            ex = [""]*cfg.get("ckp", 1) + [f"s_waitcnt vmcnt({issued - 2*G - 2})\n" + ck[0]] + ck[1:]
            if "nock" in cfg.get("x2", ""): ex = ["s_nop 0"]*0; post = f"s_waitcnt vmcnt({issued - 2*G - 2})"
        if "nord" in cfg.get("x2", "") and st != 17: rr = []
        if "nold" in cfg.get("x2", ""): ex = [x for x in ex if "buffer_load" not in x]
        fill = []
        for i in range(6): fill += rr[i:i+1] + ex[i:i+1]
        for x in interleave(mfmas(st) if "nomf" not in cfg.get("x2", "") else [], fill, per=2): a(x)
        if st % 2 == 1 and st < 19:
            if "nock" in cfg.get("x2", ""): a(post)
            else: a(f"s_cbranch_vccnz L_2_h{G}")
            a(f"L_2_r{G}:"); handlers.append((G, issued))
    a("L_2_fin:")
    stamp(a, cfg, 9)
    a(f"""s_mov_b32 s59, {1 << 17}
L_2_yw:
    s_waitcnt lgkmcnt(0)
    v_cmp_eq_u32 vcc, 0, v25
    s_cbranch_vccnz L_2_ys
L_2_yo:
    v_cmp_u_f32 vcc, v{AA}, v{AA}
    s_cbranch_vccnz L_2_un
L_2_ok:""")
    for t in range(5):
        for u in (0, 2):
            a(f"v_pk_add_f32 {v(AA+4*t+u,2)}, {v(AA+4*t+u,2)}, {v(AB+4*t+u,2)} neg_lo:[0,1] neg_hi:[0,1]")
        for u in (0, 2):
            a(f"v_pk_fma_f32 {v(AA+4*t+u,2)}, {v(AA+4*t+u,2)}, v[18:19], {v(AB+4*t+u,2)} op_sel_hi:[1,0,1]")
        a(f"v_cvt_pk_bf16_f32 v{AB+4*t}, v{AA+4*t}, v{AA+4*t+1}\nv_cvt_pk_bf16_f32 v{AB+4*t+1}, v{AA+4*t+2}, v{AA+4*t+3}")
        a(f"ds_write_b64 v{OW}, {v(AB+4*t,2)} offset:{32*t}")
    a(f"""ds_read_b128 v[40:43], v30
    ds_read_b128 v[44:47], v31
    ds_read_b128 v[48:51], v32
    s_waitcnt lgkmcnt(2)
    buffer_store_dwordx4 v[40:43], v33, s[{SO}:{SO+3}], s45 offen
    s_waitcnt lgkmcnt(1)
    buffer_store_dwordx4 v[44:47], v34, s[{SO}:{SO+3}], s45 offen
    s_mov_b32 exec_hi, 0
    s_waitcnt lgkmcnt(0)
    buffer_store_dwordx4 v[48:51], v35, s[{SO}:{SO+3}], s45 offen""")
    if cfg.get("stamps") and not cfg.get("stw"):
        a("s_mov_b64 exec, -1\ns_waitcnt vmcnt(0)\ns_barrier"); stamp(a, cfg, 10)
        a(f"s_cmp_lg_u32 s{sWAVE}, 0\ns_cbranch_scc1 L_end"); stamp_out(a, cfg)
    a("s_endpgm")
    for G, n in handlers:
        a(f"L_2_h{G}:\ns_cmp_eq_u32 s52, 0\ns_cbranch_scc1 L_2_r{G}\ns_sub_u32 s52, s52, 1")
        if cfg.get("stamps") and not cfg.get("stw"): a("s_add_u32 s82, s82, 1")
        if G == 0: a(f"buffer_load_dword v16, v3, s[{SWS}:{SWS+3}], s46 offen sc1")
        for ks in range(2*G, n):
            if ks == 2*G or ks % 4 == 0: a(f"s_add_u32 s58, s51, {4096*(ks >> 2)}")
            a(f"buffer_load_dwordx4 {v(OF+4*ks,4)}, v2, s[{SWS}:{SWS+3}], s58 offen offset:{1024*(ks & 3)} sc1")
        a(f"s_waitcnt vmcnt({n - 2*G - 2})")
        a.ext(check(G))
        a(f"s_cbranch_vccnz L_2_h{G}\ns_branch L_2_r{G}")
    a(f"L_2_un:\nv_mov_b32 v5, v{OF}")
    for r in range(OF, OF + 80, 2): a(f"v_max3_u32 v5, v5, v{r}, v{r+1}")
    a("""v_cmp_eq_u32 vcc, -1, v5
    s_cbranch_vccz L_2_ok
    s_cmp_eq_u32 s52, 0
    s_cbranch_scc1 L_2_ok
    s_sub_u32 s52, s52, 1
    s_mov_b32 s44, s51
    s_branch L_2_st""")
    a("""L_2_ys:
    s_sub_u32 s59, s59, 1
    s_cbranch_scc1 L_2_yo
    s_sleep 1""")
    a.ext(yb)
    a("s_branch L_2_yw")
```

```python
from fz_common import *
sB, sPAR, sGAM, sP0 = 23, 24, 25, 26
OSR, GO, ZR, ZO = 9, 10, 12, 36
LH2 = 8
assert XB >= 16

def decode(a):
    a(f"""s_sub_u32 s27, s{sN}, 12
    s_lshr_b32 s28, s27, 2
    s_and_b32 s{sPAR}, s{sXCD}, 1
    s_bfe_u32 s29, s{sXCD}, 0x10001
    s_mul_i32 s29, s29, 5
    s_add_u32 s{sB}, s29, s28
    s_mul_i32 s{sP0}, s{sB}, {STEP}
    s_and_b32 s27, s27, 3
    s_and_b32 s29, s{sXCD}, 4
    s_add_u32 s{sGAM}, s29, s27""")

def store_addr(a, t, two):
    a(f"""v_bfe_u32 v{t}, v0, 1, {2 if two else 3}
    v_lshrrev_b32 v{t+1}, 4, v0
    s_sub_u32 s29, s{sWAVE}, 4
    s_lshl_b32 s27, s29, 2
    v_add_u32 v{t+1}, s27, v{t+1}              ; q
    s_xor_b32 s28, s29, 3
    s_lshl_b32 s28, s28, 3
    s_add_u32 s28, s28, {MS}
    v_lshl_add_u32 v{t+3}, v{t}, 4, v{t+1}
    v_lshl_add_u32 v{ZR}, v{t+3}, 5, s28
    v_and_b32 v{t+2}, 1, v0
    v_bfe_u32 v{t}, v0, 3, {1 if two else 0}
    v_mul_u32_u24 v{OSR}, {OP}, v{t+3}
    v_lshl_add_u32 v{OSR}, v{t+2}, 4, v{OSR}
    v_lshl_add_u32 v{OSR}, v{t}, 5, v{OSR}
    v_add_u32 v{OSR}, {OS}, v{OSR}
    v_lshlrev_b32 v{t+2}, 4, v{t+2}
    v_lshl_add_u32 v{t+2}, v{t}, 9, v{t+2}
    s_cmp_eq_u32 s{sB}, 0
    s_cselect_b32 s28, 0, 7
    s_sub_u32 s29, 1024, s{sP0}
    s_min_u32 s29, s29, 112
    s_cmp_eq_u32 s{sGAM}, 0
    s_cselect_b32 s27, {'0x00550055' if two else '0x55555555'}, 0""")
    for k in range(2 if two else 1):
        a(f"""v_cmp_le_u32 vcc, s28, v{t+3}
        v_cmp_gt_u32 s[30:31], s29, v{t+3}
        v_add_u32 v{t+1}, s{sP0}, v{t+3}           ; P
        s_and_b64 vcc, vcc, s[30:31]
        v_lshl_add_u32 v{t+1}, v{t+1}, 1, s{sPAR}  ; t
        v_and_b32 v{t}, 31, v{t+1}
        v_mul_u32_u24 v{GO+k}, 81920, v{t}
        v_lshrrev_b32 v{ZO+k}, 5, v{t+1}
        v_lshl_add_u32 v{ZO+k}, v{t}, 6, v{ZO+k}
        v_lshlrev_b32 v{ZO+k}, 2, v{ZO+k}
        v_lshrrev_b32 v{t}, 9, v{t+1}
        v_mul_u32_u24 v{t}, 20480, v{t}
        v_bfe_u32 v{t+1}, v{t+1}, 5, 4
        v_lshl_add_u32 v{t}, v{t+1}, 5, v{t}
        v_add3_u32 v{GO+k}, v{GO+k}, v{t}, v{t+2}
        v_mov_b32 v{t}, {BIG}
        v_cndmask_b32 v{GO+k}, v{t}, v{GO+k}, vcc
        s_and_b32 vcc_lo, vcc_lo, s27
        s_and_b32 vcc_hi, vcc_hi, s27
        v_add_u32 v{t+3}, 64, v{t+3}
        v_cndmask_b32 v{ZO+k}, v{t}, v{ZO+k}, vcc""")
    a(f"""s_mov_b32 s54, {Z_OFF}
    s_lshl_b32 s27, s{sB}, 3
    s_add_u32 s27, s27, s{sGAM}
    s_lshl_b32 s28, s{sPAR}, 7
    s_add_u32 s27, s27, s28
    s_lshl_b32 s27, s27, 7
    s_add_u32 s55, s27, {FA_OFF}
    v_lshrrev_b32 v38, 3, v0
    v_lshlrev_b32 v38, 15, v38
    v_and_b32 v{t+1}, 7, v0
    v_cmp_gt_u32 vcc, 32, v0
    v_lshl_add_u32 v38, v{t+1}, 4, v38
    s_mul_i32 s53, s{sGAM}, 2560
    v_cndmask_b32 v38, v{t}, v38, vcc
    s_add_u32 s53, s53, {O_OFF}""")

def final_store(a, cfg, k):
    two = cfg["two"]
    D = 100 + 14*k; n = 3 if two else 5; w = 2 if two else 1
    for r in range(n): a(f"ds_read_b128 {v(D+4*r,4)}, v{OSR} offset:{64*OP*k + 32*w*r}")
    a(f"ds_read_b32 v{D+4*n}, v{ZR} offset:{2048*k}")
    for r in range(n):
        if two and r == 2: a("s_mov_b32 exec_lo, 0x00ff00ff\ns_mov_b32 exec_hi, 0x00ff00ff")
        a(f"s_waitcnt lgkmcnt({n-r})")
        for u in range(4): a(f"v_min_u32 v{D+4*r+u}, -2, v{D+4*r+u}")
        a(f"buffer_store_dwordx4 {v(D+4*r,4)}, v{GO+k}, s[{SWS}:{SWS+3}], s53 offen offset:{512*w*r} sc1")
    a(f"""s_cmp_lg_u32 s{sGAM}, 0
    s_cbranch_scc1 L_a_nz{k}
    s_waitcnt lgkmcnt(0)
    buffer_store_dword v{D+4*n}, v{ZO+k}, s[{SWS}:{SWS+3}], s54 offen sc1
L_a_nz{k}:
    s_mov_b64 exec, -1""")

def gate_loads(a, cfg):
    a(f"""s_cmp_eq_u32 s{sGAM}, 0
    s_cselect_b32 s{SAUX+2}, 1280, 0
    s_lshl_b32 s27, s{sWAVE}, 7
    v_lshl_add_u32 v242, v0, 1, s27
    s_waitcnt lgkmcnt(0)""")
    for i in range(3): a(f"buffer_load_ushort v{248+2*i}, v242, s[{SAUX}:{SAUX+3}], 0 offen offset:{512*i}")

def compute(a, cfg):
    bars = cfg["bars"]
    XA0, XA1, WM, WX, MSW, MSR, OSW = 2, 3, 4, 6, 8, 9, 10
    KTR, INC, INCW = 13, 14, 15
    CC, CP, MP, MC, MG0, ONES = 16, 20, 24, 25, 28, 32
    FR = (40, 84); ACC = 128; T = 240
    a("L_a_comp:")
    q, g, t0, t1 = 240, 241, 242, 243
    for i in range(3): a(f"v_mov_b32 v{249+2*i}, 0")
    a(f"""s_mov_b32 s28, {MS}
    v_lshl_add_u32 v247, v{t0}, 2, s28""")
    a(f"""v_and_b32 v{q}, 15, v0
    v_lshrrev_b32 v{g}, 4, v0
    v_lshrrev_b32 v{t0}, 1, v{q}
    v_xor_b32 v{t0}, v{t0}, v{g}
    v_lshlrev_b32 v{t0}, 4, v{t0}
    v_lshl_add_u32 v{XA0}, v{q}, 7, v{t0}
    v_add_u32 v{XA0}, {XB}, v{XA0}
    v_xor_b32 v{XA1}, 64, v{XA0}
    v_lshrrev_b32 v{t0}, 5, v0
    v_bfe_u32 v{t1}, v0, 2, 3
    v_lshl_add_u32 v{t0}, v{t0}, 4, v{t1}      ; sigma0
    v_mul_u32_u24 v{t0}, 480, v{t0}
    s_mul_i32 s27, s{sWAVE}, 40
    s_add_u32 s28, s27, {WB}
    v_add_u32 v{t0}, s28, v{t0}
    v_and_b32 v{t1}, 3, v0
    v_lshl_add_u32 v{WM}, v{t1}, 3, v{t0}
    v_add_u32 v{WM+1}, {3*WS_}, v{WM}
    v_cmp_eq_u32 vcc, 3, v{t1}
    v_mul_u32_u24 v{t1}, 160, v{t1}
    v_add3_u32 v{WX}, v{t0}, v{t1}, 32
    v_add_u32 v{WX+1}, 3840, v{WX}
    v_bfe_u32 v{t0}, v0, 2, 2
    v_lshl_add_u32 v{t0}, v{g}, 3, v{t0}
    v_lshlrev_b32 v{t0}, 3, v{t0}
    v_add_u32 v{t0}, {MS}, v{t0}
    v_cndmask_b32 v{WX}, v{WX}, v{t0}, vcc
    v_add_u32 v{t0}, 32, v{t0}
    v_cndmask_b32 v{WX+1}, v{WX+1}, v{t0}, vcc
    v_mov_b32 v{t0}, 0x100
    v_mov_b32 v{INC}, {WS_}
    v_mov_b32 v{INCW}, {-(NW-1)*WS_}
    v_cndmask_b32 v{INC}, v{INC}, v{t0}, vcc
    v_cndmask_b32 v{INCW}, v{INCW}, v{t0}, vcc""")
    a_main = a; a = Asm()
    p2_decode(a)
    a(f"""
    s_mul_i32 s28, s{sWAVE}, {RT*512}
    s_add_u32 s28, s28, {MS}
    v_lshrrev_b32 v{t0}, 2, v{q}
    v_lshl_add_u32 v{t1}, v{q}, 5, s28
    v_xor_b32 v{MSW}, v{t0}, v{g}
    v_lshl_add_u32 v{MSW}, v{MSW}, 3, v{t1}
    v_xor_b32 v{KTR}, 1, v{t0}
    v_lshl_add_u32 v{KTR}, v{KTR}, 3, v{t1}
    v_xor_b32 v{t0}, v0, v{g}
    v_lshl_add_u32 v{MSR}, v{t0}, 3, s28
    v_mul_u32_u24 v{t0}, {OP}, v{q}
    v_lshl_add_u32 v{t0}, v{g}, 3, v{t0}
    s_add_u32 s28, s27, {OS}
    v_add_u32 v{OSW}, s28, v{t0}""")
    a(f"v_lshlrev_b32 v{t0}, 2, v{g}\nv_sub_u32 v{t0}, v{t0}, v{q}\nv_mov_b32 v30, {fbits(-1e30)}\nv_mov_b32 v31, 0")
    for r in range(4):
        a(f"""v_add_u32 v{t1}, {r+7}, v{t0}
        v_cmp_gt_u32 vcc, 8, v{t1}
        v_cmp_le_i32 s[30:31], 16, v{t1}
        v_mov_b32 v{ONES+r}, 0x3f803f80
        v_cndmask_b32 v{CC+r}, v30, v31, vcc
        v_cndmask_b32 v{CP+r}, v30, v31, s[30:31]""")
    a(f"""v_cndmask_b32 v{MP}, 0, -1, s[30:31]
    v_cmp_gt_u32 vcc, 16, v0
    v_not_b32 v{MC}, v{MP}
    v_cndmask_b32 v{MG0}, 0, -1, vcc""")
    HA, TG, FP = 38, 30, 29
    a(f"""v_mov_b32 v{TG}, {LN}
    v_mov_b32 v{HA}, {LH2}
    v_lshlrev_b32 v{FP}, 7, v0
    s_lshl_b32 s47, s{sXCD}, 14
    s_add_u32 s47, s47, {FA_OFF}
    s_add_u32 s58, s47, 5120""")
    def hint(k):
        if cfg["hint"] == k: a(f"ds_write_b32 v{HA}, v{HA}")
    c = 20**-0.5 * 1.4426950408889634
    a(f"s_mov_b32 s32, {fbits(c)}\ns_mov_b32 s33, {fbits(c)}\ns_mov_b32 s34, {fbits(-c)}")
    a_main.ext([x for x in a.l if x.startswith("s_load")])
    later = [x for x in a.l if not x.startswith((";", "s_load"))]; a = a_main
    if cfg["cl"] == 0: a.ext(later); later = []
    a("s_waitcnt vmcnt(0)")
    for i in range(3): a(f"ds_write_b64 v247, {v(248+2*i,2)} offset:{2048*i}")
    a("s_waitcnt lgkmcnt(0)")

    def reads(st):
        f = FR[st & 1]; out = []
        sl = st % NW; hi = sl // 3; off = (sl % 3) * WS_
        for j, so in enumerate((0, 160, None, 320)):
            for h in range(2):
                if so is None:
                    out.append(f"ds_read_b64_tr_b16 {v(f+28+4*j+2*h, 2)}, v{WX+h}")
                else:
                    out.append(f"ds_read_b64_tr_b16 {v(f+28+4*j+2*h, 2)}, v{WM+hi} offset:{off + h*3840 + so}")
        xs = ((st >> 1) % NX) * XS
        xr = [f"ds_read_b128 {v(f+4*i, 4)}, v{XA0 + (st & 1)} offset:{xs + i*2048}" for i in range(RT)]
        inc = INCW if sl == NW-1 else INC
        up = [f"v_add_u32{'_e64' if cfg.get('e64', 1) else ''} v{WX+h}, v{WX+h}, v{inc}" for h in range(2)] if st < 19 else []
        if "noup" in cfg.get("exp", ""): up = []
        if "nord" in cfg.get("exp", ""): return up
        return xr[:1] + out + xr[1:] + up
    def mf(st, i):
        f = FR[st & 1]; out = []
        for j in (2, 0, 1, 3):
            d = v(ACC + 16*i + 4*j, 4); cc = d if st else "0"
            x, w = v(f+4*i, 4), v(f+28+4*j, 4)
            out.append(f"v_mfma_f32_16x16x32_bf16 {d}, {x}, {w}, {cc}" if j == 3 else f"v_mfma_f32_16x16x32_bf16 {d}, {w}, {x}, {cc}")
        return out
    a("s_barrier"); stamp(a, cfg, 1)
    a.ext(reads(0))
    a(".p2align 3")
    for st in range(18):
        a("s_waitcnt lgkmcnt(0)")
        a("s_barrier" if st + 1 in bars else "s_nop 0")
        if st == cfg.get("cst", [99, 9])[1]: stamp(a, cfg, 2)
        if st == cfg.get("cst", [99, 9])[0]: stamp(a, cfg, 1)
        ex = [f"ds_read_b64 {v(TG,2)}, v{TG}"] if st == 13 else []
        ex += later[:cfg["cl"]]; later = later[cfg["cl"]:]
        assert st < 12 or not later
        a.ext(interleave(sum((mf(st, i) for i in range(RT)), []), reads(st+1) + ex))
    VPK, VT = FR[1], FR[0]
    A = lambda i, j, r=0: ACC + 16*i + 4*j + r
    cv = lambda d, s0: f"v_cvt_pk_bf16_f32 v{d}, v{s0}, v{s0+1}"
    def pack(i):
        o = [cv(A(i,2,0), A(i,2,0)), cv(A(i,2,1), A(i,2,2)),
             f"ds_write_b64 v{MSW}, {v(A(i,2),2)} offset:{512*i}",
             cv(A(i,0,0), A(i,0,0)), cv(A(i,0,1), A(i,0,2)),
             cv(A(i,1,0), A(i,1,0)), cv(A(i,1,1), A(i,1,2)),
             f"ds_read_b64 {v(A(i,1,2),2)}, v{KTR} offset:{512*i}",
             f"v_and_b32 v{A(i,0,2)}, v{MG0}, v{A(i,2,0)}", f"v_and_b32 v{A(i,0,3)}, v{MG0}, v{A(i,2,1)}",
             f"ds_read_b64_tr_b16 {v(VT+2+2*i, 2)}, v{MSR} offset:{512*i}",
             cv(VPK+2+2*i, A(i,3,0)), cv(VPK+3+2*i, A(i,3,2))]
        if i == 0: o += [f"v_mov_b32 v{r}, 0" for r in (VPK, VPK+1, VT, VT+1)]
        return o
    def smf(i):
        o = [f"v_mfma_f32_16x16x32_bf16 {v(A(i,2),4)}, {v(A(i,1),4)}, {v(A(i,0),4)}, {v(CC,4)}"]
        if i: o.append(f"v_mfma_f32_16x16x32_bf16 {v(A(i,3),4)}, {v(A(i-1,1),4)}, {v(A(i,0),4)}, {v(CP,4)}")
        return o
    def lmax(i):
        o = [f"v_max_f32 v{A(i,2,r)}, v{A(i,2,r)}, v{A(i,3,r)}" for r in range(4)] if i else []
        return o + [f"v_max3_f32 v{T+2*i}, v{A(i,2,0)}, v{A(i,2,1)}, v{A(i,2,2)}", f"v_max_f32 v{T+2*i}, v{T+2*i}, v{A(i,2,3)}"]
    a("s_waitcnt lgkmcnt(0)")
    a("s_barrier" if 19 in bars else "s_nop 0")
    a.ext(interleave(mf(18,0) + mf(18,1) + mf(18,2), reads(19), per=2))
    a("s_waitcnt lgkmcnt(0)\ns_barrier")
    a.ext(mf(19,0))
    for k in range(4):
        mm = mf(18, 3+k) + mf(19, 1+k)
        a.ext(interleave(mm, pack(k), per=2, start=1))
    a.ext(interleave(mf(19,5) + mf(19,6), pack(4), per=2, start=1))
    stamp(a, cfg, 3)
    m = lambda i: T + 2*i
    def xmax(i):
        return [f"v_permlane16_swap_b32 v{m(i)}, v{m(i+1)}", f"v_permlane16_swap_b32 v{m(i+2)}, v{m(i+3)}",
                f"v_max_f32 v{m(i)}, v{m(i)}, v{m(i+1)}", f"v_max_f32 v{m(i+2)}, v{m(i+2)}, v{m(i+3)}", None, None,
                f"v_permlane32_swap_b32 v{m(i)}, v{m(i+2)}", f"v_max_f32 v{m(i)}, v{m(i)}, v{m(i+2)}",
                f"v_mul_f32 v{m(i+2)}, s34, v{m(i)}", f"v_mul_f32 v{m(i)}, s34, v{m(i)}", None, None,
                f"v_permlane32_swap_b32 v{m(i)}, v{m(i+2)}",
                f"v_mov_b32 v{m(i+1)}, v{m(i)}", f"v_mov_b32 v{m(i+3)}, v{m(i+2)}", None,
                f"v_permlane16_swap_b32 v{m(i)}, v{m(i+1)}", f"v_permlane16_swap_b32 v{m(i+2)}, v{m(i+3)}"]
    def fill(main, f):
        f = list(f); out = []
        for x in main:
            if x is not None: out.append(x)
            elif f: out.append(f.pop(0))
        return out + f
    sub = lambda i: [f"v_pk_fma_f32 {v(A(i,2,2*u),2)}, {v(A(i,2,2*u),2)}, s[32:33], {v(m(i),2)} op_sel_hi:[1,1,0]" for u in range(2)]
    def prob(i):
        return [f"v_exp_f32 v{A(i,2,r)}, v{A(i,2,r)}" for r in range(4)] + [cv(m(i), A(i,2,0)), cv(m(i)+1, A(i,2,2))] + \
               [f"v_and_b32 v{A(i,0,u)}, v{MP}, v{m(i)+u}" for u in range(2)] + [f"v_and_b32 v{A(i,0,2+u)}, v{MC}, v{m(i)+u}" for u in range(2)]
    def pv(i):
        return [f"v_mfma_f32_16x16x32_bf16 {v(A(i,1),4)}, {v(ONES,4)}, {v(A(i,0),4)}, 0",
                f"v_mfma_f32_16x16x32_bf16 {v(A(i,2),4)}, {v(VPK+2*i,4)}, {v(A(i,0),4)}, 0",
                f"v_mfma_f32_16x16x32_bf16 {v(A(i,3),4)}, {v(VT+2*i,4)}, {v(A(i,0),4)}, 0"]
    rc = lambda k: f"v_rcp_f32 v{m(k)}, v{A(k,1)}"
    def fin(k):
        return [f"v_pk_mul_f32 {v(A(k,2,2*u),2)}, {v(A(k,2,2*u),2)}, {v(m(k),2)} op_sel_hi:[1,0]" for u in range(4)] + \
               [cv(A(k,0,0), A(k,2,0)), cv(A(k,0,1), A(k,2,2)), f"ds_write_b64 v{OSW}, {v(A(k,0),2)} offset:{16*OP*k}",
                cv(A(k,0,2), A(k,3,0)), cv(A(k,0,3), A(k,3,2))]
    def pp(i, w):
        p = prob(i); a.ext(p[:2] + w[:1] + p[2:4] + w[1:2] + p[4:7] + w[2:] + p[7:])
    def tails(ks):
        a("s_mov_b32 exec_lo, 0\ns_mov_b32 exec_hi, 0xffff")
        for k in ks: a(f"ds_write_b64 v{OSW}, {v(A(k,0,2),2)} offset:{16*OP*k + 16}")
        a("s_mov_b64 exec, -1")
    lw = lambda n: a(f"s_waitcnt lgkmcnt({0 if cfg.get('stamps') else n})")
    lw(3)
    a.ext(interleave(smf(0) + smf(1) + smf(2) + smf(3), pack(5), per=2))
    a.ext(lmax(0) + lmax(1))
    lw(3)
    a.ext(interleave(smf(4), lmax(2), per=3))
    p6 = pack(6)
    a.ext(lmax(3) + p6[:2] + fill(xmax(0), p6[2:]))
    hint(0)
    for i in range(4): a.ext(sub(i))
    a("s_waitcnt lgkmcnt(0)")
    w = smf(5) + smf(6); p = prob(0)
    a.ext(p[:1] + w[:1] + p[1:2] + w[1:2] + p[2:3] + w[2:3] + p[3:4] + w[3:] + p[4:])
    for i in range(1, 4): pp(i, pv(i-1))
    hint(1)
    w = pv(3); l4 = lmax(4)
    a.ext([rc(0), rc(1)] + w[:1] + l4[:2] + w[1:2] + l4[2:4] + w[2:] + l4[4:] + [rc(2)])
    a.ext(fin(0) + [rc(3)] + fin(1) + fin(2) + fin(3))
    tails(range(4))
    a.ext(lmax(5) + lmax(6) + [f"v_mov_b32 v{m(7)}, v{m(6)}"])
    if cfg["two"]: a("s_waitcnt lgkmcnt(0)\ns_barrier")
    hint(2)
    a.ext(fill(xmax(4), []))
    for i in range(4, RT): a.ext(sub(i))
    a.ext(prob(4))
    hint(3)
    pp(5, pv(4)); pp(6, pv(5))
    w = pv(6)
    hint(4)
    if cfg.get("peek", 1):
        a(f"""s_cmp_lg_u32 s{sWAVE}, 0
        s_cbranch_scc1 L_a_npk
        s_mov_b32 exec_hi, 0xff
        buffer_load_dwordx2 v[22:23], v{FP}, s[{SWS}:{SWS+3}], s47 offen sc1
        buffer_load_dwordx2 v[10:11], v{FP}, s[{SWS}:{SWS+3}], s58 offen sc1
        s_mov_b32 exec_hi, -1
L_a_npk:""".replace("v[10:11]", "v[18:19]"))
    a.ext([rc(4)] + w[:1] + [rc(5)] + w[1:])
    a.ext(fin(4) + [rc(6)] + fin(5) + fin(6))
    tails(range(4, RT))
    hint(5)
    stamp(a, cfg, 4)
    a("s_waitcnt lgkmcnt(0)")
    a("s_barrier")
    stamp(a, cfg, 6)
    if cfg.get("stopf"):
        a(f"s_cmp_lg_u32 s{sWAVE}, 0\ns_cbranch_scc1 L_end"); stamp_out(a, cfg); a("s_endpgm")
    a(f"v_mov_b32 v20, v{TG}\nv_mov_b32 v21, v{TG+1}")
    import fz_2
    fz_2.comp_setup(a)
    if cfg.get("peek", 1):
        poll80(a, cfg, False, issued=True)
        a("s_branch L_2_g2")
    else: a("s_branch L_2_go")

def loader_fin(a, cfg):
    import fz_2
    h = cfg["hint"]
    def send(wait):
        a(f"s_cmp_lg_u32 s{sWAVE}, 7\ns_cbranch_scc1 L_a_hy")
        if wait:
            a(f"""v_mov_b32 v86, {LH2}
            s_mov_b32 s59, {1 << 17}
L_a_hw:
            ds_read_b32 v87, v86
            s_sub_u32 s59, s59, 1
            s_cbranch_scc1 L_a_hx
            s_waitcnt lgkmcnt(0)
            v_cmp_eq_u32 vcc, 0, v87
            s_cbranch_vccz L_a_hx
            s_sleep 1
            s_branch L_a_hw
L_a_hx:""")
        flag_store(a, 38, "s55", 84)
        a("L_a_hy:")
    a(f"""L_a_fin:
    v_mov_b32 v2, {LF}
    v_mov_b32 v4, 0
    ds_write_b32 v{fz_2.YF}, v4
    ds_write_b32 v{fz_2.YF}, v4 offset:16
    ds_write_b32 v2, v4
    ds_write_b32 v2, v4 offset:8""")
    if cfg.get("stb") == 50: stamp(a, cfg, 1)
    dbg = cfg.get("stb") == 50
    if cfg["two"]:
        if h < 2: send(True)
        a("s_waitcnt lgkmcnt(0)\ns_barrier")
        if dbg: stamp(a, cfg, 3); a("s_waitcnt lgkmcnt(0)")
        if h == 2: send(False)
        final_store(a, cfg, 0)
        if dbg: stamp(a, cfg, 4)
        if 2 < h < 6: send(True)
    elif h < 6: send(True)
    if cfg.get("fprio"): a(f"s_setprio {cfg['fprio']}")
    a("s_waitcnt lgkmcnt(0)\ns_barrier")
    if cfg.get("stopf"): a("s_endpgm")
    if dbg: stamp(a, cfg, 5); a("s_waitcnt lgkmcnt(0)")
    if h == 6: send(False)
    final_store(a, cfg, 1 if cfg['two'] else 0)
    if dbg: stamp(a, cfg, 6)
    a(f"""s_waitcnt vmcnt({6 if cfg["two"] else 5}) lgkmcnt(0)
    s_cmp_eq_u32 s48, 0
    s_cbranch_scc1 L_a_nlf
    ds_write_b32 v2, v2
L_a_nlf:""")
    wo_put(a)
    a(f"ds_write_b32 v{fz_2.YF}, v2 offset:16")
    if dbg: a("s_waitcnt lgkmcnt(0)"); stamp(a, cfg, 7); a("s_waitcnt vmcnt(0)"); stamp(a, cfg, 8)
    if cfg.get("fprio"): a("s_setprio 0")
    a("s_branch L_2_lb")

def wissue(a, st, pre=None):
    a(f"s_add_u32 m0, s37, {(st % NW) * WS_}")
    for i in range(5):
        if pre: pre(i)
        a(f"buffer_load_dwordx4 v{20+i}, s[{SW}:{SW+3}], s36 offen lds")
        a("s_add_u32 m0, m0, 1024" if i < 4 else f"s_add_u32 s36, s36, {32*3840}")
def xissue(a, c):
    a(f"s_mov_b32 m0, {XB + (c % NX)*XS}\ns_add_u32 s37, s36, {128*c}")
    for i in range(2*RT):
        a(f"buffer_load_dwordx4 v{20 + (i & 1)}, s[{SX}:{SX+3}], s37 offen lds")
        if i < 2*RT-1: a("s_add_u32 m0, m0, 1024\ns_add_u32 s37, s37, 20480")

def xissue_h(a, u):
    c, hf = u >> 1, u & 1
    a(f"s_mov_b32 m0, {XB + (c % NX)*XS + hf*RT*1024}\ns_add_u32 s37, s36, {128*c + hf*RT*20480}")
    for i in range(hf*RT, hf*RT + RT):
        a(f"buffer_load_dwordx4 v{20 + (i & 1)}, s[{SX}:{SX+3}], s37 offen lds")
        if i < hf*RT + RT - 1: a("s_add_u32 m0, m0, 1024\ns_add_u32 s37, s37, 20480")

def loaders_head(a, cfg):
    if cfg.get("lprio"): a(f"s_setprio {cfg['lprio']}")
    a(f"""s_cmp_lg_u32 s{sWAVE}, 7
    s_cbranch_scc1 L_a_wl
    v_lshrrev_b32 v2, 3, v0
    v_and_b32 v3, 7, v0
    v_lshrrev_b32 v4, 4, v0
    v_xor_b32 v3, v3, v4
    v_mul_u32_u24 v2, 2560, v2
    v_lshl_add_u32 v20, v3, 4, v2
    v_xor_b32 v21, 64, v20
    s_lshl_b32 s36, s{sP0}, 1
    s_add_u32 s36, s36, s{sPAR}
    s_mul_i32 s36, s36, 1280
    s_mov_b32 m0, {XB}
    s_mov_b32 s37, s36
    s_movk_i32 s27, {RT}
    s_waitcnt lgkmcnt(0)""")
    if cfg.get("stw"): stamp(a, cfg, 1)
    a(f"""L_a_x0:
    buffer_load_dwordx4 v20, s[{SX}:{SX+3}], s37 offen lds
    s_add_u32 m0, m0, 1024
    s_add_u32 s37, s37, 20480
    buffer_load_dwordx4 v21, s[{SX}:{SX+3}], s37 offen lds
    s_add_u32 m0, m0, 1024
    s_add_u32 s37, s37, 20480
    s_sub_u32 s27, s27, 1
    s_cmp_lg_u32 s27, 0
    s_cbranch_scc1 L_a_x0
    s_branch L_a_xl
L_a_wl:
    s_sub_u32 s27, s{sWAVE}, 4
    s_mul_i32 s28, s27, 320
    v_add_u32 v3, s28, v0
    s_mul_i32 s36, s{sGAM}, 160
    s_mul_i32 s37, s27, 5120
    s_add_u32 s37, s37, {WB}
    s_movk_i32 s28, 2185
    s_movk_i32 s29, 6554
    s_movk_i32 s30, 1120
    s_movk_i32 s31, {4*3840}""")
    for i in range(5):
        a(f"""v_mul_u32_u24 v4, s28, v3
        v_mul_u32_u24 v5, s29, v3
        v_lshrrev_b32 v5, 16, v5
        v_mul_u32_u24 v5, s30, v5
        v_lshl_add_u32 v5, v3, 4, v5
        v_bfe_u32 v6, v4, 18, 1
        v_bfe_u32 v4, v4, 19, 1
        v_sub_u32 v4, v6, v4
        v_mad_i32_i24 v{20+i}, s31, v4, v5""")
        if i < 4: a("v_add_u32 v3, 64, v3")
    a("s_waitcnt lgkmcnt(0)")
    if cfg.get("stw"): stamp(a, cfg, 1)
    wissue(a, 0)
    a("s_branch L_a_w2")

def loaders(a, cfg):
    bars = cfg["bars"]; D = cfg["D"]
    nb = lambda st: min([b for b in bars if b > st] + [20])
    ops = []
    def run(issue, nper, per_steps, nslots, first):
        nonlocal ops
        half = first and cfg.get("xh", 1)
        ops = []; n = 20 // per_steps; issued = 0; wo = 0; hu = 2
        def go():
            nonlocal issued
            if "nodma" not in cfg.get("exp", ""): issue(a, issued)
            ops.extend([issued]*nper); issued += 1
        def goh():
            nonlocal issued, hu
            if "nodma" not in cfg.get("exp", ""): xissue_h(a, hu)
            ops.extend([hu >> 1]*RT); hu += 1; issued = hu >> 1
        ops.extend([0]*nper); issued = 1
        stamp(a, cfg, 2) if cfg.get("stw") else None
        if half:
            while hu < cfg["pro"] + 1: goh()
        else:
            while issued*per_steps < cfg["pro"]: go()
        import fz_2
        later = Asm()
        tag_ptr(later); p2_decode(later); store_addr(later, 32, cfg['two']); wo_setup(later); fz_2.load_setup(later)
        parts = []; cur = []; L = later.l; per = len(L) // len(cfg["lsb"]) + 1
        for i, x in enumerate(L):
            cur.append(x)
            nxt = L[i+1] if i + 1 < len(L) else ""
            if len(cur) >= per and not any(t.startswith(("s_cselect", "s_addc", "s_cbranch")) for t in L[i+1:i+4]): parts.append(cur); cur = []
        parts.append(cur)
        if cfg["lsb"] == [-1]:
            for p_ in parts: a.ext(p_)
        wo_any = lambda c: wo_load(a, c)
        def rdy_check():
            if not first: return
            a(f"s_waitcnt vmcnt({len(ops) - 1 - ops.index('rdy')})\nv_cmp_ne_u64 vcc, {s(sNC,2)}, v[84:85]\ns_and_b32 s27, vcc_lo, s57\ns_cbranch_scc0 L_a_rdy")
            poll(a, fz_2.FV, "s56", "s57", 0, 84, sleep=4)
            a("L_a_rdy:")
        for b in bars:
            if b == cfg["rdy"][1]: rdy_check()
            last = (nb(b) - 1) // per_steps
            assert issued > last
            k = max(i for i, t in enumerate(ops) if t == last)
            a(f"s_waitcnt vmcnt({len(ops) - 1 - k})")
            if cfg.get("stw") and 0 <= b - cfg.get("stb", 0) < 6: stamp(a, cfg, 3 + b - cfg.get("stb", 0))
            a("s_barrier")
            if b == 8: a("s_waitcnt lgkmcnt(0)"); tag_load(a)
            if b == 10:
                tag_check(a, 84)
                if first: a(f"v_mov_b32 v84, s{sNC}\nv_mov_b32 v85, s{sNC+1}\nv_mov_b32 v86, {LN}\nds_write_b64 v86, v[84:85]\nv_mov_b32 v86, {LH2}\nv_mov_b32 v84, 0\nds_write_b32 v86, v84\ns_waitcnt lgkmcnt(0)")
            if first and b == cfg["rdy"][0]:
                a(f"""s_lshl_b32 s57, 0x01010101, s{sCB}
                s_mov_b32 exec_hi, 0
                s_mov_b32 exec_lo, s57
                buffer_load_dwordx2 v[84:85], v{fz_2.FV}, s[{SWS}:{SWS+3}], s56 offen sc1
                s_mov_b64 exec, -1"""); ops.append("rdy")
            if half:
                while hu < 20 and hu < nb(b) + D + 1 and (hu >> 1) < b//2 + nslots: goh()
            else:
                while issued < n and issued*per_steps < nb(b) + D and issued < b//per_steps + nslots: go()
            if b in cfg["lsb"]:
                a.ext(parts.pop(0) if parts else [])
                if b == cfg["lsb"][-1]:
                    for p_ in parts: a.ext(p_)
                    parts = []
            if b == cfg["s2"]: fz_2.load_setup2(a)
            if b in cfg["wob"]:
                assert b >= cfg["rdy"][1]
                wo_any(wo); ops.extend(["wo"]*5); wo += 1
        if cfg["rdy"][1] == 20: rdy_check()
        a("s_barrier")
        npre = 5 - wo; ph = 0 if cfg['pat'] == 2 else -1
        pk = min(npre, cfg["vpk"] if not first else cfg["ppk"]); nv = min(npre, pk + cfg["vat"])
        for k in range(pk): wo_any(wo + k)
        if not first: fz_2.v_peek(a)
        else: a(f"s_add_u32 s57, s49, {FP_OFF - FB_OFF}\ns_mov_b32 exec_hi, {ph}\nbuffer_load_dwordx2 v[84:85], v{fz_2.FV}, s[{SWS}:{SWS+3}], s57 offen sc1\ns_mov_b32 exec_hi, -1")
        for k in range(pk, nv): wo_any(wo + k)
        if cfg["s2"] == 20: fz_2.load_setup2(a)
        if not first:
            a(f"s_waitcnt vmcnt({5*(nv - pk)})"); fz_2.v_try(a, cfg)
        else:
            a(f"s_waitcnt vmcnt({5*(nv - pk)})\ns_mov_b32 exec_hi, {ph}\nv_cmp_ne_u64 vcc, {s(sNC,2)}, v[84:85]\ns_mov_b32 exec_hi, -1\ns_cbranch_vccz L_a_mk")
            poll(a, fz_2.FV, "s57", -1, ph, 84, sleep=2)
            a("L_a_mk:")
        for k in range(nv, npre): wo_any(wo + k)
    a("L_a_w2:")
    run(wissue, 5, 1, NW, False)
    a("s_branch L_a_fin\nL_a_xl:")
    run(xissue, 2*RT, 2, NX, True)
    loader_fin(a, cfg)

def helper(a, cfg):
    a(f"""L_h_o:
    ; re-lay wo in MFMA fragment order (5 waves, one k-step each); workgroups 0..7 also clear one replica of
    s_load_dwordx2 s[{SAUX}:{SAUX+1}], s[0:1], 80
    s_load_dwordx2 s[{SWO}:{SWO+1}], s[0:1], 16
    s_memrealtime s[34:35]
    s_mov_b32 s{SAUX+2}, 256
    s_mov_b32 s{SWO+2}, 819200
    s_mov_b32 s{SWO+3}, 0x20000""")
    p2_decode(a)
    a(f"""v_mov_b32 v3, 0
    s_cmp_ge_u32 s{sWAVE}, 5
    s_cbranch_scc1 L_h_f""")
    for i in range(5):
        a(f"""v_add_u32 v7, {64*i}, v0
        v_mul_u32_u24 v4, 6554, v7
        v_lshrrev_b32 v4, 16, v4
        v_mul_u32_u24 v5, 1120, v4
        v_lshl_add_u32 v5, v7, 4, v5
        v_bfe_u32 v6, v4, 2, 1
        v_bfe_u32 v4, v4, 3, 1
        v_sub_u32 v4, v6, v4
        v_mul_i32_i24 v4, {4*1280}, v4
        v_add_u32 v{26+i}, v5, v4""")
    a(f"""s_mul_i32 s27, s{sN}, 5
    s_add_u32 s27, s27, s{sWAVE}           ; k-step
    s_mul_i32 s38, s27, {32*1280}
    s_mul_i32 s28, s{sXCD}, 160
    s_add_u32 s38, s38, s28
    s_mul_i32 s39, s{sWAVE}, 5120
    s_mov_b32 m0, s39
    s_mul_i32 s28, s{sXCD}, 20
    s_add_u32 s28, s28, s27
    s_mul_i32 s30, s28, 5120
    s_add_u32 s30, s30, {WP_OFF}
    s_add_u32 s31, s30, 4096
    v_lshrrev_b32 v6, 5, v0
    v_bfe_u32 v7, v0, 2, 3
    v_lshl_add_u32 v6, v6, 4, v7
    v_mul_u32_u24 v6, 160, v6
    v_and_b32 v7, 3, v0
    v_lshl_add_u32 v6, v7, 3, v6
    v_add_u32 v6, s39, v6
    v_lshlrev_b32 v5, 4, v0
    s_waitcnt lgkmcnt(0)""")
    for i in range(5):
        a(f"buffer_load_dwordx4 v{26+i}, s[{SWO}:{SWO+3}], s38 offen lds")
        if i < 4: a("s_add_u32 m0, m0, 1024")
    a("s_waitcnt vmcnt(0)")
    for t in range(5):
        for h in range(2): a(f"ds_read_b64_tr_b16 {v(40+4*t+2*h,2)}, v6 offset:{h*1280 + 32*t}")
    a("s_waitcnt lgkmcnt(0)")
    for t in range(5):
        a(f"buffer_store_dwordx4 {v(40+4*t,4)}, v5, s[{SWS}:{SWS+3}], s{30 + t//4} offen offset:{1024*(t & 3)} sc1")
    a(f"""s_branch L_h_p
L_h_f:
    s_xor_b32 s27, s{sWAVE}, 7
    s_or_b32 s27, s27, s2
    s_cbranch_scc1 L_h_p
    s_waitcnt lgkmcnt(0)
    s_or_b32 s34, s34, 1
    v_mov_b32 v4, s34
    v_mov_b32 v5, s35
    s_mov_b64 exec, 1
    buffer_store_dwordx2 v[4:5], v3, s[{SAUX}:{SAUX+3}], 0 offen sc1
    s_mov_b64 exec, -1
L_h_p:
    s_waitcnt lgkmcnt(0)
""")
    stamp(a, cfg, 4)
    a(f"s_cmp_lg_u32 s{sWAVE}, 0\ns_cbranch_scc1 L_h_t0")
    tag_load(a)
    a("L_h_t0:\ns_waitcnt vmcnt(0) lgkmcnt(0)\ns_barrier")
    stamp(a, cfg, 5)
    a(f"s_cmp_eq_u32 s{sWAVE}, 0\ns_cbranch_scc1 L_h_t1")
    tag_load(a)
    a("L_h_t1:")
    tag_check(a, 2)
    a(f"""s_cmp_lg_u32 s{sWAVE}, 0
    s_cbranch_scc1 L_h_nf
    s_lshl_b32 s27, s2, 7
    s_add_u32 s27, s27, {FA_OFF + 96*128}""")
    flag_addr(a, 2, 14, 3)
    flag_store(a, 2, "s27", 4)
    a("L_h_nf:")
    if cfg["pat"] == 2:
        a(f"""; write the "not yet produced" pattern over 1/32 of the branch-A hand-off buffer
        v_lshlrev_b32 v12, 4, v0
        v_mov_b32 v8, -1
        v_mov_b32 v9, -1
        v_mov_b32 v10, -1
        v_mov_b32 v11, -1
        s_lshl_b32 s30, s2, 3
        s_add_u32 s30, s30, s{sWAVE}
        s_lshl_b32 s31, s30, 5
        s_add_u32 s31, s31, {Z_OFF}
        s_mul_i32 s30, s30, 10240
        s_add_u32 s30, s30, {O_OFF}
        s_barrier""")
        for k in range(10):
            a(f"buffer_store_dwordx4 v[8:11], v12, s[{SWS}:{SWS+3}], s30 offen offset:{1024*(k & 3)} sc1")
            if k & 3 == 3: a("s_add_u32 s30, s30, 4096")
        a(f"""s_cmp_lg_u32 s{sWAVE}, 0
        s_cbranch_scc1 L_h_nz
        s_mov_b64 exec, 0xffff
        buffer_store_dwordx4 v[8:11], v12, s[{SWS}:{SWS+3}], s31 offen sc1
        s_mov_b64 exec, -1
L_h_nz:
        s_waitcnt vmcnt(0)
        s_barrier""")
        stamp(a, cfg, 3)
        a(f"""s_cmp_lg_u32 s{sWAVE}, 6
        s_cbranch_scc1 L_2_ent
        s_lshl_b32 s27, s2, 7
        s_add_u32 s27, s27, {FP_OFF}""")
        flag_addr(a, 2, 13, 3)
        flag_store(a, 2, "s27", 4)
    a("s_branch L_2_ent")
```

```python
from fz_common import *
UB, SB = 81920, 122880
sJ, sT, sH, sE, sBETA = 23, 24, 25, 26, 33
SBG = 40

def gen_tile(a, dst, vE, vD, tmp):
    A, B, K, th = tmp, tmp + 8, tmp + 16, tmp + 18
    for m, S in ((0, A), (1, B)):
        for j in range(4):
            if m == 0: a(f"v_mul_f32 v{th+j}, v{vE}, v{vD+j}")
            else: a(f"v_add_f32 v{th+j}, v{K+1}, v{th+j}")
        if m == 0: a(f"v_mul_f32 v{K+1}, 0x41800000, v{vE}")
        for j in range(4): a(f"v_cos_f32 v{S+j}, v{th+j}\nv_sin_f32 v{S+4+j}, v{th+j}")
    a(f"v_cos_f32 v{K}, v{K+1}")
    def pack(m, S):
        d = dst + 4*(m >> 1) + 2*(m & 1)
        a(f"v_cvt_pk_bf16_f32 v{d}, v{S}, v{S+1}\nv_cvt_pk_bf16_f32 v{d+1}, v{S+2}, v{S+3}")
        a(f"v_cvt_pk_bf16_f32 v{d+20}, v{S+4}, v{S+5}\nv_cvt_pk_bf16_f32 v{d+21}, v{S+6}, v{S+7}")
    pack(0, A)
    a(f"v_add_f32 v{K}, v{K}, v{K}")
    pack(1, B)
    for m in range(2, 10):
        P, C = (A, B) if m % 2 == 0 else (B, A)
        for u in range(4):
            a(f"v_pk_fma_f32 {v(P+2*u,2)}, {v(C+2*u,2)}, {v(K,2)}, {v(P+2*u,2)} op_sel_hi:[1,0,1] neg_lo:[0,0,1] neg_hi:[0,0,1]")
        pack(m, P)

_bg = [0]
def bg(a):
    _bg[0] += 1
    a(f"""s_sub_i32 s46, s46, 1
    s_cmp_lt_i32 s46, 0
    s_cbranch_scc1 L_bg{_bg[0]}
    buffer_load_dword v1, v12, s[{SBG}:{SBG+3}], s44 offen
    s_add_u32 s44, s44, s45
L_bg{_bg[0]}:""")

def b1(a, cfg):
    MAT = 40
    GF = 120
    TMP = 216
    c0 = cfg.get("bstart", 5)
    a(f"""L_b1:
    s_sub_u32 s{sBETA}, s{sN}, 4""")
    a(f"""s_cmp_ge_u32 s{sWAVE}, 3
    s_cselect_b32 s27, {c0+1}, {c0}
    s_mul_i32 s28, s27, s45
    s_add_u32 s44, s44, s28
    s_lshl_b32 s45, s45, 1
    s_sub_u32 s46, 11, s27
    s_lshr_b32 s46, s46, 1
    s_cmp_ge_u32 s{sWAVE}, 6
    s_cselect_b32 s46, 0, s46
    s_lshr_b32 s{sJ}, s{sBETA}, 1
    s_lshl_b32 s{sJ}, s{sJ}, 3
    s_add_u32 s{sJ}, s{sJ}, s{sXCD}
    s_and_b32 s{sE}, s{sBETA}, 1
    s_and_b32 s{sT}, s{sWAVE}, 3
    s_lshr_b32 s{sH}, s{sWAVE}, 2
    s_sub_u32 s27, 2048, s{sJ}
    s_cmp_eq_u32 s{sJ}, 0
    s_cselect_b32 s27, 32, s27
    s_cselect_b32 s28, 64, -64
    s_cmp_eq_u32 s{sH}, 0
    s_cselect_b32 s27, s{sJ}, s27
    s_cselect_b32 s28, 64, s28
    s_lshl_b32 s29, s{sT}, 3
    v_lshrrev_b32 v2, 3, v0
    v_add_u32 v2, s29, v2
    v_mul_i32_i24 v2, s28, v2
    v_add_u32 v2, s27, v2
    v_lshrrev_b32 v3, 4, v0
    v_lshlrev_b32 v3, 1, v3
    v_and_b32 v4, 7, v0
    v_xor_b32 v3, v3, v4
    v_mul_u32_u24 v2, 1280, v2
    v_lshl_add_u32 v15, v3, 4, v2
    s_mul_i32 s30, s{sE}, 640
    s_lshl_b32 s31, s{sWAVE}, 10
    s_lshl_b32 s29, s30, 6
    s_add_u32 m0, s29, s31""")
    nx = [0]
    def xdma(n):
        for _ in range(n):
            a(f"buffer_load_dwordx4 v15, s[{SX}:{SX+3}], s30 offen lds")
            nx[0] += 1
            if nx[0] == 5:
                a(f"s_xor_b32 s30, s{sE}, 1\ns_mul_i32 s30, s30, 640\ns_lshl_b32 s29, s30, 6\ns_add_u32 m0, s29, s31")
            else:
                a("s_add_u32 m0, m0, 8192\ns_add_u32 s30, s30, 128")
    xdma(4)
    p2_decode(a); tag_ptr(a)
    p, g = 13, 14
    a(f"""v_and_b32 v{p}, 15, v0
    v_lshrrev_b32 v{g}, 4, v0
    s_mul_i32 s35, s{sE}, 0x80008000""")
    for i in range(2):
        a(f"""s_and_b32 s{sT}, s{sWAVE}, 1
        s_lshl_b32 s{sT}, s{sT}, 1
        s_add_u32 s{sT}, s{sT}, {i}
        s_add_u32 s27, s{sT}, 1
        s_and_b32 s27, s27, 2                  ; T in (1,2)
        s_cselect_b32 s48, 0x41800000, 0
        s_cselect_b32 s49, {fbits(-0.25)}, 0
        s_mov_b32 s50, 0
        s_mov_b32 s51, 1.0
        s_mov_b32 s53, 1.0
        s_and_b32 s27, s{sT}, 1
        s_cselect_b32 s52, -1.0, 1.0
        s_mov_b32 s54, s52
        s_cmp_lg_u32 s{sJ}, 0
        s_cbranch_scc1 L_b_g{i}
        s_and_b32 s27, s{sT}, 1
        s_cselect_b32 s49, {fbits(-0.25)}, 0
        s_cselect_b32 s53, 0, 1.0
        s_cmp_ge_u32 s{sT}, 2
        s_cselect_b32 s50, {fbits(1/64)}, 0
        s_cselect_b32 s51, 0, 1.0
        s_cselect_b32 s52, s52, 0
        s_cselect_b32 s54, 1.0, -1.0
        s_and_b32 s27, s{sT}, 1
        s_cselect_b32 s54, s54, 0
    L_b_g{i}:
        v_cvt_f32_u32 v4, v{p}
        v_cmp_eq_u32 vcc, 0, v{p}
        v_mov_b32 v5, s49
        v_fmac_f32 v5, s50, v4                 ; phi (p != 0)
        v_mov_b32 v6, s48
        v_cndmask_b32 v4, v4, v6, vcc          ; P
        v_mul_f32 v4, {fbits(1/32)}, v4
        v_cndmask_b32 v5, v5, 0, vcc
        v_mov_b32 v6, s51
        v_mov_b32 v7, s53
        v_cndmask_b32 v6, v6, v7, vcc          ; A0
        v_mov_b32 v7, s52
        v_mov_b32 v8, s54
        v_cndmask_b32 v7, v7, v8, vcc          ; A1
        v_lshrrev_b32 v8, 1, v{g}
        v_and_b32 v9, 1, v{g}
        v_lshlrev_b32 v9, 2, v9
        v_lshl_add_u32 v8, v8, 4, v9
        v_cvt_f32_u32 v8, v8
        v_fmac_f32 v5, v4, v8""")
        for sl in range(8):
            k = 8*(sl >> 2) + (sl & 3)
            a(f"v_mov_b32 v9, {fbits(float(k))}\nv_fma_f32 v{TMP+sl}, v4, v9, v5\nv_cos_f32 v{TMP+sl}, v{TMP+sl}")
        for ks in range(2):
            for sl in range(8): a(f"v_mul_f32 v{TMP+8+sl}, v{6+ks}, v{TMP+sl}")
            for u in range(4): a(f"v_cvt_pk_bf16_f32 v{GF+16*i+4*ks+u}, v{TMP+8+2*u}, v{TMP+9+2*u}")

        for u in range(8): a(f"v_xor_b32 v{GF+16*i+8+u}, s35, v{GF+16*i+u}")
        if i == 0: xdma(1)
    XA, AR, AI, UW, SG = 2, 6, 7, 16, 17
    a(f"""v_bfe_u32 v10, v0, 2, 3
    v_lshrrev_b32 v11, 5, v0
    v_lshl_add_u32 v11, v11, 4, v10
    v_lshlrev_b32 v11, 7, v11
    v_and_b32 v10, 6, v10                  ; swizzle
    v_bfe_u32 v8, v0, 1, 1
    s_and_b32 s27, s{sWAVE}, 2
    v_or_b32 v8, s27, v8
    v_xor_b32 v10, v10, v8
    v_lshl_add_u32 v11, v10, 4, v11
    v_and_b32 v10, 1, v0
    v_lshl_add_u32 v{XA}, v10, 3, v11
    s_lshl_b32 s28, s{sH}, 13
    v_add_u32 v{XA}, s28, v{XA}
    v_xor_b32 v{XA+1}, 64, v{XA}
    v_add_u32 v{XA+2}, 40960, v{XA}
    v_add_u32 v{XA+3}, 40960, v{XA+1}
    s_lshl_b32 s27, s27, 2
    s_lshl_b32 s28, s{sH}, 11
    s_add_u32 s27, s27, s28
    s_mul_i32 s28, s{sT}, 5120
    s_add_u32 s27, s27, s28
    s_add_u32 s27, s27, {UB}
    v_lshl_add_u32 v10, v0, 4, s27
    v_add_u32 v11, 20480, v10
    v_subrev_u32 v{UW}, 5120, v10
    s_cmp_eq_u32 s{sE}, 0
    s_cselect_b64 vcc, -1, 0
    s_xor_b32 s27, s{sT}, 3
    s_or_b32 s27, s27, s{sJ}
    s_cselect_b32 s28, 0, 0x00010001
    s_or_b32 vcc_lo, vcc_lo, s28
    s_or_b32 vcc_hi, vcc_hi, s28
    v_cndmask_b32 v{AR}, v11, v10, vcc
    v_cndmask_b32 v{AI}, v10, v11, vcc
    v_mov_b32 v10, s35
    v_cndmask_b32 v{SG}, 0, v10, vcc""")
    xdma(1)
    a(f"""s_sub_u32 s27, 3, s{sE}
    s_cmp_lt_u32 s{sWAVE}, s27
    s_cselect_b32 s50, 1, 0
    s_cselect_b32 s49, 0, 2
    s_mul_i32 s28, s{sE}, 5
    s_add_u32 s28, s28, s{sWAVE}
    s_sub_u32 s28, s28, 3
    s_lshl_b32 s29, s{sWAVE}, 1
    s_cmp_lg_u32 s50, 0
    s_cselect_b32 s48, s29, s28
    s_cmp_lg_u32 s{sE}, 0
    s_cselect_b32 s49, 1, s49
    v_lshlrev_b32 v8, 2, v{g}
    v_cvt_f32_u32 v208, v8
    v_add_f32 v209, 1.0, v208
    v_add_f32 v210, 2.0, v208
    v_add_f32 v211, 2.0, v209""")
    for k in range(2):
        if k == 1: a("s_cmp_eq_u32 s50, 0\ns_cbranch_scc1 L_b_gd")
        a(f"""s_lshl_b32 s27, s48, 6
        s_add_u32 s27, s27, s49
        s_add_u32 s27, s27, {64*k}
        v_lshl_add_u32 v8, v{p}, 2, s27
        v_cvt_f32_u32 v8, v8
        v_mul_f32 v8, {fbits(1/640)}, v8""")
        gen_tile(a, MAT + 40*k, 8, 208, TMP)
        if k == 0:
            xdma(4)
            if -1 in cfg["bgs"]:
                a(f"buffer_load_dword v1, v12, s[{SBG}:{SBG+3}], s44 offen\ns_add_u32 s44, s44, s45\ns_sub_i32 s46, s46, 1")
    a("L_b_gd:")
    gP, gM, gM0, UA = 8, 9, 10, 11
    a(f"""s_lshl_b32 s51, s{sE}, 8
    s_add_u32 s51, s51, 768
    s_lshl_b32 s27, s51, 2
    v_mul_u32_u24 v{gP}, s27, v{g}
    s_mul_i32 s27, s51, 29
    v_sub_u32 v{gM}, s27, v{gP}
    v_cmp_eq_u32 s[54:55], 0, v{g}
    s_mul_i32 s27, s51, 13
    v_mov_b32 v{gM0}, s27
    s_cmp_eq_u32 s{sJ}, 0
    v_cndmask_b32 v{gM0}, v{gM}, v{gM0}, s[54:55]
    s_cselect_b64 s[56:57], s[54:55], 0
    s_lshr_b32 s27, s49, 1
    s_mul_i32 s27, s27, 20480
    s_add_u32 s27, s27, {UB}
    v_lshl_add_u32 v{UA}, v0, 4, s27""")
    stamp(a, cfg, 1)
    a(f"s_waitcnt vmcnt({1 if -1 in cfg['bgs'] else 0}) lgkmcnt(0)\ns_barrier")
    stamp(a, cfg, 2)
    if cfg.get("stamps"): a("s_waitcnt lgkmcnt(0)")
    XF = (152, 184); AC = (216, 232); T = 248
    cv = lambda d, s0: f"v_cvt_pk_bf16_f32 v{d}, v{s0}, v{s0+1}"
    def rd(tp):
        out = []
        for r in range(4):
            cb = (10*r + 2*tp) // 4; reg = XA + ((r + tp) & 1) + 2*(cb // 5)
            for ks in range(2):
                for h in range(2):
                    out.append(f"ds_read_b64_tr_b16 {v(XF[tp&1] + 8*r + 4*ks + 2*h, 2)}, v{reg} offset:{(cb % 5)*8192 + ks*4096 + h*1024}")
        return out
    def mf(tp):
        out = []
        for r0 in (0, 2):
            for ks in range(2):
                for r in (r0, r0+1):
                    for i in range(2):
                        d = v(AC[tp&1] + 8*i + 4*(r & 1), 4)
                        neg = ((0, 1, 1, 0), (0, 0, 1, 1))[i][r]
                        out.append(f"v_mfma_f32_16x16x32_bf16 {d}, {v(XF[tp&1] + 8*r + 4*ks, 4)}, {v(GF + 16*i + 8*neg + 4*ks, 4)}, {d if (ks or r0) else 0}")
        return out
    def fin1(tp, odd):
        out = []
        for i in range(2):
            c = AC[tp & 1] + 8*i; P = c
            if not odd:
                out += [f"v_add_f32 v{T+4+u}, v{c+u}, v{c+4+u}" for u in range(4)] + [f"v_sub_f32 v{c+4+u}, v{c+u}, v{c+4+u}" for u in range(4)]
                P = T + 4
            out += [cv(c, P), cv(c+1, P+2), cv(c+2, c+4), cv(c+3, c+6)]
            if i and odd: out += [f"v_xor_b32 v{c+2}, v{SG}, v{c+2}", f"v_xor_b32 v{c+3}, v{SG}, v{c+3}"]
            if i: out += [f"ds_write_b64 v{AR}, {v(c,2)} offset:{1024*tp}", f"ds_write_b64 v{AI}, {v(c+2,2)} offset:{1024*tp}"]
            else: out += [f"ds_write_b64 v{UW}, {v(c,2)} offset:{1024*tp}", f"ds_write_b64 v{UW}, {v(c+2,2)} offset:{20480 + 1024*tp}"]
        return out
    UF = (120, 152, 184); HA0 = 216; E = 120; PK = 136
    def rdh(kp, odd):
        return [f"ds_read_b128 {v(UF[kp%3] + 16*ab + 4*t, 4)}, v{UA} offset:{ab*20480 + (5*t + kp)*1024}" for ab in range(2 if odd else 1) for t in range(4)]
    def mfh(kp, odd, n):
        out = []
        if odd:
            for ab in range(2):
                for k in range(n):
                    for t in range(4):
                        d = v(HA0 + 20*k + 4*t, 4)
                        out.append(f"v_mfma_f32_16x16x32_bf16 {d}, {v(UF[kp%3] + 16*ab + 4*t, 4)}, {v(MAT + 40*k + 20*ab + 4*kp, 4)}, {d if (kp or ab) else 0}")
        else:
            for k in range(n):
                for q, (t, sn) in enumerate(((0, 0), (1, 1), (2, 0), (3, 1), (3, 0))):
                    d = v(HA0 + 20*k + 4*q, 4)
                    out.append(f"v_mfma_f32_16x16x32_bf16 {d}, {v(UF[kp%3] + 4*t, 4)}, {v(MAT + 40*k + 20*sn + 4*kp, 4)}, {d if kp else 0}")
        return out
    def hidden(odd, n):
        w = 8 if odd else 4
        for kp in range(5):
            a(f"s_waitcnt lgkmcnt({w if kp < 4 else 0})")
            a.ext(interleave(mfh(kp, odd, n), rdh(kp+2, odd) if kp < 3 else []))
    def put(pitch):
        a(f"v_add_u32 v3, v2, v{gP}\nv_add_u32 v4, v2, v{gM}\nv_add_u32 v5, v2, v{gM0}")
        for rr in range(4):
            a(f"ds_write_b32 v3, v{PK+rr} offset:{rr*pitch}")
            a(f"ds_write_b32 v{4 if rr else 5}, v{PK+4+rr} offset:{(3-rr)*pitch}")
    def tile(odd, k, u):
        HA = HA0 + 20*k
        a(f"""s_add_u32 s27, s48, {k}
        s_lshl_b32 s27, s27, 4
        v_add_u32 v7, s27, v{p}
        v_mul_u32_u24 v6, 3277, v7
        v_lshrrev_b32 v6, 16, v6
        v_mul_u32_u24 v2, 20, v6
        v_sub_u32 v7, v7, v2""")
        if odd:
            a(f"v_lshlrev_b32 v2, 7, v6\nv_lshl_add_u32 v2, v7, 2, v2\nv_add_u32 v2, {SB}, v2")
        else:
            a(f"""s_cmp_eq_u32 s49, 0
            s_cselect_b32 s27, 80, 0
            s_add_u32 s27, s27, {SB}
            v_mul_u32_u24 v2, 192, v6
            v_lshl_add_u32 v2, v7, 2, v2
            v_add_u32 v2, s27, v2
            v_cmp_gt_u32 vcc, 4, v6
            v_mov_b32 v15, {SB + 176}
            v_cndmask_b32 v2, v15, v2, vcc""")
        if not odd: a(f"v_cndmask_b32 v{HA+12}, v{HA+12}, v{HA+16}, s[56:57]")
        for op, d, x, y in (("sub", E, HA, HA+4), ("add", E+8, HA, HA+4), ("add", E+4, HA+12, HA+8), ("sub", E+12, HA+12, HA+8)):
            for uu in range(4): a(f"v_{op}_f32 v{d+uu}, v{x+uu}, v{y+uu}")
        for kk, t in enumerate((0, 3, 2, 1)):
            a(f"v_cndmask_b32 v{E+4*kk}, v{E+4*kk}, v{HA+4*t}, s[54:55]")
        for rr in range(4):
            a(f"v_cvt_pk_bf16_f32 v{PK+rr}, v{E+rr}, v{E+4+rr}\nv_cvt_pk_bf16_f32 v{PK+4+rr}, v{E+8+rr}, v{E+12+rr}")
        put(1024 if odd else 768)
        if not odd:
            a(f"""s_cmp_lg_u32 s49, 0
            s_cbranch_scc1 L_b_nd{u}
            v_mul_u32_u24 v2, 192, v6
            v_add_u32 v2, {SB - 192 + 160}, v2
            v_cmp_eq_u32 vcc, 0, v7
            v_cmp_lt_u32 s[28:29], 0, v6
            s_and_b64 vcc, vcc, s[28:29]
            v_cndmask_b32 v2, v15, v2, vcc""")
            put(768)
            a(f"L_b_nd{u}:")
    def mark():
        _bg[0] += 1
        a(f"""s_cmp_lt_u32 s{sWAVE}, 3
        s_cbranch_scc1 L_mk{_bg[0]}
        v_lshlrev_b32 v18, 4, v0
        v_mov_b32 v20, -1
        v_mov_b32 v21, -1
        v_mov_b32 v22, -1
        v_mov_b32 v23, -1
        s_sub_u32 s27, s2, 32
        s_lshl_b32 s29, s27, 7
        s_add_u32 s29, s29, {Z_OFF}
        s_mul_i32 s27, s27, 5
        s_add_u32 s27, s27, s{sWAVE}
        s_sub_u32 s27, s27, 3
        s_lshl_b32 s27, s27, 13
        s_add_u32 s27, s27, {O_OFF}
        s_add_u32 s28, s27, 4096""")
        for k in range(8): a(f"buffer_store_dwordx4 v[20:23], v18, s[{SWS}:{SWS+3}], s{27 + k//4} offen offset:{1024*(k & 3)} sc1")
        a(f"""s_cmp_lg_u32 s{sWAVE}, 7
        s_cbranch_scc1 L_mk{_bg[0]}
        s_mov_b64 exec, 0xff
        buffer_store_dwordx4 v[20:23], v18, s[{SWS}:{SWS+3}], s29 offen sc1
        s_mov_b64 exec, -1
L_mk{_bg[0]}:""")
    B = lambda k: bg(a) if k in cfg["bgs"] else None
    a.ext(rd(0))
    B(0)
    a("s_waitcnt lgkmcnt(0)")
    a.ext(interleave(mf(0), rd(1), per=2))
    B(1)
    a(f"s_waitcnt lgkmcnt(0)\ns_cmp_eq_u32 s{sE}, 0\ns_cbranch_scc1 L_b_ev")
    for odd in (1, 0):
        if not odd: a("L_b_ev:")
        a(f"s_cmp_eq_u32 s{sH}, 0\ns_cbranch_scc1 L_b_s2{odd}")
        a.ext(interleave(mf(1), rd(2) + fin1(0, odd), per=2))
        a("s_waitcnt lgkmcnt(4)")
        a.ext(interleave(mf(2), fin1(1, odd), per=2, start=3))
        a.ext(fin1(2, odd))
        a(f"s_branch L_b_s3{odd}\nL_b_s2{odd}:\ns_nop 3")
        a.ext(interleave(mf(1), fin1(0, odd), per=2, start=3))
        a.ext(fin1(1, odd))
        a(f"L_b_s3{odd}:")
        B(2)
        a("s_waitcnt lgkmcnt(0)\ns_barrier")
        stamp(a, cfg, 3)
        if cfg.get("stamps"): a("s_waitcnt lgkmcnt(0)")
        a.ext(rdh(0, odd) + rdh(1, odd))
        if cfg["pat"] == 0: mark()
        a(f"s_cmp_eq_u32 s50, 0\ns_cbranch_scc1 L_b_h1{odd}")
        hidden(odd, 2); B(3); tile(odd, 0, f"a{odd}"); tile(odd, 1, f"b{odd}")
        a(f"s_branch L_b_end\nL_b_h1{odd}:")
        hidden(odd, 1); B(3); tile(odd, 0, f"c{odd}")
        if odd: a("s_branch L_b_end")
    a("L_b_end:")
    tag_load(a)
    if cfg["pat"] == 1: mark()
    stamp(a, cfg, 4)
    a(f"""s_lshl_b32 s27, s{sWAVE}, 10
    v_lshl_add_u32 v2, v0, 4, s27
    v_add_u32 v3, {SB}, v2
    s_mul_i32 s28, s{sJ}, {VJ}
    s_add_u32 s28, s28, {V_OFF + 32768}
    s_lshl_b32 s27, s{sE}, 15
    s_sub_u32 s28, s28, s27""")
    tag_check(a, 4)
    a(f"""{"s_waitcnt vmcnt(0)" if cfg["pat"] < 2 else ""}
    s_barrier
    s_lshl_b32 s29, s{sJ}, 1
    s_add_u32 s29, s29, s{sE}
    s_lshl_b32 s29, s29, 7""")
    if cfg["pat"] < 2:
        a(f"""s_cmp_lg_u32 s{sWAVE}, 7
        s_cbranch_scc1 L_b_np
        s_add_u32 s27, s29, {FP_OFF}""")
        flag_addr(a, 4, 13, 5); flag_store(a, 4, "s27", 6)
        a("L_b_np:")
    for k in range(4): a(f"ds_read_b128 {v(16+4*k,4)}, v3 offset:{8192*k}")
    for k in range(4):
        if k == 3: a(f"s_cmp_eq_u32 s{sE}, 0\ns_cbranch_scc1 L_b_n6")
        a(f"s_waitcnt lgkmcnt({3-k})\nbuffer_store_dwordx4 {v(16+4*k,4)}, v2, s[{SWS}:{SWS+3}], s28 offen sc1\ns_add_u32 s28, s28, 8192")
    a("L_b_n6:")
    a(f"""s_waitcnt vmcnt(0) lgkmcnt(0)
    s_barrier""")
    stamp(a, cfg, 5)
    a(f"""s_cmp_lg_u32 s{sWAVE}, 0
    s_cbranch_scc1 L_2_ent
    s_add_u32 s27, s29, {FB_OFF}
""")
    flag_addr(a, 2, 13, 3)
    flag_store(a, 2, "s27", 4)
    a("s_branch L_2_ent")
```

```python
import os
from gl import *
RT = 7; STEP = 16*RT - 7
if os.environ.get("BIGRING"):
    XB, XS, NX = 0, 14336, 4
    WB, WS_, NW = 57344, 15360, 6
else:
    XB, XS, NX = 40960, 14336, 3
    WB, WS_, NW = 83968, 15360, 4
MS = 149504
OP = 176
OS = MS - 112*OP
VB, VP = 102400, 2576
OB = 112896
LF = 112800
YB = OS
O_OFF, V_OFF, Z_OFF, FA_OFF, FB_OFF, ST_OFF, WP_OFF = 0, 0x300000, 0x280000, 0x500000, 0x520000, 0x600000, 0x700000
FP_OFF = 0x530000
VJ = 57344
WSREC = 0x800000
BIG = 0x40000000
SPIN = int(os.environ.get('SPIN', 3000))
SX, SW, SWS, SAUX = 4, 8, 12, 16
sWAVE, sXCD, sN = 20, 21, 22
sCB, sT1 = 84, 85
SWO, SO = 88, 92

def stamp(a, cfg, k):
    if cfg.get("stamps"): a(f"{'s_memtime' if cfg['stamps'] == 'cyc' else 's_memrealtime'} s[{60+2*k}:{61+2*k}]")
def stamp_out(a, cfg, n=12):
    if not cfg.get("stamps"): return
    a(f"s_waitcnt lgkmcnt(0)\ns_mul_i32 s58, s2, {8*12}\ns_add_u32 s58, s58, {ST_OFF}\nv_mov_b32 v1, 0")
    for k in range(n):
        a(f"v_mov_b32 v2, s{60+2*k}\nv_mov_b32 v3, s{61+2*k}\nbuffer_store_dwordx2 v[2:3], v1, s[{SWS}:{SWS+3}], s58 offen offset:{8*k}\ns_nop 1")

def p2_decode(a):
    a(f"""s_load_dwordx2 s[{SO}:{SO+1}], s[0:1], 72
    s_and_b32 s{sCB}, s{sN}, 7
    s_lshr_b32 s86, s{sN}, 4
    s_lshl_b32 s86, s86, 3
    s_add_u32 s86, s86, s{sXCD}
    s_sub_u32 s87, 32, s86
    s_cmp_eq_u32 s86, 0
    s_cselect_b32 s87, 16, s87
    s_bitcmp1_b32 s{sN}, 3
    s_cselect_b32 s{sT1}, s87, s86
    s_mov_b32 s{SO+2}, 2621440
    s_mov_b32 s{SO+3}, 0x20000""")

_uid = [0]
sNC = 96
LN = MS + 8192
LG = LF + 8
LY = LF + 16
def poll(a, voff, soff, lo, hi, tmp, sleep=1, tag=None, issued=False):
    _uid[0] += 1; u = _uid[0]
    a(f"""s_mov_b32 exec_lo, {lo}
    s_mov_b32 exec_hi, {hi}
    s_movk_i32 s59, {SPIN}
    {f"s_branch L_pm{u}" if issued else ""}
L_pl{u}:
    buffer_load_dwordx2 {v(tmp,2)}, v{voff}, s[{SWS}:{SWS+3}], {soff} offen sc1
L_pm{u}:
    s_sub_u32 s59, s59, 1
    s_cbranch_scc1 L_pd{u}
    s_waitcnt vmcnt(0)
    v_cmp_ne_u64 vcc, {tag or s(sNC,2)}, {v(tmp,2)}
    s_cbranch_vccz L_pd{u}
    s_mov_b64 exec, vcc
    s_sleep {sleep}
    s_branch L_pl{u}
L_pd{u}:
    s_mov_b64 exec, -1""")

def tag_ptr(a):
    a(f"s_load_dwordx2 s[{SAUX}:{SAUX+1}], s[0:1], 80\ns_mov_b32 s{SAUX+2}, 256")
def tag_load(a):
    a(f"s_load_dwordx2 {s(sNC,2)}, s[{SAUX}:{SAUX+1}], 0")
def tag_check(a, tmp):
    _uid[0] += 1; u = _uid[0]
    a(f"""s_waitcnt lgkmcnt(0)
    s_cmp_lg_u32 s{sNC}, 0
    s_cbranch_scc1 L_tg{u}
    s_movk_i32 s59, {SPIN}
    v_mov_b32 v{tmp+2}, 0
L_th{u}:
    s_sleep 8
    buffer_load_dwordx2 {v(tmp,2)}, v{tmp+2}, s[{SAUX}:{SAUX+3}], 0 offen sc1
    s_waitcnt vmcnt(0)
    v_readfirstlane_b32 s{sNC}, v{tmp}
    v_readfirstlane_b32 s{sNC+1}, v{tmp+1}
    s_sub_u32 s59, s59, 1
    s_cbranch_scc1 L_tg{u}
    s_cmp_eq_u32 s{sNC}, 0
    s_cbranch_scc1 L_th{u}
    s_nop 1
L_tg{u}:""")
def flag_addr(a, vo, sh, t):
    a(f"v_lshrrev_b32 v{vo}, 3, v0\nv_lshlrev_b32 v{vo}, {sh}, v{vo}\nv_and_b32 v{t}, 7, v0\nv_lshl_add_u32 v{vo}, v{t}, 4, v{vo}")
def flag_store(a, vo, soff, tmp):
    for k in range(4): a(f"v_mov_b32 v{tmp+k}, s{sNC + (k & 1)}")
    a(f"buffer_store_dwordx4 {v(tmp,4)}, v{vo}, s[{SWS}:{SWS+3}], {soff} offen sc1")

def wo_setup(a):
    a(f"""v_lshlrev_b32 v26, 4, v0
    s_sub_u32 s27, s{sWAVE}, 4
    s_mul_i32 s39, s27, 5120
    s_mul_i32 s38, s{sCB}, 102400
    s_add_u32 s38, s38, s39
    s_add_u32 s38, s38, {WP_OFF}""")
def wo_issue(a):
    a("s_mov_b32 m0, s39\ns_add_u32 s39, s39, 20480")
    for i in range(4):
        a(f"buffer_load_dwordx4 v26, s[{SWS}:{SWS+3}], s38 offen offset:{1024*i} sc1 lds")
    a(f"""s_add_u32 m0, m0, 4096
    s_add_u32 s38, s38, 4096
    buffer_load_dwordx4 v26, s[{SWS}:{SWS+3}], s38 offen sc1 lds
    s_add_u32 s38, s38, {20480-4096}""")

WR = 156
def wo_load(a, c):
    for i in range(5):
        if i == 4: a("s_add_u32 s38, s38, 4096")
        a(f"buffer_load_dwordx4 {v(WR+20*c+4*i,4)}, v26, s[{SWS}:{SWS+3}], s38 offen offset:{1024*(i & 3)} sc1")
    a(f"s_add_u32 s38, s38, {20480-4096}")
def wo_put(a):
    a("v_add_u32 v26, s39, v26\nv_add_u32 v27, 61440, v26")
    for c in range(5):
        for i in range(5):
            a(f"ds_write_b128 v{26 + c//3}, {v(WR+20*c+4*i,4)} offset:{(c % 3)*20480 + 1024*i}")

LH = LF + 12
LW = LF + 32
def wait_lw(a, t):
    _uid[0] += 1; u = _uid[0]
    a(f"""v_mov_b32 v{t+4}, {LW}
    s_mov_b32 s59, {1 << 17}
L_lw{u}:
    ds_read_b128 {v(t,4)}, v{t+4}
    s_sub_u32 s59, s59, 1
    s_cbranch_scc1 L_lx{u}
    s_waitcnt lgkmcnt(0)
    v_min3_u32 v{t}, v{t}, v{t+1}, v{t+2}
    v_min_u32 v{t}, v{t}, v{t+3}
    v_cmp_eq_u32 vcc, 0, v{t}
    s_cbranch_vccz L_lx{u}
    s_sleep 1
    s_branch L_lw{u}
L_lx{u}:""")

def touch_slot(a, u, slot, vo, srd, so, ss):
    a(f"""s_lshl_b32 s28, s{slot}, 6
    v_add_u32 v3, s28, v0
    s_cmp_ge_u32 s{slot}, 15
    s_cbranch_scc1 L_ts_x{u}
    v_mul_u32_u24 v4, 13108, v3
    v_lshrrev_b32 v4, 16, v4
    v_mul_u32_u24 v4, 640, v4
    v_lshl_add_u32 v{vo}, v3, 7, v4
    s_lshr_b32 s{so}, s{sXCD}, 2
    s_mul_i32 s{so}, s{so}, 640
    s_mov_b32 s{ss}, {64*3840}
    s_mov_b32 s{srd+2}, 2457600
    s_waitcnt lgkmcnt(0)
    s_mov_b32 s{srd}, s{SW}
    s_mov_b32 s{srd+1}, s{SW+1}
    s_branch L_ts_d{u}
L_ts_x{u}:
    v_subrev_u32 v3, 960, v3
    v_mul_u32_u24 v{vo}, 2560, v3
    s_bfe_u32 s28, s{sXCD}, 0x10001
    s_mul_i32 s28, s28, {5*STEP*2}
    s_and_b32 s29, s{sXCD}, 1
    s_add_u32 s28, s28, s29
    s_mul_i32 s{so}, s28, 1280
    s_movk_i32 s{ss}, 128
    s_mov_b32 s{srd+2}, 2621440
    s_waitcnt lgkmcnt(0)
    s_mov_b32 s{srd}, s{SX}
    s_mov_b32 s{srd+1}, s{SX+1}
L_ts_d{u}:""")

def poll80(a, cfg, pre, issued=False):
    _uid[0] += 1; u = _uid[0]
    a(f"""v_mov_b32 v9, {LG}
    s_cmp_lg_u32 s{sWAVE}, 0
    s_cbranch_scc1 L_gw{u}""")
    if pre: poll(a, 4, "s47", 1, 0, 22, sleep=cfg.get("slp", 4), tag="v[20:21]")
    a(f"""s_mov_b32 exec_lo, -1
    s_mov_b32 exec_hi, 0xff
    s_add_u32 s58, s47, 5120
    s_movk_i32 s59, {SPIN}
    {f"s_branch L_gr{u}" if issued else ""}
L_gp{u}:
    buffer_load_dwordx2 v[22:23], v4, s[{SWS}:{SWS+3}], s47 offen sc1
    buffer_load_dwordx2 v[18:19], v4, s[{SWS}:{SWS+3}], s58 offen sc1
L_gr{u}:
    s_sub_u32 s59, s59, 1
    s_cbranch_scc1 L_gq{u}
    s_waitcnt vmcnt(0)
    v_cmp_ne_u64 vcc, v[20:21], v[22:23]
    v_cmp_ne_u64 s[30:31], v[20:21], v[18:19]
    s_or_b64 s[30:31], s[30:31], vcc
    s_cbranch_scc0 L_gq{u}
    s_mov_b64 exec, s[30:31]
    s_sleep {cfg.get("sla", 1)}
    s_branch L_gp{u}
L_gq{u}:
    s_mov_b64 exec, -1
    ds_write_b32 v9, v9
    s_branch L_gd{u}
L_gw{u}:
    s_mov_b32 s59, {1 << 18}
L_gx{u}:
    ds_read_b32 v10, v9
    s_sub_u32 s59, s59, 1
    s_cbranch_scc1 L_gd{u}
    s_waitcnt lgkmcnt(0)
    v_cmp_eq_u32 vcc, 0, v10
    s_cbranch_vccz L_gd{u}
    s_sleep {cfg.get("slg", 2)}
    s_branch L_gx{u}
L_gd{u}:""")
```

```python
from fz_common import *
WA, OW, YR = 26, 29, 28

def comp_setup(a):
    q, g = 13, 14
    a(f"""v_and_b32 v{q}, 15, v0
    v_lshrrev_b32 v{g}, 4, v0
    v_lshlrev_b32 v{WA}, 4, v0
    v_add_u32 v{WA+1}, 51200, v{WA}
    s_mul_i32 s28, s{sWAVE}, {16*OP}
    s_add_u32 s28, s28, {OB}
    v_mul_u32_u24 v6, {OP}, v{q}
    v_lshl_add_u32 v6, v{g}, 3, v6
    v_add_u32 v{OW}, s28, v6""")
    for r in range(3):
        a(f"""v_add_u32 v6, {64*r}, v0
        v_mul_u32_u24 v7, 6554, v6
        v_lshrrev_b32 v7, 16, v7
        v_add_u32 v8, v6, v7
        v_lshl_add_u32 v{30+r}, v8, 4, s28
        v_mul_u32_u24 v7, {40960-160}, v7
        v_lshl_add_u32 v{33+r}, v6, 4, v7""")
    a(f"""s_lshl_b32 s45, s{sWAVE}, 9
    s_add_u32 s45, s45, s{sT1}
    s_mul_i32 s45, s45, 1280
    s_mul_i32 s30, s{sCB}, 160
    s_add_u32 s45, s45, s30
    s_mul_i32 s44, s{sT1}, 81920
    s_mul_i32 s30, s{sWAVE}, 20480
    s_add_u32 s44, s44, s30
    s_add_u32 s44, s44, {O_OFF}            ; o base
    s_lshl_b32 s46, s{sT1}, 2
    s_add_u32 s46, s46, s{sWAVE}
    s_lshl_b32 s46, s46, 6
    s_add_u32 s46, s46, {Z_OFF}            ; z base
    s_lshl_b32 s47, s{sXCD}, 14
    s_add_u32 s47, s47, {FA_OFF}
    s_mul_i32 s30, s{sWAVE}, 5120
    s_add_u32 s30, s30, {YB}
    v_lshlrev_b32 v2, 4, v0
    v_lshlrev_b32 v3, 2, v{q}
    v_lshlrev_b32 v4, 7, v0
    v_add_u32 v{YR}, s30, v2
    v_lshrrev_b32 v6, 5, v0
    v_lshlrev_b32 v6, 9, v6
    v_lshl_add_u32 v6, v{q}, 5, v6
    v_and_b32 v7, 16, v0
    v_add_u32 v2, v6, v7
    s_lshl_b32 s30, s{sWAVE}, 2
    s_add_u32 s30, s30, {LY}
    v_mov_b32 v24, s30
    s_mov_b32 s51, s44
    s_movk_i32 s52, {SPIN}""")

VF, MF, VA, SG, SG0, YW, FV, VS, YF = 90, 60, 68, 73, 74, 75, 76, 77, 80
OF = 40
def load_setup(a):
    q, g = 13, 14
    a(f"""v_lshlrev_b32 v{FV}, 7, v0
    s_lshl_b32 s49, s{sXCD}, 13
    s_add_u32 s49, s49, {FB_OFF}
    s_lshl_b32 s56, s{sXCD}, 14
    s_add_u32 s56, s56, {FA_OFF + 96*128}
    s_mov_b32 s48, 0""")
    for i in range(3):
        a(f"""v_add_u32 v4, {64*i}, v0
        v_mul_u32_u24 v5, 13108, v4
        v_lshrrev_b32 v5, 16, v5
        v_mul_u32_u24 v5, {VJ-80}, v5
        v_lshl_add_u32 v{VS+i}, v4, 4, v5""")
    a(f"""s_sub_u32 s28, 7, s{sCB}
    s_sub_u32 s29, 32, s{sT1}
    s_and_b32 s29, s29, 31
    s_lshl_b32 s43, s29, 3
    s_add_u32 s43, s43, s28
    s_lshl_b32 s43, s43, 7
    s_add_u32 s43, s43, {V_OFF}
    s_lshl_b32 s41, s{sT1}, 3
    s_add_u32 s41, s41, s{sCB}
    s_lshl_b32 s41, s41, 7
    s_add_u32 s41, s41, {V_OFF}            ; class 1
    s_cmp_ge_u32 s{sCB}, 4
    s_cselect_b32 s28, s28, s{sCB}
    s_cselect_b32 s29, s29, s{sT1}
    s_cselect_b32 s40, 4, 0
    s_lshl_b32 s29, s29, 2
    s_add_u32 s28, s28, s29
    s_mul_i32 s28, s28, 192
    s_add_u32 s42, s28, {V_OFF + 32768}    ; class 2
    s_add_u32 s40, s40, s42
    s_add_u32 s40, s40, 80                 ; class 0
    s_lshl_b32 s28, s{sWAVE}, 2
    s_add_u32 s28, s28, {LY - 16}
    v_mov_b32 v{YF}, s28""")

def load_setup2(a):
    q, g = 13, 14
    a(f"""v_and_b32 v{q}, 15, v0
    v_lshrrev_b32 v{g}, 4, v0
    s_sub_u32 s50, s{sWAVE}, 4
    s_lshl_b32 s28, s50, 9
    s_add_u32 s28, s28, s{sT1}
    v_lshl_add_u32 v3, v{q}, 5, s28        ; t
    v_cvt_f32_u32 v4, v3
    v_mul_f32 v4, {fbits(1/2048)}, v4
    v_lshlrev_b32 v5, 2, v{g}
    v_cvt_f32_u32 v5, v5
    v_mul_f32 v5, v4, v5""")
    for k in range(8):
        a(f"v_cos_f32 v7, v5\nv_sin_f32 v6, v5")
        if k == 3: a(f"v_fmac_f32 v5, {fbits(13.0)}, v4")
        elif k < 7: a("v_add_f32 v5, v5, v4")
        a(f"v_cvt_pk_bf16_f32 v{MF+k}, v7, -v6")
    a(f"""v_lshlrev_b32 v6, 31, v0
    v_xor_b32 v6, 0x3f803f80, v6
    v_cmp_gt_u32 vcc, 16, v0
    s_cmp_ge_u32 s{sCB}, 4
    s_cselect_b32 s30, 0x55555555, 0
    v_cndmask_b32 v{MF}, v{MF}, v6, vcc
    s_or_b32 s30, s30, 0x88888888
    s_mov_b32 s31, s30
    s_mov_b32 s28, {VB}
    v_and_b32 v6, 3, v0
    v_mul_u32_u24 v6, {VP}, v6
    v_mul_u32_u24 v7, 320, v{g}
    v_add3_u32 v6, v6, v7, s28
    v_and_b32 v7, 12, v0
    v_sub_u32 v8, 76, v7
    v_cndmask_b32 v7, v7, v8, s[30:31]
    v_add_u32 v{VA}, v6, v7
    v_cndmask_b32 v7, 16, -16, s[30:31]""")
    for t in range(1, 5): a(f"v_add_u32 v{VA+t}, v{VA+t-1}, v7")
    a(f"""v_bfrev_b32 v7, 1
    v_cndmask_b32 v{SG}, 0, v7, s[30:31]
    s_cmp_eq_u32 s{sT1}, 0
    s_cselect_b32 s28, 0xffff0000, -1
    s_and_b32 s30, s30, s28
    v_cndmask_b32 v{SG0}, 0, v7, s[30:31]
    s_mul_i32 s28, s50, 5120
    s_add_u32 s28, s28, {YB}
    v_lshl_add_u32 v{YW}, v0, 4, s28""")

def v_dma(a):
    for c in range(4):
        for i in range(3):
            a(f"s_mov_b32 m0, {VB + c*VP + 1024*i}")
            a("s_mov_b32 exec_hi, 0" if i == 2 else ("s_mov_b32 exec_hi, -1" if i == 0 else "s_nop 0"))
            a(f"buffer_load_dwordx4 v{VS+i}, s[{SWS}:{SWS+3}], s{40+c} offen sc1 lds")
    a("s_mov_b32 exec_hi, -1")

_pk = [0]
def v_peek(a):
    _pk[0] += 1
    a(f"""v_mov_b32 v16, 0
    v_mov_b32 v17, 0
    s_cmp_lg_u32 s{sWAVE}, 4
    s_cbranch_scc1 L_2_pk{_pk[0]}
    buffer_load_dwordx2 v[16:17], v{FV}, s[{SWS}:{SWS+3}], s49 offen sc1
L_2_pk{_pk[0]}:""")

def v_try(a, cfg):
    if not cfg.get("vtry", 1): return
    a(f"""v_cmp_ne_u64 vcc, {s(sNC,2)}, v[16:17]
    s_cbranch_vccnz L_2_nt{_pk[0]}
    s_mov_b32 s48, 1""")
    v_dma(a)
    a(f"L_2_nt{_pk[0]}:")

def old(ks):
    o = [f"buffer_load_dwordx4 {v(OF+4*ks,4)}, v2, s[{SWS}:{SWS+3}], s44 offen offset:{1024*(ks & 3)} sc1"]
    if ks & 3 == 3 and ks < 19: o.append("s_add_u32 s44, s44, 4096")
    return o
def first(a, cfg):
    a(f"buffer_load_dword v16, v3, s[{SWS}:{SWS+3}], s46 offen sc1")
    for ks in range(cfg.get("lead", 8)): a.ext(old(ks))

def p2(a, cfg):
    a(f"""L_2_ent:
    s_cmp_lg_u32 s{sWAVE}, 7
    s_cbranch_scc1 L_2_nr""")
    a(f"""s_lshl_b32 s57, 0x01010101, s{sCB}
    v_lshlrev_b32 v4, 7, v0
    s_lshl_b32 s56, s{sXCD}, 14
    s_add_u32 s56, s56, {FA_OFF + 96*128}""")
    poll(a, 4, "s56", "s57", 0, 2, sleep=8)
    a(f"""L_2_nr:
    s_barrier
    s_cmp_lt_u32 s{sWAVE}, 4
    s_cbranch_scc1 L_2_comp""")
    wo_setup(a)
    for c in range(5): wo_issue(a)
    load_setup(a); load_setup2(a)
    a(f"""v_mov_b32 v2, {LF}
    v_mov_b32 v3, 0
    ds_write_b32 v2, v3
    ds_write_b32 v2, v3 offset:8
    ds_write_b32 v{YF}, v3
    ds_write_b32 v{YF}, v2 offset:16
    s_waitcnt vmcnt(0) lgkmcnt(0)
    s_barrier
L_2_lb:""")
    a(f"""s_cmp_lg_u32 s{sWAVE}, 4
    s_cbranch_scc1 L_2_nv
    s_cmp_lg_u32 s48, 0
    s_cbranch_scc1 L_2_nv""")
    poll(a, FV, "s49", -1, -1, 4, sleep=cfg.get("slb", 8))
    v_dma(a)
    a("s_mov_b32 s48, 2\nL_2_nv:")
    a(f"""v_mov_b32 v2, {LF}
    s_cmp_eq_u32 s48, 1
    s_cbranch_scc1 L_2_vr
    s_cmp_eq_u32 s48, 0
    s_cbranch_scc1 L_2_wf
    s_waitcnt vmcnt(0)
    ds_write_b32 v2, v2
    s_branch L_2_vr
L_2_wf:
    s_mov_b32 s59, {1 << 17}
L_2_wf2:
    ds_read_b32 v3, v2
    s_sub_u32 s59, s59, 1
    s_cbranch_scc1 L_2_vr
    s_waitcnt lgkmcnt(0)
    v_cmp_eq_u32 vcc, 0, v3
    s_cbranch_vccz L_2_vr
    s_sleep 2
    s_branch L_2_wf2
L_2_vr:
    s_waitcnt lgkmcnt(0)""")
    AB = 132
    if cfg.get("stw"): stamp(a, cfg, 9); a("s_waitcnt lgkmcnt(0)")
    mm = lambda t: [f"v_mfma_f32_16x16x32_bf16 {v(AB+4*t,4)}, {v(VF+8*t+4*ks,4)}, {v(MF+4*ks,4)}, {v(AB+4*t,4) if ks else 0}" for ks in range(2)]
    for t in range(6):
        if t < 5:
            for ks in range(2):
                for u in range(4):
                    a(f"ds_read_b32 v{VF+8*t+4*ks+u}, v{VA+t} offset:{(16*ks+u)*80}")
        if t:
            k = t - 1
            a(f"s_waitcnt lgkmcnt({8 if t < 5 else 0})")
            for i in range(8): a(f"v_xor_b32 v{VF+8*k+i}, v{SG if i else SG0}, v{VF+8*k+i}")
            a.ext(mm(k))
    wait_lw(a, 4)
    for t in range(5): a(f"ds_write_b128 v{YW}, {v(AB+4*t,4)} offset:{1024*t}")
    if cfg.get("stw"): stamp(a, cfg, 10)
    a(f"ds_write_b32 v{YF}, v{YF}\ns_waitcnt lgkmcnt(0)")
    if cfg.get("stw"):
        a(f"s_cmp_lg_u32 s{sWAVE}, {cfg['stw']}\ns_cbranch_scc1 L_end"); stamp_out(a, cfg)
    a("L_end:\ns_endpgm")
    NB = 4
    OF, WF, AA, AB = 40, (120, 140, 200, 220), 160, 180
    LEAD = cfg.get("lead", 8)
    a("L_2_comp:")
    a(f"v_mov_b32 v20, s{sNC}\nv_mov_b32 v21, s{sNC+1}")
    comp_setup(a)
    stamp(a, cfg, 6)
    a("s_barrier")
    a(f"s_cmp_lg_u32 s{sWAVE}, 0\ns_cbranch_scc1 L_2_go")
    poll(a, 4, "s47", 1, 0, 22, sleep=cfg.get("slp", 4), tag="v[20:21]")
    a("L_2_go:")
    def reads(st):
        f = WF[st % NB]
        return [f"ds_read_b128 {v(f+4*t,4)}, v{WA + st//10} offset:{(st % 10)*5120 + 1024*t}" for t in range(5)]
    def mfmas(st):
        f = WF[st % NB]
        return [f"v_mfma_f32_16x16x32_bf16 {v(AA+4*t,4)}, {v(f+4*t,4)}, {v(OF+4*st,4)}, {v(AA+4*t,4) if st else 0}" for t in range(5)]
    poll80(a, cfg, False)
    a("L_2_g2:")
    stamp(a, cfg, 8)
    a("L_2_st:")
    first(a, cfg)
    sw = 4*cfg["wdma"] - 4
    if sw < 1: wait_lw(a, 6)
    else: a(f"v_mov_b32 v10, {LW}")
    stamp(a, cfg, 7)
    a.ext(reads(0) + reads(1) + reads(2))
    sig = ["v_lshlrev_b32 v18, 16, v16", f"v_mul_f32 v18, {fbits(-1.4426950408889634)}, v18", "v_exp_f32 v18, v18", "v_add_f32 v18, 1.0, v18", "v_rcp_f32 v18, v18"]
    yb = ["ds_read_b32 v25, v24"] + [f"ds_read_b128 {v(AB+4*t,4)}, v{YR} offset:{1024*t}" for t in range(5)]
    def check(G):
        r = OF + 8*G
        return [f"v_max3_u32 v5, v{16 if G == 0 else r+7}, v{r}, v{r+4}", "v_cmp_eq_u32 vcc, -1, v5"]
    handlers = []
    issued = LEAD
    a(f"s_waitcnt vmcnt({issued - 2})")
    if cfg.get("st2"): stamp(a, cfg, 8)
    a.ext(check(0)); a("s_cbranch_vccnz L_2_h0\nL_2_r0:"); handlers.append((0, issued))
    for st in range(20):
        lg = 0 if st == 0 else (10 if st < 18 else (11, 6)[st-18])
        if sw >= 1 and st == sw: lg = 5
        a(f"s_waitcnt lgkmcnt({lg})")
        rr = reads(st+3) if st < 17 else (yb if st == 17 else [])
        if sw >= 1 and st == sw - 1: rr = ["ds_read_b128 v[6:9], v10"] + rr
        ex = []
        if st % 2 == 0:
            while issued < min(20, st + LEAD + 2): ex += old(issued); issued += 1
            if 10 <= st: ex += [sig[(st-10)//2]]
            if sw >= 1 and st == sw: ex = ["v_min3_u32 v6, v6, v7, v8\nv_min_u32 v6, v6, v9", "v_cmp_eq_u32 vcc, 0, v6"] + ex
        elif st < 19:
            G = st // 2 + 1
            ck = check(G)
            ex = [""]*cfg.get("ckp", 1) + [f"s_waitcnt vmcnt({issued - 2*G - 2})\n" + ck[0]] + ck[1:]
            if "nock" in cfg.get("x2", ""): ex = ["s_nop 0"]*0; post = f"s_waitcnt vmcnt({issued - 2*G - 2})"
        if "nord" in cfg.get("x2", "") and st != 17: rr = []
        if "nold" in cfg.get("x2", ""): ex = [x for x in ex if "buffer_load" not in x]
        fill = []
        for i in range(6): fill += rr[i:i+1] + ex[i:i+1]
        for x in interleave(mfmas(st) if "nomf" not in cfg.get("x2", "") else [], fill, per=2): a(x)
        if sw >= 1 and st == sw: a("s_cbranch_vccnz L_2_lw\nL_2_lr:")
        if st % 2 == 1 and st < 19:
            if "nock" in cfg.get("x2", ""): a(post)
            else: a(f"s_cbranch_vccnz L_2_h{G}")
            a(f"L_2_r{G}:"); handlers.append((G, issued))
    a("L_2_fin:")
    stamp(a, cfg, 9)
    a(f"""s_mov_b32 s59, {1 << 17}
L_2_yw:
    s_waitcnt lgkmcnt(0)
    v_cmp_eq_u32 vcc, 0, v25
    s_cbranch_vccnz L_2_ys
L_2_yo:
    v_cmp_u_f32 vcc, v{AA}, v{AA}
    s_cbranch_vccnz L_2_un
L_2_ok:""")
    for t in range(5):
        for u in (0, 2):
            a(f"v_pk_add_f32 {v(AA+4*t+u,2)}, {v(AA+4*t+u,2)}, {v(AB+4*t+u,2)} neg_lo:[0,1] neg_hi:[0,1]")
        for u in (0, 2):
            a(f"v_pk_fma_f32 {v(AA+4*t+u,2)}, {v(AA+4*t+u,2)}, v[18:19], {v(AB+4*t+u,2)} op_sel_hi:[1,0,1]")
        a(f"v_cvt_pk_bf16_f32 v{AB+4*t}, v{AA+4*t}, v{AA+4*t+1}\nv_cvt_pk_bf16_f32 v{AB+4*t+1}, v{AA+4*t+2}, v{AA+4*t+3}")
        a(f"ds_write_b64 v{OW}, {v(AB+4*t,2)} offset:{32*t}")
    a(f"""ds_read_b128 v[40:43], v30
    ds_read_b128 v[44:47], v31
    ds_read_b128 v[48:51], v32
    s_waitcnt lgkmcnt(2)
    buffer_store_dwordx4 v[40:43], v33, s[{SO}:{SO+3}], s45 offen
    s_waitcnt lgkmcnt(1)
    buffer_store_dwordx4 v[44:47], v34, s[{SO}:{SO+3}], s45 offen
    s_mov_b32 exec_hi, 0
    s_waitcnt lgkmcnt(0)
    buffer_store_dwordx4 v[48:51], v35, s[{SO}:{SO+3}], s45 offen""")
    if cfg.get("stamps") and not cfg.get("stw"):
        a("s_mov_b64 exec, -1\ns_waitcnt vmcnt(0)\ns_barrier"); stamp(a, cfg, 10)
        a(f"s_cmp_lg_u32 s{sWAVE}, 0\ns_cbranch_scc1 L_end"); stamp_out(a, cfg)
    a("s_endpgm")
    for G, n in handlers:
        a(f"L_2_h{G}:\ns_cmp_eq_u32 s52, 0\ns_cbranch_scc1 L_2_r{G}\ns_sub_u32 s52, s52, 1")
        if cfg.get("stamps") and not cfg.get("stw"): a("s_add_u32 s82, s82, 1")
        if G == 0: a(f"buffer_load_dword v16, v3, s[{SWS}:{SWS+3}], s46 offen sc1")
        for ks in range(2*G, n):
            if ks == 2*G or ks % 4 == 0: a(f"s_add_u32 s58, s51, {4096*(ks >> 2)}")
            a(f"buffer_load_dwordx4 {v(OF+4*ks,4)}, v2, s[{SWS}:{SWS+3}], s58 offen offset:{1024*(ks & 3)} sc1")
        a(f"s_waitcnt vmcnt({n - 2*G - 2})")
        a.ext(check(G))
        a(f"s_cbranch_vccnz L_2_h{G}\ns_branch L_2_r{G}")
    if sw >= 1:
        a("L_2_lw:"); wait_lw(a, 6); a("s_branch L_2_lr")
    a(f"L_2_un:\nv_mov_b32 v5, v{OF}")
    for r in range(OF, OF + 80, 2): a(f"v_max3_u32 v5, v5, v{r}, v{r+1}")
    a("""v_cmp_eq_u32 vcc, -1, v5
    s_cbranch_vccz L_2_ok
    s_cmp_eq_u32 s52, 0
    s_cbranch_scc1 L_2_ok
    s_sub_u32 s52, s52, 1
    s_mov_b32 s44, s51
    s_branch L_2_st""")
    a("""L_2_ys:
    s_sub_u32 s59, s59, 1
    s_cbranch_scc1 L_2_yo
    s_sleep 1""")
    a.ext(yb)
    a("s_branch L_2_yw")
```

```python
from fz_common import *
sB, sPAR, sGAM, sP0 = 23, 24, 25, 26
OSR, GO, ZR, ZO = 9, 10, 12, 36
LH2 = MS - 8
assert XB >= 16

def decode(a):
    a(f"""s_sub_u32 s27, s{sN}, 12
    s_lshr_b32 s28, s27, 2
    s_and_b32 s{sPAR}, s{sXCD}, 1
    s_bfe_u32 s29, s{sXCD}, 0x10001
    s_mul_i32 s29, s29, 5
    s_add_u32 s{sB}, s29, s28
    s_mul_i32 s{sP0}, s{sB}, {STEP}
    s_and_b32 s27, s27, 3
    s_and_b32 s29, s{sXCD}, 4
    s_add_u32 s{sGAM}, s29, s27""")

def store_addr(a, t, two, nh):
    a(f"""v_bfe_u32 v{t}, v0, 1, {2 if two else 3}
    v_lshrrev_b32 v{t+1}, 4, v0
    s_sub_u32 s29, s{sWAVE}, 4
    s_lshl_b32 s27, s29, 2
    v_add_u32 v{t+1}, s27, v{t+1}              ; q
    s_xor_b32 s28, s29, 3
    s_lshl_b32 s28, s28, 3
    s_add_u32 s28, s28, {MS}
    v_lshl_add_u32 v{t+3}, v{t}, 4, v{t+1}
    v_lshl_add_u32 v{ZR}, v{t+3}, 5, s28
    v_and_b32 v{t+2}, 1, v0
    v_bfe_u32 v{t}, v0, 3, {1 if two else 0}
    v_mul_u32_u24 v{OSR}, {OP}, v{t+3}
    v_lshl_add_u32 v{OSR}, v{t+2}, 4, v{OSR}
    v_lshl_add_u32 v{OSR}, v{t}, 5, v{OSR}
    v_add_u32 v{OSR}, {OS}, v{OSR}
    v_lshlrev_b32 v{t+2}, 4, v{t+2}
    v_lshl_add_u32 v{t+2}, v{t}, 9, v{t+2}
    s_cmp_eq_u32 s{sB}, 0
    s_cselect_b32 s28, 0, 7
    s_sub_u32 s29, 1024, s{sP0}
    s_min_u32 s29, s29, 112
    s_cmp_eq_u32 s{sGAM}, 0
    s_cselect_b32 s27, {'0x00550055' if two else '0x55555555'}, 0""")
    for k in range(2 if two else 1):
        a(f"""v_cmp_le_u32 vcc, s28, v{t+3}
        v_cmp_gt_u32 s[30:31], s29, v{t+3}
        v_add_u32 v{t+1}, s{sP0}, v{t+3}           ; P
        s_and_b64 vcc, vcc, s[30:31]
        v_lshl_add_u32 v{t+1}, v{t+1}, 1, s{sPAR}  ; t
        v_and_b32 v{t}, 31, v{t+1}
        v_mul_u32_u24 v{GO+k}, 81920, v{t}
        v_lshrrev_b32 v{ZO+k}, 5, v{t+1}
        v_lshl_add_u32 v{ZO+k}, v{t}, 6, v{ZO+k}
        v_lshlrev_b32 v{ZO+k}, 2, v{ZO+k}
        v_lshrrev_b32 v{t}, 9, v{t+1}
        v_mul_u32_u24 v{t}, 20480, v{t}
        v_bfe_u32 v{t+1}, v{t+1}, 5, 4
        v_lshl_add_u32 v{t}, v{t+1}, 5, v{t}
        v_add3_u32 v{GO+k}, v{GO+k}, v{t}, v{t+2}
        v_mov_b32 v{t}, {BIG}
        v_cndmask_b32 v{GO+k}, v{t}, v{GO+k}, vcc
        s_and_b32 vcc_lo, vcc_lo, s27
        s_and_b32 vcc_hi, vcc_hi, s27
        v_add_u32 v{t+3}, 64, v{t+3}
        v_cndmask_b32 v{ZO+k}, v{t}, v{ZO+k}, vcc""")
    a(f"""s_mov_b32 s54, {Z_OFF}
    s_lshl_b32 s27, s{sB}, 3
    s_add_u32 s27, s27, s{sGAM}
    s_and_b32 s29, s27, {80//nh - 1}
    s_cselect_b32 s29, {BIG}, 0
    s_lshr_b32 s27, s27, {(80//nh).bit_length() - 1}
    s_lshl_b32 s28, s{sPAR}, 7
    s_add_u32 s27, s27, s28
    s_lshl_b32 s27, s27, 7
    s_add_u32 s27, s27, s29
    s_add_u32 s55, s27, {FA_OFF}
    v_lshrrev_b32 v38, 3, v0
    v_lshlrev_b32 v38, 15, v38
    v_and_b32 v{t+1}, 7, v0
    v_cmp_gt_u32 vcc, 32, v0
    v_lshl_add_u32 v38, v{t+1}, 4, v38
    s_mul_i32 s53, s{sGAM}, 2560
    v_cndmask_b32 v38, v{t}, v38, vcc
    s_add_u32 s53, s53, {O_OFF}""")

def final_store(a, cfg, k):
    two = cfg["two"]
    D = 100 + 14*k; n = 3 if two else 5; w = 2 if two else 1
    for r in range(n): a(f"ds_read_b128 {v(D+4*r,4)}, v{OSR} offset:{64*OP*k + 32*w*r}")
    a(f"ds_read_b32 v{D+4*n}, v{ZR} offset:{2048*k}")
    for r in range(n):
        if two and r == 2: a("s_mov_b32 exec_lo, 0x00ff00ff\ns_mov_b32 exec_hi, 0x00ff00ff")
        a(f"s_waitcnt lgkmcnt({n-r})")
        for u in range(4): a(f"v_min_u32 v{D+4*r+u}, -2, v{D+4*r+u}")
        a(f"buffer_store_dwordx4 {v(D+4*r,4)}, v{GO+k}, s[{SWS}:{SWS+3}], s53 offen offset:{512*w*r} sc1")
    a(f"""s_cmp_lg_u32 s{sGAM}, 0
    s_cbranch_scc1 L_a_nz{k}
    s_waitcnt lgkmcnt(0)
    buffer_store_dword v{D+4*n}, v{ZO+k}, s[{SWS}:{SWS+3}], s54 offen sc1
L_a_nz{k}:
    s_mov_b64 exec, -1""")

def gate_loads(a, cfg):
    a(f"""s_cmp_eq_u32 s{sGAM}, 0
    s_cselect_b32 s{SAUX+2}, 1280, 0
    s_lshl_b32 s27, s{sWAVE}, 7
    v_lshl_add_u32 v242, v0, 1, s27
    s_add_u32 s28, s{sWAVE}, s{sROT}
    v_lshlrev_b32 v241, 1, v0
    s_waitcnt lgkmcnt(0)""")
    for i in range(3):
        a(f"""s_cmp_ge_u32 s28, 10
        s_cselect_b32 s27, 10, 0
        s_sub_u32 s28, s28, s27
        s_lshl_b32 s27, s28, 7
        buffer_load_ushort v{248+2*i}, v241, s[{SAUX}:{SAUX+3}], s27 offen
        s_add_u32 s28, s28, 4""")

def compute(a, cfg):
    bars = cfg["bars"]
    XA0, XA1, WM, WX, MSW, MSR, OSW = 2, 3, 4, 6, 8, 9, 10
    KTR, INC, INCW, OST = 13, 14, 15, 11
    CC, CP, MP, MC, MG0, ONES = 16, 20, 24, 25, 28, 32
    FR = (40, 84); ACC = 128; T = 240
    a("L_a_comp:")
    q, g, t0, t1 = 240, 241, 242, 243
    for i in range(3): a(f"v_mov_b32 v{249+2*i}, 0")
    a(f"""s_mov_b32 s28, {MS}
    v_lshl_add_u32 v247, v{t0}, 2, s28""")
    a(f"""v_and_b32 v{q}, 15, v0
    v_lshrrev_b32 v{g}, 4, v0
    v_lshrrev_b32 v{t0}, 1, v{q}
    v_xor_b32 v{t0}, v{t0}, v{g}
    v_lshlrev_b32 v{t0}, 4, v{t0}
    v_lshl_add_u32 v{XA0}, v{q}, 7, v{t0}
    v_add_u32 v{XA0}, {XB}, v{XA0}
    v_xor_b32 v{XA1}, 64, v{XA0}
    v_lshrrev_b32 v{t0}, 5, v0
    v_bfe_u32 v{t1}, v0, 2, 3
    v_lshl_add_u32 v{t0}, v{t0}, 4, v{t1}      ; sigma0
    v_mul_u32_u24 v{t0}, 480, v{t0}
    s_mul_i32 s27, s{sWAVE}, 40
    s_add_u32 s28, s27, {WB}
    v_add_u32 v{t0}, s28, v{t0}
    v_and_b32 v{t1}, 3, v0
    v_lshl_add_u32 v{WM}, v{t1}, 3, v{t0}
    v_add_u32 v{WM+1}, {3*WS_}, v{WM}
    v_cmp_eq_u32 vcc, 3, v{t1}
    v_mul_u32_u24 v{t1}, 160, v{t1}
    v_add3_u32 v{WX}, v{t0}, v{t1}, 32
    v_add_u32 v{WX+1}, 3840, v{WX}
    v_bfe_u32 v{t0}, v0, 2, 2
    v_lshl_add_u32 v{t0}, v{g}, 3, v{t0}
    v_lshlrev_b32 v{t0}, 3, v{t0}
    v_add_u32 v{t0}, {MS}, v{t0}
    v_cndmask_b32 v{WX}, v{WX}, v{t0}, vcc
    v_add_u32 v{t0}, 32, v{t0}
    v_cndmask_b32 v{WX+1}, v{WX+1}, v{t0}, vcc
    v_mov_b32 v{t0}, 0x100
    v_mov_b32 v{INC}, {WS_}
    v_mov_b32 v{INCW}, {-(NW-1)*WS_}
    v_cndmask_b32 v{INC}, v{INC}, v{t0}, vcc
    v_cndmask_b32 v{INCW}, v{INCW}, v{t0}, vcc""")
    a_main = a; a = Asm()
    p2_decode(a)
    a(f"""
    s_mul_i32 s28, s{sWAVE}, {RT*512}
    s_add_u32 s28, s28, {MS}
    v_lshrrev_b32 v{t0}, 2, v{q}
    v_lshl_add_u32 v{t1}, v{q}, 5, s28
    v_xor_b32 v{MSW}, v{t0}, v{g}
    v_lshl_add_u32 v{MSW}, v{MSW}, 3, v{t1}
    v_xor_b32 v{KTR}, 1, v{t0}
    v_lshl_add_u32 v{KTR}, v{KTR}, 3, v{t1}
    v_and_b32 v{t0}, 60, v0
    v_xor_b32 v{t1}, 2, v{g}
    v_or_b32 v{t0}, v{t0}, v{t1}
    v_lshl_add_u32 v{MSR}, v{t0}, 3, s28
    v_mul_u32_u24 v{t0}, {OP}, v{q}
    v_lshl_add_u32 v{t0}, v{g}, 3, v{t0}
    s_add_u32 s28, s27, {OS}
    v_add_u32 v{OSW}, s28, v{t0}
    v_mul_u32_u24 v{t0}, {16*OP - 8}, v{g}
    v_add3_u32 v{OST}, v{OSW}, v{t0}, 32""")
    a(f"v_lshlrev_b32 v{t0}, 2, v{g}\nv_sub_u32 v{t0}, v{t0}, v{q}\nv_mov_b32 v30, {fbits(-1e30)}\nv_mov_b32 v31, 0")
    for r in range(4):
        a(f"""v_add_u32 v{t1}, {r+7}, v{t0}
        v_cmp_gt_u32 vcc, 8, v{t1}
        v_cmp_le_i32 s[30:31], 16, v{t1}
        v_mov_b32 v{ONES+r}, 0x3f803f80
        v_cndmask_b32 v{CC+r}, v30, v31, vcc
        v_cndmask_b32 v{CP+r}, v30, v31, s[30:31]""")
    a(f"""v_cndmask_b32 v{MP}, 0, -1, s[30:31]
    v_cmp_gt_u32 vcc, 16, v0
    v_not_b32 v{MC}, v{MP}
    v_cndmask_b32 v{MG0}, 0, -1, vcc""")
    HA, TG, FP = 38, 30, 29
    a(f"""v_mov_b32 v{TG}, {LN}
    v_mov_b32 v{HA}, {LH2}
    v_lshlrev_b32 v{FP}, 7, v0
    s_lshl_b32 s47, s{sXCD}, 14
    s_add_u32 s47, s47, {FA_OFF}
    s_add_u32 s58, s47, 5120
""")
    def hint(k):
        if cfg["hint"] == k: a(f"ds_write_b32 v{HA}, v{HA}")
    c = 20**-0.5 * 1.4426950408889634
    a(f"s_mov_b32 s32, {fbits(c)}\ns_mov_b32 s33, {fbits(c)}\ns_mov_b32 s34, {fbits(-c)}")
    a_main.ext([x for x in a.l if x.startswith("s_load")])
    later = [x for x in a.l if not x.startswith((";", "s_load"))]; a = a_main
    if cfg["cl"] == 0: a.ext(later); later = []
    a("s_waitcnt vmcnt(0)")
    for i in range(3): a(f"ds_write_b64 v247, {v(248+2*i,2)} offset:{2048*i}")
    a("s_waitcnt lgkmcnt(0)")

    def reads(st):
        f = FR[st & 1]; out = []
        sl = st % NW; hi = sl // 3; off = (sl % 3) * WS_
        for j, so in enumerate((0, 160, None, 320)):
            for h in range(2):
                if so is None:
                    out.append(f"ds_read_b64_tr_b16 {v(f+28+4*j+2*h, 2)}, v{WX+h}")
                else:
                    out.append(f"ds_read_b64_tr_b16 {v(f+28+4*j+2*h, 2)}, v{WM+hi} offset:{off + h*3840 + so}")
        xs = ((st >> 1) % NX) * XS
        xr = [f"ds_read_b128 {v(f+4*i, 4)}, v{XA0 + (st & 1)} offset:{xs + i*2048}" for i in range(RT)]
        inc = INCW if sl == NW-1 else INC
        up = [f"v_add_u32{'_e64' if cfg.get('e64', 1) else ''} v{WX+h}, v{WX+h}, v{inc}" for h in range(2)] if st < 19 else []
        if "noup" in cfg.get("exp", ""): up = []
        if "nord" in cfg.get("exp", ""): return up
        return xr[:1] + out + xr[1:] + up
    def mf(st, i):
        f = FR[st & 1]; out = []
        for j in ((2, 0, 1, 3) if not (cfg.get('xm') and 0 < st < 18) else (0, 1, 3)):
            d = v(ACC + 16*i + 4*j, 4); cc = d if st else "0"
            x, w = v(f+4*i, 4), v(f+28+4*j, 4)
            out.append(f"v_mfma_f32_16x16x32_bf16 {d}, {x}, {w}, {cc}" if j == 3 else f"v_mfma_f32_16x16x32_bf16 {d}, {w}, {x}, {cc}")
        return out
    a("s_barrier"); stamp(a, cfg, 1)
    a.ext(reads(0))
    a(".p2align 3")
    for st in range(18):
        a("s_waitcnt lgkmcnt(0)")
        a("s_barrier" if st + 1 in bars else "s_nop 0")
        if cfg.get("prof") and st % 2 == 0: stamp(a, cfg, 1 + st//2, True)
        if st == cfg.get("cst", [99, 9])[1]: stamp(a, cfg, 2)
        if st == cfg.get("cst", [99, 9])[0]: stamp(a, cfg, 1)
        ex = [f"ds_read_b64 {v(TG,2)}, v{TG}"] if st == 13 else []
        ex += later[:cfg["cl"]]; later = later[cfg["cl"]:]
        assert st < 12 or not later
        mm = sum((mf(st, i) for i in range(RT)), [])
        if cfg.get("jm") == 1: mm = [mm[4*i + j] for j in range(4) for i in range(RT)]
        if cfg.get("jm") == 2: mm = [mm[4*(i if j % 2 == 0 else RT-1-i) + j] for j in range(4) for i in range(RT)]
        if cfg.get("jm") == 3: mm = [mm[4*i + (j if i % 2 == 0 else 3-j)] for i in range(RT) for j in range(4)]
        a.ext(interleave(mm, reads(st+1) + ex))
    mark0 = len(a.l)
    VPK, VT = FR[1], FR[0]
    A = lambda i, j, r=0: ACC + 16*i + 4*j + r
    cv = lambda d, s0: f"v_cvt_pk_bf16_f32 v{d}, v{s0}, v{s0+1}"
    def pack(i):
        o = [cv(A(i,2,0), A(i,2,0)), cv(A(i,2,1), A(i,2,2)),
             f"ds_write_b64 v{MSW}, {v(A(i,2),2)} offset:{512*i}",
             cv(A(i,0,0), A(i,0,0)), cv(A(i,0,1), A(i,0,2)),
             cv(A(i,1,0), A(i,1,0)), cv(A(i,1,1), A(i,1,2)),
             f"ds_read_b64 {v(A(i,1,2),2)}, v{KTR} offset:{512*i}",
             f"v_and_b32 v{A(i,0,2)}, v{MG0}, v{A(i,2,0)}", f"v_and_b32 v{A(i,0,3)}, v{MG0}, v{A(i,2,1)}",
             f"ds_read_b64_tr_b16 {v(VT+2+2*i, 2)}, v{MSR} offset:{512*i}",
             cv(VPK+2+2*i, A(i,3,0)), cv(VPK+3+2*i, A(i,3,2))]
        if i == 0: o += [f"v_mov_b32 v{r}, 0" for r in (VPK, VPK+1, VT, VT+1)]
        return o
    def smf(i):
        o = [f"v_mfma_f32_16x16x32_bf16 {v(A(i,2),4)}, {v(A(i,1),4)}, {v(A(i,0),4)}, {v(CC,4)}"]
        if i: o.append(f"v_mfma_f32_16x16x32_bf16 {v(A(i,3),4)}, {v(A(i-1,1),4)}, {v(A(i,0),4)}, {v(CP,4)}")
        return o
    def lmax(i):
        o = [f"v_max_f32 v{A(i,2,r)}, v{A(i,2,r)}, v{A(i,3,r)}" for r in range(4)] if i else []
        return o + [f"v_max3_f32 v{T+2*i}, v{A(i,2,0)}, v{A(i,2,1)}, v{A(i,2,2)}", f"v_max_f32 v{T+2*i}, v{T+2*i}, v{A(i,2,3)}"]
    a("s_waitcnt lgkmcnt(0)")
    a("s_barrier" if 19 in bars else "s_nop 0")
    if cfg.get("prof"): stamp(a, cfg, 10, True)
    a.ext(interleave(mf(18,0) + mf(18,1) + mf(18,2), reads(19), per=2))
    a("s_waitcnt lgkmcnt(0)\ns_barrier")
    a.ext(mf(19,0))
    for k in range(4):
        mm = mf(18, 3+k) + mf(19, 1+k)
        a.ext(interleave(mm, pack(k), per=2, start=1))
    a.ext(interleave(mf(19,5) + mf(19,6), pack(4), per=2, start=1))
    stamp(a, cfg, 3)
    m = lambda i: T + 2*i
    def xmax(i):
        return [f"v_permlane16_swap_b32 v{m(i)}, v{m(i+1)}", f"v_permlane16_swap_b32 v{m(i+2)}, v{m(i+3)}",
                f"v_max_f32 v{m(i)}, v{m(i)}, v{m(i+1)}", f"v_max_f32 v{m(i+2)}, v{m(i+2)}, v{m(i+3)}", None, None,
                f"v_permlane32_swap_b32 v{m(i)}, v{m(i+2)}", f"v_max_f32 v{m(i)}, v{m(i)}, v{m(i+2)}",
                f"v_mul_f32 v{m(i+2)}, s34, v{m(i)}", f"v_mul_f32 v{m(i)}, s34, v{m(i)}", None, None,
                f"v_permlane32_swap_b32 v{m(i)}, v{m(i+2)}",
                f"v_mov_b32 v{m(i+1)}, v{m(i)}", f"v_mov_b32 v{m(i+3)}, v{m(i+2)}", None,
                f"v_permlane16_swap_b32 v{m(i)}, v{m(i+1)}", f"v_permlane16_swap_b32 v{m(i+2)}, v{m(i+3)}"]
    def fill(main, f):
        f = list(f); out = []
        for x in main:
            if x is not None: out.append(x)
            elif f: out.append(f.pop(0))
        return out + f
    sub = lambda i: [f"v_pk_fma_f32 {v(A(i,2,2*u),2)}, {v(A(i,2,2*u),2)}, s[32:33], {v(m(i),2)} op_sel_hi:[1,1,0]" for u in range(2)]
    def prob(i):
        return [f"v_exp_f32 v{A(i,2,r)}, v{A(i,2,r)}" for r in range(4)] + [cv(m(i), A(i,2,0)), cv(m(i)+1, A(i,2,2))] + \
               [f"v_and_b32 v{A(i,0,u)}, v{MP}, v{m(i)+u}" for u in range(2)] + [f"v_and_b32 v{A(i,0,2+u)}, v{MC}, v{m(i)+u}" for u in range(2)]
    def pv(i):
        return [f"v_mfma_f32_16x16x32_bf16 {v(A(i,1),4)}, {v(ONES,4)}, {v(A(i,0),4)}, 0",
                f"v_mfma_f32_16x16x32_bf16 {v(A(i,2),4)}, {v(VPK+2*i,4)}, {v(A(i,0),4)}, 0",
                f"v_mfma_f32_16x16x32_bf16 {v(A(i,3),4)}, {v(VT+2*i,4)}, {v(A(i,0),4)}, 0"]
    rc = lambda k: f"v_rcp_f32 v{m(k)}, v{A(k,1)}"
    TL = 64
    def fin(k):
        d = TL + 4*(k >> 2); rm = 1 << (k & 3)
        if k == RT - 1: rm = 12
        return [f"v_pk_mul_f32 {v(A(k,2,2*u),2)}, {v(A(k,2,2*u),2)}, {v(m(k),2)} op_sel_hi:[1,0]" for u in range(2)] + \
               [cv(A(k,0,0), A(k,2,0)), cv(A(k,0,1), A(k,2,2)), f"ds_write_b64 v{OSW}, {v(A(k,0),2)} offset:{16*OP*k}"] + \
               [f"v_mul_f32_dpp v{d+r}, v{A(k,3,r)}, v{m(k)} quad_perm:[0,1,2,3] row_mask:{hex(rm)} bank_mask:0xf" for r in range(4)]
    def pp(i, w):
        p = prob(i); a.ext(p[:2] + w[:1] + p[2:4] + w[1:2] + p[4:7] + w[2:] + p[7:])
    def tails(ks):
        d = TL + ks[0]
        a(cv(d, d)); a(cv(d+1, d+2))
        if ks[0]: a("s_mov_b32 exec_hi, 0xffff")
        a(f"ds_write_b64 v{OST}, {v(d,2)} offset:{16*OP*ks[0]}")
        if ks[0]: a("s_mov_b32 exec_hi, -1")
    lw = lambda n: a(f"s_waitcnt lgkmcnt({0 if cfg.get('stamps') else n})")
    if cfg.get("xa"): a(f"ds_write_b32 v{HA}, v{HA}\ns_branch L_xa")
    lw(3)
    a.ext(interleave(smf(0) + smf(1) + smf(2) + smf(3), pack(5), per=2))
    a.ext(lmax(0) + lmax(1))
    lw(3)
    a.ext(interleave(smf(4), lmax(2), per=3))
    p6 = pack(6)
    a.ext(lmax(3) + p6[:2] + fill(xmax(0), p6[2:]))
    hint(0)
    for i in range(4): a.ext(sub(i))
    a("s_waitcnt lgkmcnt(0)")
    w = smf(5) + smf(6); p = prob(0)
    a.ext(p[:1] + w[:1] + p[1:2] + w[1:2] + p[2:3] + w[2:3] + p[3:4] + w[3:] + p[4:])
    for i in range(1, 4): pp(i, pv(i-1))
    hint(1)
    w = pv(3); l4 = lmax(4)
    a.ext([rc(0), rc(1)] + w[:1] + l4[:2] + w[1:2] + l4[2:4] + w[2:] + l4[4:] + [rc(2)])
    a.ext(fin(0) + [rc(3)] + fin(1) + fin(2) + fin(3))
    tails(range(4))
    a.ext(lmax(5) + lmax(6) + [f"v_mov_b32 v{m(7)}, v{m(6)}"])
    if cfg["two"]: a("s_waitcnt lgkmcnt(0)\ns_barrier")
    hint(2)
    a.ext(fill(xmax(4), []))
    for i in range(4, RT): a.ext(sub(i))
    a.ext(prob(4))
    hint(3)
    pp(5, pv(4)); pp(6, pv(5))
    w = pv(6)
    hint(4)
    if cfg.get("peek", 1):
        nh = cfg["nh"]
        a(f"""s_cmp_lg_u32 s{sWAVE}, 0
        s_cbranch_scc1 L_a_npk
        s_mov_b32 exec_lo, {-1 if nh >= 40 else hex((1 << nh) - 1)}
        s_mov_b32 exec_hi, {"0xff" if nh >= 40 else 0}
        buffer_load_dwordx2 v[22:23], v{FP}, s[{SWS}:{SWS+3}], s47 offen sc1""")
        if nh == 80: a(f"buffer_load_dwordx2 v[18:19], v{FP}, s[{SWS}:{SWS+3}], s58 offen sc1")
        a("s_mov_b64 exec, -1\nL_a_npk:")
    a("L_xa:")
    a.ext([rc(4)] + w[:1] + [rc(5)] + w[1:])
    a.ext(fin(4) + [rc(6)] + fin(5) + fin(6))
    tails(range(4, RT))
    hint(5)
    xa = cfg.get("xat", "")
    sec = a.l[mark0:]
    import re
    if "e64" in xa:
        sec = [re.sub(r"^(v_(?:and_b32|max_f32|mov_b32|mul_f32|exp_f32|rcp_f32|permlane16_swap_b32|permlane32_swap_b32)) ", r"\1_e64 ", x) for x in sec]
    if "nodsw" in xa: sec = [x for x in sec if not x.startswith("ds_write_b64")]
    if "noosw" in xa: sec = [x for x in sec if not x.startswith(f"ds_write_b64 v{OSW},")]
    if "nopk" in xa: sec = [x for x in sec if not x.startswith("v_pk")]
    if "noexp" in xa: sec = [x for x in sec if not x.startswith("v_exp")]
    if "nocvt" in xa: sec = [x for x in sec if not x.startswith("v_cvt")]
    if "noperm" in xa: sec = [x for x in sec if not x.startswith("v_perm")]
    a.l[mark0:] = sec
    stamp(a, cfg, 4)
    a("s_waitcnt lgkmcnt(0)")
    a("s_barrier")
    stamp(a, cfg, 6)
    if cfg.get("stopf"):
        a(f"s_cmp_lg_u32 s{sWAVE}, 0\ns_cbranch_scc1 L_end"); stamp_out(a, cfg); a("s_endpgm")
    a(f"v_mov_b32 v20, v{TG}\nv_mov_b32 v21, v{TG+1}")
    import fz_2
    fz_2.comp_setup(a)
    if cfg.get("peek", 1):
        poll80(a, cfg, False, issued=True)
        a("s_branch L_2_g2")
    else: a("s_branch L_2_go")

def loader_fin(a, cfg):
    import fz_2
    h = cfg["hint"]
    def send(wait):
        a(f"s_cmp_lg_u32 s{sWAVE}, 7\ns_cbranch_scc1 L_a_hy")
        if wait:
            a(f"""v_mov_b32 v86, {LH2}
            s_mov_b32 s59, {1 << 17}
L_a_hw:
            ds_read_b32 v87, v86
            s_sub_u32 s59, s59, 1
            s_cbranch_scc1 L_a_hx
            s_waitcnt lgkmcnt(0)
            v_cmp_eq_u32 vcc, 0, v87
            s_cbranch_vccz L_a_hx
            s_sleep 1
            s_branch L_a_hw
L_a_hx:""")
        flag_store(a, 38, "s55", 84)
        a("L_a_hy:")
    a(f"""L_a_fin:
    v_mov_b32 v2, {LF}
    v_mov_b32 v4, 0
    ds_write_b32 v{fz_2.YF}, v4
    ds_write_b32 v{fz_2.YF}, v4 offset:16
    ds_write_b32 v2, v4
    ds_write_b32 v2, v4 offset:8""")
    if cfg.get("stb") == 50: stamp(a, cfg, 1)
    dbg = cfg.get("stb") == 50
    if cfg["two"]:
        if h < 2: send(True)
        a("s_waitcnt lgkmcnt(0)\ns_barrier")
        if dbg: stamp(a, cfg, 3); a("s_waitcnt lgkmcnt(0)")
        if h == 2: send(False)
        final_store(a, cfg, 0)
        if dbg: stamp(a, cfg, 4)
        if 2 < h < 6: send(True)
    elif h < 6: send(True)
    if cfg.get("fprio"): a(f"s_setprio {cfg['fprio']}")
    a("s_waitcnt lgkmcnt(0)\ns_barrier")
    if cfg.get("stopf"): a("s_endpgm")
    if dbg: stamp(a, cfg, 5); a("s_waitcnt lgkmcnt(0)")
    if h == 6: send(False)
    final_store(a, cfg, 1 if cfg['two'] else 0)
    if dbg: stamp(a, cfg, 6)
    a(f"""s_waitcnt vmcnt({6 if cfg["two"] else 5}) lgkmcnt(0)
    s_cmp_eq_u32 s48, 0
    s_cbranch_scc1 L_a_nlf
    ds_write_b32 v2, v2
L_a_nlf:""")
    if not cfg.get('xw'): wo_put(a, cfg['wdma'])
    a(f"ds_write_b32 v{fz_2.YF}, v2 offset:16")
    if dbg: a("s_waitcnt lgkmcnt(0)"); stamp(a, cfg, 7); a("s_waitcnt vmcnt(0)"); stamp(a, cfg, 8)
    if cfg.get("fprio"): a("s_setprio 0")
    a("s_branch L_2_lb")

def wissue(a, st, pre=None):
    a(f"s_add_u32 m0, s37, {(st % NW) * WS_}")
    for i in range(5):
        if pre: pre()
        a(f"buffer_load_dwordx4 v{20+i}, s[{SW}:{SW+3}], s36 offen lds")
        a("s_add_u32 m0, m0, 1024" if i < 4 else f"s_add_u32 s36, s36, {32*3840}")
    if st & 1: a("s_cmp_eq_u32 s36, s33\ns_cselect_b32 s36, s32, s36")
def xissue(a, c):
    a(f"s_mov_b32 m0, {XB + (c % NX)*XS}\ns_add_u32 s37, s36, {128*c}")
    for i in range(2*RT):
        a(f"buffer_load_dwordx4 v{20 + (i & 1)}, s[{SX}:{SX+3}], s37 offen lds")
        if i < 2*RT-1: a("s_add_u32 m0, m0, 1024\ns_add_u32 s37, s37, 20480")

def xissue_h(a, u, pre=None):
    c, hf = u >> 1, u & 1
    if hf == 0: a("s_add_u32 s36, s36, 128\ns_cmp_eq_u32 s36, s33\ns_cselect_b32 s36, s32, s36")
    a(f"s_mov_b32 m0, {XB + (c % NX)*XS + hf*RT*1024}\ns_add_u32 s37, s36, {hf*RT*20480}")
    for i in range(hf*RT, hf*RT + RT):
        if pre: pre()
        a(f"buffer_load_dwordx4 v{20 + (i & 1)}, s[{SX}:{SX+3}], s37 offen lds")
        if i < hf*RT + RT - 1: a("s_add_u32 m0, m0, 1024\ns_add_u32 s37, s37, 20480")

def loaders_head(a, cfg):
    if cfg.get("lprio"): a(f"s_setprio {cfg['lprio']}")
    a(f"""s_cmp_lg_u32 s{sWAVE}, 7
    s_cbranch_scc1 L_a_wl
    v_lshrrev_b32 v2, 3, v0
    v_and_b32 v3, 7, v0
    v_lshrrev_b32 v4, 4, v0
    v_xor_b32 v3, v3, v4
    v_mul_u32_u24 v2, 2560, v2
    v_lshl_add_u32 v20, v3, 4, v2
    v_xor_b32 v21, 64, v20
    s_lshl_b32 s36, s{sP0}, 1
    s_add_u32 s36, s36, s{sPAR}
    s_mul_i32 s32, s36, 1280
    s_add_u32 s33, s32, 1280
    s_lshl_b32 s36, s{sROT}, 7
    s_add_u32 s36, s36, s32
    s_mov_b32 m0, {XB}
    s_mov_b32 s37, s36
    s_movk_i32 s27, {RT}
    s_waitcnt lgkmcnt(0)""")
    if cfg.get("stw"): stamp(a, cfg, 1)
    a(f"""L_a_x0:
    buffer_load_dwordx4 v20, s[{SX}:{SX+3}], s37 offen lds
    s_add_u32 m0, m0, 1024
    s_add_u32 s37, s37, 20480
    buffer_load_dwordx4 v21, s[{SX}:{SX+3}], s37 offen lds
    s_add_u32 m0, m0, 1024
    s_add_u32 s37, s37, 20480
    s_sub_u32 s27, s27, 1
    s_cmp_lg_u32 s27, 0
    s_cbranch_scc1 L_a_x0
    s_branch L_a_xl
L_a_wl:
    s_sub_u32 s27, s{sWAVE}, 4
    s_mul_i32 s28, s27, 320
    v_add_u32 v3, s28, v0
    s_mul_i32 s32, s{sGAM}, 160
    s_add_u32 s33, s32, {640*3840}
    s_mul_i32 s36, s{sROT}, {64*3840}
    s_add_u32 s36, s36, s32
    s_mul_i32 s37, s27, 5120
    s_add_u32 s37, s37, {WB}
    s_movk_i32 s28, 2185
    s_movk_i32 s29, 6554
    s_movk_i32 s30, 1120
    s_movk_i32 s31, {4*3840}""")
    for i in range(5):
        a(f"""v_mul_u32_u24 v4, s28, v3
        v_mul_u32_u24 v5, s29, v3
        v_lshrrev_b32 v5, 16, v5
        v_mul_u32_u24 v5, s30, v5
        v_lshl_add_u32 v5, v3, 4, v5
        v_bfe_u32 v6, v4, 18, 1
        v_bfe_u32 v4, v4, 19, 1
        v_sub_u32 v4, v6, v4
        v_mad_i32_i24 v{20+i}, s31, v4, v5""")
        if i < 4: a("v_add_u32 v3, 64, v3")
    a("s_waitcnt lgkmcnt(0)")
    if cfg.get("stw"): stamp(a, cfg, 1)
    wissue(a, 0)
    a("s_branch L_a_w2")

def loaders(a, cfg):
    bars = cfg["bars"]; D = cfg["D"]
    nb = lambda st: min([b for b in bars if b > st] + [20])
    ops = []
    def run(issue, nper, per_steps, nslots, first):
        nonlocal ops
        half = first and cfg.get("xh", 1)
        ops = []; n = 20 // per_steps; issued = 0; wo = 0; hu = 2
        atoms = []
        def slot():
            k = 0
            while atoms and k < (cfg["ls"] if not first else cfg["ls"] - 1):
                x = atoms.pop(0); a.ext(x); k += len(x)
        def go():
            nonlocal issued
            if "nodma" not in cfg.get("exp", ""): issue(a, issued, slot)
            ops.extend([issued]*nper); issued += 1
        def goh():
            nonlocal issued, hu
            if "nodma" not in cfg.get("exp", ""): xissue_h(a, hu, slot)
            ops.extend([hu >> 1]*RT); hu += 1; issued = hu >> 1
        ops.extend([0]*nper); issued = 1
        stamp(a, cfg, 2) if cfg.get("stw") else None
        if half:
            while hu < cfg["pro"] + 1: goh()
        else:
            while issued*per_steps < cfg["pro"]: go()
        import fz_2
        later = Asm()
        tag_ptr(later); p2_decode(later); store_addr(later, 32, cfg['two'], cfg['nh']); wo_setup(later); fz_2.load_setup(later)
        if cfg['s2'] == -1: fz_2.load_setup2(later)
        for x in later.l:
            if x.startswith("s_cselect"): atoms[-1].append(x)
            else: atoms.append([x])
        if cfg["ls"] == 0:
            for x in atoms: a.ext(x)
            atoms.clear()
        wo_any = (lambda c: wo_issue(a) if c < cfg['wdma'] else wo_load(a, c)) if not cfg.get('xw') else (lambda c: None)
        def rdy_check():
            if not first: return
            a(f"s_waitcnt vmcnt({len(ops) - 1 - ops.index('rdy')})\nv_cmp_ne_u64 vcc, {s(sNC,2)}, v[84:85]\ns_and_b32 s27, vcc_lo, s57\ns_cbranch_scc0 L_a_rdy")
            poll(a, fz_2.FV, "s56", "s57", 0, 84, sleep=4)
            a("L_a_rdy:")
        for b in bars:
            if b == cfg["rdy"][1]: rdy_check()
            last = (nb(b) - 1) // per_steps
            assert issued > last
            k = max(i for i, t in enumerate(ops) if t == last)
            a(f"s_waitcnt vmcnt({len(ops) - 1 - k})")
            if cfg.get("stw") and 0 <= b - cfg.get("stb", 0) < 6: stamp(a, cfg, 3 + b - cfg.get("stb", 0))
            a("s_barrier")
            if b == cfg["rdy"][0]: assert not atoms
            if first and b == cfg["rdy"][0]:
                a(f"""s_lshl_b32 s57, 0x01010101, s{sCB}
                s_mov_b32 exec_hi, 0
                s_mov_b32 exec_lo, s57
                buffer_load_dwordx2 v[84:85], v{fz_2.FV}, s[{SWS}:{SWS+3}], s56 offen sc1
                s_mov_b64 exec, -1"""); ops.append("rdy")
            if half:
                while hu < 20 and hu < nb(b) + D + 1 and (hu >> 1) < b//2 + nslots: goh()
            else:
                while issued < n and issued*per_steps < nb(b) + D and issued < b//per_steps + nslots: go()
            if b == 8: a("s_waitcnt lgkmcnt(0)"); tag_load(a)
            if b == 10:
                tag_check(a, 84)
                if first: a(f"v_mov_b32 v84, s{sNC}\nv_mov_b32 v85, s{sNC+1}\nv_mov_b32 v86, {LN}\nds_write_b64 v86, v[84:85]\nv_mov_b32 v86, {LH2}\nv_mov_b32 v84, 0\nds_write_b32 v86, v84\ns_waitcnt lgkmcnt(0)")
            if b == cfg["s2"]: fz_2.load_setup2(a)
            if b in cfg["wob"]:
                assert b >= cfg["rdy"][1]
                wo_any(wo); ops.extend(["wo"]*5); wo += 1
        if cfg["rdy"][1] == 20: rdy_check()
        a("s_barrier")
        npre = 5 - wo; ph = 0 if cfg['pat'] >= 2 else -1
        pk = min(npre, cfg["vpk"] if not first else cfg["ppk"]); nv = min(npre, pk + cfg["vat"])
        assert wo + pk >= cfg['wdma']
        for k in range(pk): wo_any(wo + k)
        if not first: fz_2.v_peek(a)
        else: a((f"s_add_u32 s57, s49, {FP_OFF - FB_OFF}" if cfg["pat"] < 5 else "s_mov_b32 s57, s56") + f"\ns_mov_b32 exec_hi, {ph}\nbuffer_load_dwordx2 v[84:85], v{fz_2.FV}, s[{SWS}:{SWS+3}], s57 offen sc1\ns_mov_b32 exec_hi, -1")
        for k in range(pk, nv): wo_any(wo + k)
        if cfg["s2"] == 20: fz_2.load_setup2(a)
        if not first:
            a(f"s_waitcnt vmcnt({0 if cfg.get('xw') else 5*(nv - pk)})"); fz_2.v_try(a, cfg)
        else:
            a(f"s_waitcnt vmcnt({0 if cfg.get('xw') else 5*(nv - pk)})\ns_mov_b32 exec_hi, {ph}\nv_cmp_ne_u64 vcc, {s(sNC,2)}, v[84:85]\ns_mov_b32 exec_hi, -1\ns_cbranch_vccz L_a_mk")
            poll(a, fz_2.FV, "s57", -1, ph, 84, sleep=2)
            a("L_a_mk:")
        for k in range(nv, npre): wo_any(wo + k)
    a("L_a_w2:")
    run(wissue, 5, 1, NW, False)
    a("s_branch L_a_fin\nL_a_xl:")
    run(xissue, 2*RT, 2, NX, True)
    loader_fin(a, cfg)

def helper(a, cfg):
    a(f"""L_h_o:
    ; re-lay wo in MFMA fragment order (5 waves, one k-step each); workgroups 0..7 also clear one replica of
    s_load_dwordx2 s[{SAUX}:{SAUX+1}], s[0:1], 80
    s_load_dwordx2 s[{SWO}:{SWO+1}], s[0:1], 16
    s_memrealtime s[34:35]
    s_mov_b32 s{SAUX+2}, 256
    s_mov_b32 s{SWO+2}, 819200
    s_mov_b32 s{SWO+3}, 0x20000""")
    p2_decode(a)
    a(f"""v_mov_b32 v3, 0
    s_cmp_ge_u32 s{sWAVE}, 5
    s_cbranch_scc1 L_h_f""")
    for i in range(5):
        a(f"""v_add_u32 v7, {64*i}, v0
        v_mul_u32_u24 v4, 6554, v7
        v_lshrrev_b32 v4, 16, v4
        v_mul_u32_u24 v5, 1120, v4
        v_lshl_add_u32 v5, v7, 4, v5
        v_bfe_u32 v6, v4, 2, 1
        v_bfe_u32 v4, v4, 3, 1
        v_sub_u32 v4, v6, v4
        v_mul_i32_i24 v4, {4*1280}, v4
        v_add_u32 v{26+i}, v5, v4""")
    a(f"""s_mul_i32 s27, s{sN}, 5
    s_add_u32 s27, s27, s{sWAVE}           ; k-step
    s_mul_i32 s38, s27, {32*1280}
    s_mul_i32 s28, s{sXCD}, 160
    s_add_u32 s38, s38, s28
    s_mul_i32 s39, s{sWAVE}, 5120
    s_mov_b32 m0, s39
    s_mul_i32 s28, s{sXCD}, 20
    s_add_u32 s28, s28, s27
    s_mul_i32 s30, s28, 5120
    s_add_u32 s30, s30, {WP_OFF}
    s_add_u32 s31, s30, 4096
    v_lshrrev_b32 v6, 5, v0
    v_bfe_u32 v7, v0, 2, 3
    v_lshl_add_u32 v6, v6, 4, v7
    v_mul_u32_u24 v6, 160, v6
    v_and_b32 v7, 3, v0
    v_lshl_add_u32 v6, v7, 3, v6
    v_add_u32 v6, s39, v6
    v_lshlrev_b32 v5, 4, v0
    s_waitcnt lgkmcnt(0)""")
    for i in range(5):
        a(f"buffer_load_dwordx4 v{26+i}, s[{SWO}:{SWO+3}], s38 offen lds")
        if i < 4: a("s_add_u32 m0, m0, 1024")
    a("s_waitcnt vmcnt(0)")
    for t in range(5):
        for h in range(2): a(f"ds_read_b64_tr_b16 {v(40+4*t+2*h,2)}, v6 offset:{h*1280 + 32*t}")
    a("s_waitcnt lgkmcnt(0)")
    for t in range(5):
        a(f"buffer_store_dwordx4 {v(40+4*t,4)}, v5, s[{SWS}:{SWS+3}], s{30 + t//4} offen offset:{1024*(t & 3)} sc1")
    a(f"""s_branch L_h_p
L_h_f:
    s_xor_b32 s27, s{sWAVE}, 7
    s_or_b32 s27, s27, s2
    s_cbranch_scc1 L_h_p
    s_waitcnt lgkmcnt(0)
    s_or_b32 s34, s34, 1
    v_mov_b32 v4, s34
    v_mov_b32 v5, s35
    s_mov_b64 exec, 1
    buffer_store_dwordx2 v[4:5], v3, s[{SAUX}:{SAUX+3}], 0 offen sc1
    s_mov_b64 exec, -1
L_h_p:
    s_waitcnt lgkmcnt(0)
""")
    def marks(bar):
        a(f"""; write the "not yet produced" pattern over 1/32 of the branch-A hand-off buffer
        v_lshlrev_b32 v12, 4, v0
        v_mov_b32 v8, -1
        v_mov_b32 v9, -1
        v_mov_b32 v10, -1
        v_mov_b32 v11, -1
        s_lshl_b32 s30, s2, 3
        s_add_u32 s30, s30, s{sWAVE}
        s_lshl_b32 s31, s30, 5
        s_add_u32 s31, s31, {Z_OFF}
        s_mul_i32 s30, s30, 10240
        s_add_u32 s30, s30, {O_OFF}""")
        if bar: a("s_barrier")
        for k in range(0 if cfg.get('xp') else 10):
            a(f"buffer_store_dwordx4 v[8:11], v12, s[{SWS}:{SWS+3}], s30 offen offset:{1024*(k & 3)} sc1")
            if k & 3 == 3: a("s_add_u32 s30, s30, 4096")
        a(f"""s_cmp_lg_u32 s{sWAVE}, 0
        s_cbranch_scc1 L_h_nz
        s_mov_b64 exec, 0xffff
        buffer_store_dwordx4 v[8:11], v12, s[{SWS}:{SWS+3}], s31 offen sc1
        s_mov_b64 exec, -1
L_h_nz:""")
    if cfg["pat"] >= 5: marks(cfg["pat"] == 6)
    stamp(a, cfg, 4)
    a(f"s_cmp_lg_u32 s{sWAVE}, 0\ns_cbranch_scc1 L_h_t0")
    tag_load(a)
    a("L_h_t0:\ns_waitcnt vmcnt(0) lgkmcnt(0)\ns_barrier")
    stamp(a, cfg, 5)
    a(f"s_cmp_eq_u32 s{sWAVE}, 0\ns_cbranch_scc1 L_h_t1")
    tag_load(a)
    a("L_h_t1:")
    tag_check(a, 2)
    a(f"""s_cmp_lg_u32 s{sWAVE}, 0
    s_cbranch_scc1 L_h_nf
    s_lshl_b32 s27, s2, 7
    s_add_u32 s27, s27, {FA_OFF + 96*128}""")
    flag_addr(a, 2, 14, 3)
    flag_store(a, 2, "s27", 4)
    a("L_h_nf:")
    if cfg["pat"] == 2:
        marks(True)
        a("s_waitcnt vmcnt(0)\ns_barrier")
        stamp(a, cfg, 3)
        a(f"""s_cmp_lg_u32 s{sWAVE}, 6
        s_cbranch_scc1 L_2_ent
        s_lshl_b32 s27, s2, 7
        s_add_u32 s27, s27, {FP_OFF}""")
        flag_addr(a, 2, 13, 3)
        flag_store(a, 2, "s27", 4)
    a("s_branch L_2_ent")
```

```python
from fz_common import *
UB, SB = 81920, 122880
sJ, sT, sH, sE, sBETA = 23, 24, 25, 26, 33
SBG = 40

def gen_tile(a, dst, vE, vD, tmp):
    A, B, K, th = tmp, tmp + 8, tmp + 16, tmp + 18
    for m, S in ((0, A), (1, B)):
        for j in range(4):
            if m == 0: a(f"v_mul_f32 v{th+j}, v{vE}, v{vD+j}")
            else: a(f"v_add_f32 v{th+j}, v{K+1}, v{th+j}")
        if m == 0: a(f"v_mul_f32 v{K+1}, 0x41800000, v{vE}")
        for j in range(4): a(f"v_cos_f32 v{S+j}, v{th+j}\nv_sin_f32 v{S+4+j}, v{th+j}")
    a(f"v_cos_f32 v{K}, v{K+1}")
    def pack(m, S):
        d = dst + 4*(m >> 1) + 2*(m & 1)
        a(f"v_cvt_pk_bf16_f32 v{d}, v{S}, v{S+1}\nv_cvt_pk_bf16_f32 v{d+1}, v{S+2}, v{S+3}")
        a(f"v_cvt_pk_bf16_f32 v{d+20}, v{S+4}, v{S+5}\nv_cvt_pk_bf16_f32 v{d+21}, v{S+6}, v{S+7}")
    pack(0, A)
    a(f"v_add_f32 v{K}, v{K}, v{K}")
    pack(1, B)
    for m in range(2, 10):
        P, C = (A, B) if m % 2 == 0 else (B, A)
        for u in range(4):
            a(f"v_pk_fma_f32 {v(P+2*u,2)}, {v(C+2*u,2)}, {v(K,2)}, {v(P+2*u,2)} op_sel_hi:[1,0,1] neg_lo:[0,0,1] neg_hi:[0,0,1]")
        pack(m, P)

_bg = [0]
def bg(a, who=3):
    _bg[0] += 1
    if who != 3: a(f"s_cmp_lt_u32 s{sWAVE}, 3\ns_cbranch_scc{who - 1} L_bg{_bg[0]}")
    a(f"""s_sub_i32 s46, s46, 1
    s_cmp_lt_i32 s46, 0
    s_cbranch_scc1 L_bg{_bg[0]}
    s_cmp_ge_u32 s47, 10
    s_cselect_b32 s27, 10, 0
    s_sub_u32 s47, s47, s27
    s_mul_i32 s27, s47, s45
    s_add_u32 s27, s27, s44
    buffer_load_dword v1, v12, s[{SBG}:{SBG+3}], s27 offen
    s_add_u32 s47, s47, 2
L_bg{_bg[0]}:""")

def b1(a, cfg):
    MAT = 40
    GF = 120
    TMP = 216
    c0 = cfg.get("bstart", 5)
    a(f"""L_b1:
    s_sub_u32 s{sBETA}, s{sN}, 4""")
    a(f"""s_cmp_ge_u32 s{sWAVE}, 3
    s_cselect_b32 s27, {c0+1}, {c0}
    s_add_u32 s47, s27, s{sROT}
    s_sub_u32 s46, 11, s27
    s_lshr_b32 s46, s46, 1
    s_cmp_ge_u32 s{sWAVE}, 6
    s_cselect_b32 s46, 0, s46
    s_lshr_b32 s{sJ}, s{sBETA}, 1
    s_lshl_b32 s{sJ}, s{sJ}, 3
    s_add_u32 s{sJ}, s{sJ}, s{sXCD}
    s_and_b32 s{sE}, s{sBETA}, 1
    s_and_b32 s{sT}, s{sWAVE}, 3
    s_lshr_b32 s{sH}, s{sWAVE}, 2
    s_sub_u32 s27, 2048, s{sJ}
    s_cmp_eq_u32 s{sJ}, 0
    s_cselect_b32 s27, 32, s27
    s_cselect_b32 s28, 64, -64
    s_cmp_eq_u32 s{sH}, 0
    s_cselect_b32 s27, s{sJ}, s27
    s_cselect_b32 s28, 64, s28
    s_lshl_b32 s29, s{sT}, 3
    v_lshrrev_b32 v2, 3, v0
    v_add_u32 v2, s29, v2
    v_mul_i32_i24 v2, s28, v2
    v_add_u32 v2, s27, v2
    v_lshrrev_b32 v3, 4, v0
    v_lshlrev_b32 v3, 1, v3
    v_and_b32 v4, 7, v0
    v_xor_b32 v3, v3, v4
    v_mul_u32_u24 v2, 1280, v2
    v_lshl_add_u32 v15, v3, 4, v2
    s_mul_i32 s30, s{sE}, 640
    s_lshl_b32 s31, s{sWAVE}, 10
    s_lshl_b32 s29, s30, 6
    s_add_u32 m0, s29, s31""")
    nx = [0]
    def xdma(n):
        for _ in range(n):
            a(f"buffer_load_dwordx4 v15, s[{SX}:{SX+3}], s30 offen lds")
            nx[0] += 1
            if nx[0] == 5:
                a(f"s_xor_b32 s30, s{sE}, 1\ns_mul_i32 s30, s30, 640\ns_lshl_b32 s29, s30, 6\ns_add_u32 m0, s29, s31")
            else:
                a("s_add_u32 m0, m0, 8192\ns_add_u32 s30, s30, 128")
    xdma(4)
    p2_decode(a); tag_ptr(a)
    p, g = 13, 14
    a(f"""v_and_b32 v{p}, 15, v0
    v_lshrrev_b32 v{g}, 4, v0
    s_mul_i32 s35, s{sE}, 0x80008000""")
    for i in range(2):
        a(f"""s_and_b32 s{sT}, s{sWAVE}, 1
        s_lshl_b32 s{sT}, s{sT}, 1
        s_add_u32 s{sT}, s{sT}, {i}
        s_add_u32 s27, s{sT}, 1
        s_and_b32 s27, s27, 2                  ; T in (1,2)
        s_cselect_b32 s48, 0x41800000, 0
        s_cselect_b32 s49, {fbits(-0.25)}, 0
        s_mov_b32 s50, 0
        s_mov_b32 s51, 1.0
        s_mov_b32 s53, 1.0
        s_and_b32 s27, s{sT}, 1
        s_cselect_b32 s52, -1.0, 1.0
        s_mov_b32 s54, s52
        s_cmp_lg_u32 s{sJ}, 0
        s_cbranch_scc1 L_b_g{i}
        s_and_b32 s27, s{sT}, 1
        s_cselect_b32 s49, {fbits(-0.25)}, 0
        s_cselect_b32 s53, 0, 1.0
        s_cmp_ge_u32 s{sT}, 2
        s_cselect_b32 s50, {fbits(1/64)}, 0
        s_cselect_b32 s51, 0, 1.0
        s_cselect_b32 s52, s52, 0
        s_cselect_b32 s54, 1.0, -1.0
        s_and_b32 s27, s{sT}, 1
        s_cselect_b32 s54, s54, 0
    L_b_g{i}:
        v_cvt_f32_u32 v4, v{p}
        v_cmp_eq_u32 vcc, 0, v{p}
        v_mov_b32 v5, s49
        v_fmac_f32 v5, s50, v4                 ; phi (p != 0)
        v_mov_b32 v6, s48
        v_cndmask_b32 v4, v4, v6, vcc          ; P
        v_mul_f32 v4, {fbits(1/32)}, v4
        v_cndmask_b32 v5, v5, 0, vcc
        v_mov_b32 v6, s51
        v_mov_b32 v7, s53
        v_cndmask_b32 v6, v6, v7, vcc          ; A0
        v_mov_b32 v7, s52
        v_mov_b32 v8, s54
        v_cndmask_b32 v7, v7, v8, vcc          ; A1
        v_lshrrev_b32 v8, 1, v{g}
        v_and_b32 v9, 1, v{g}
        v_lshlrev_b32 v9, 2, v9
        v_lshl_add_u32 v8, v8, 4, v9
        v_cvt_f32_u32 v8, v8
        v_fmac_f32 v5, v4, v8""")
        for sl in range(8):
            k = 8*(sl >> 2) + (sl & 3)
            a(f"v_mov_b32 v9, {fbits(float(k))}\nv_fma_f32 v{TMP+sl}, v4, v9, v5\nv_cos_f32 v{TMP+sl}, v{TMP+sl}")
        for ks in range(2):
            for sl in range(8): a(f"v_mul_f32 v{TMP+8+sl}, v{6+ks}, v{TMP+sl}")
            for u in range(4): a(f"v_cvt_pk_bf16_f32 v{GF+16*i+4*ks+u}, v{TMP+8+2*u}, v{TMP+9+2*u}")

        for u in range(8): a(f"v_xor_b32 v{GF+16*i+8+u}, s35, v{GF+16*i+u}")
        if i == 0: xdma(1)
    XA, AR, AI, UW, SG = 2, 6, 7, 16, 17
    a(f"""v_bfe_u32 v10, v0, 2, 3
    v_lshrrev_b32 v11, 5, v0
    v_lshl_add_u32 v11, v11, 4, v10
    v_lshlrev_b32 v11, 7, v11
    v_and_b32 v10, 6, v10                  ; swizzle
    v_bfe_u32 v8, v0, 1, 1
    s_and_b32 s27, s{sWAVE}, 2
    v_or_b32 v8, s27, v8
    v_xor_b32 v10, v10, v8
    v_lshl_add_u32 v11, v10, 4, v11
    v_and_b32 v10, 1, v0
    v_lshl_add_u32 v{XA}, v10, 3, v11
    s_lshl_b32 s28, s{sH}, 13
    v_add_u32 v{XA}, s28, v{XA}
    v_xor_b32 v{XA+1}, 64, v{XA}
    v_add_u32 v{XA+2}, 40960, v{XA}
    v_add_u32 v{XA+3}, 40960, v{XA+1}
    s_lshl_b32 s27, s27, 2
    s_lshl_b32 s28, s{sH}, 11
    s_add_u32 s27, s27, s28
    s_mul_i32 s28, s{sT}, 5120
    s_add_u32 s27, s27, s28
    s_add_u32 s27, s27, {UB}
    v_lshl_add_u32 v10, v0, 4, s27
    v_add_u32 v11, 20480, v10
    v_subrev_u32 v{UW}, 5120, v10
    s_cmp_eq_u32 s{sE}, 0
    s_cselect_b64 vcc, -1, 0
    s_xor_b32 s27, s{sT}, 3
    s_or_b32 s27, s27, s{sJ}
    s_cselect_b32 s28, 0, 0x00010001
    s_or_b32 vcc_lo, vcc_lo, s28
    s_or_b32 vcc_hi, vcc_hi, s28
    v_cndmask_b32 v{AR}, v11, v10, vcc
    v_cndmask_b32 v{AI}, v10, v11, vcc
    v_mov_b32 v10, s35
    v_cndmask_b32 v{SG}, 0, v10, vcc""")
    xdma(1)
    a(f"""s_sub_u32 s27, 3, s{sE}
    s_cmp_lt_u32 s{sWAVE}, s27
    s_cselect_b32 s50, 1, 0
    s_cselect_b32 s49, 0, 2
    s_mul_i32 s28, s{sE}, 5
    s_add_u32 s28, s28, s{sWAVE}
    s_sub_u32 s28, s28, 3
    s_lshl_b32 s29, s{sWAVE}, 1
    s_cmp_lg_u32 s50, 0
    s_cselect_b32 s48, s29, s28
    s_cmp_lg_u32 s{sE}, 0
    s_cselect_b32 s49, 1, s49
    v_lshlrev_b32 v8, 2, v{g}
    v_cvt_f32_u32 v208, v8
    v_add_f32 v209, 1.0, v208
    v_add_f32 v210, 2.0, v208
    v_add_f32 v211, 2.0, v209""")
    for k in range(2):
        if k == 1: a("s_cmp_eq_u32 s50, 0\ns_cbranch_scc1 L_b_gd")
        a(f"""s_lshl_b32 s27, s48, 6
        s_add_u32 s27, s27, s49
        s_add_u32 s27, s27, {64*k}
        v_lshl_add_u32 v8, v{p}, 2, s27
        v_cvt_f32_u32 v8, v8
        v_mul_f32 v8, {fbits(1/640)}, v8""")
        gen_tile(a, MAT + 40*k, 8, 208, TMP)
        if k == 0:
            xdma(4)
    a("L_b_gd:")
    gP, gM, gM0, UA = 8, 9, 10, 11
    a(f"""s_lshl_b32 s51, s{sE}, 8
    s_add_u32 s51, s51, 768
    s_lshl_b32 s27, s51, 2
    v_mul_u32_u24 v{gP}, s27, v{g}
    s_mul_i32 s27, s51, 29
    v_sub_u32 v{gM}, s27, v{gP}
    v_cmp_eq_u32 s[54:55], 0, v{g}
    s_mul_i32 s27, s51, 13
    v_mov_b32 v{gM0}, s27
    s_cmp_eq_u32 s{sJ}, 0
    v_cndmask_b32 v{gM0}, v{gM}, v{gM0}, s[54:55]
    s_cselect_b64 s[56:57], s[54:55], 0
    s_lshr_b32 s27, s49, 1
    s_mul_i32 s27, s27, 20480
    s_add_u32 s27, s27, {UB}
    v_lshl_add_u32 v{UA}, v0, 4, s27""")
    stamp(a, cfg, 1)
    a("s_waitcnt vmcnt(0) lgkmcnt(0)")
    for w in cfg["bgw"][4]: bg(a, w)
    a("s_barrier")
    stamp(a, cfg, 2)
    if cfg.get("stamps"): a("s_waitcnt lgkmcnt(0)")
    XF = (152, 184); AC = (216, 232); T = 248
    cv = lambda d, s0: f"v_cvt_pk_bf16_f32 v{d}, v{s0}, v{s0+1}"
    def rd(tp):
        out = []
        for r in range(4):
            cb = (10*r + 2*tp) // 4; reg = XA + ((r + tp) & 1) + 2*(cb // 5)
            for ks in range(2):
                for h in range(2):
                    out.append(f"ds_read_b64_tr_b16 {v(XF[tp&1] + 8*r + 4*ks + 2*h, 2)}, v{reg} offset:{(cb % 5)*8192 + ks*4096 + h*1024}")
        return out
    def mf(tp):
        out = []
        for r0 in (0, 2):
            for ks in range(2):
                for r in (r0, r0+1):
                    for i in range(2):
                        d = v(AC[tp&1] + 8*i + 4*(r & 1), 4)
                        neg = ((0, 1, 1, 0), (0, 0, 1, 1))[i][r]
                        out.append(f"v_mfma_f32_16x16x32_bf16 {d}, {v(XF[tp&1] + 8*r + 4*ks, 4)}, {v(GF + 16*i + 8*neg + 4*ks, 4)}, {d if (ks or r0) else 0}")
        return out
    def fin1(tp, odd):
        out = []
        for i in range(2):
            c = AC[tp & 1] + 8*i; P = c
            if not odd:
                out += [f"v_add_f32 v{T+4+u}, v{c+u}, v{c+4+u}" for u in range(4)] + [f"v_sub_f32 v{c+4+u}, v{c+u}, v{c+4+u}" for u in range(4)]
                P = T + 4
            out += [cv(c, P), cv(c+1, P+2), cv(c+2, c+4), cv(c+3, c+6)]
            if i and odd: out += [f"v_xor_b32 v{c+2}, v{SG}, v{c+2}", f"v_xor_b32 v{c+3}, v{SG}, v{c+3}"]
            if i: out += [f"ds_write_b64 v{AR}, {v(c,2)} offset:{1024*tp}", f"ds_write_b64 v{AI}, {v(c+2,2)} offset:{1024*tp}"]
            else: out += [f"ds_write_b64 v{UW}, {v(c,2)} offset:{1024*tp}", f"ds_write_b64 v{UW}, {v(c+2,2)} offset:{20480 + 1024*tp}"]
        return out
    UF = (120, 152, 184); HA0 = 216; E = 120; PK = 136
    def rdh(kp, odd):
        return [f"ds_read_b128 {v(UF[kp%3] + 16*ab + 4*t, 4)}, v{UA} offset:{ab*20480 + (5*t + kp)*1024}" for ab in range(2 if odd else 1) for t in range(4)]
    def mfh(kp, odd, n):
        out = []
        if odd:
            for ab in range(2):
                for k in range(n):
                    for t in range(4):
                        d = v(HA0 + 20*k + 4*t, 4)
                        out.append(f"v_mfma_f32_16x16x32_bf16 {d}, {v(UF[kp%3] + 16*ab + 4*t, 4)}, {v(MAT + 40*k + 20*ab + 4*kp, 4)}, {d if (kp or ab) else 0}")
        else:
            for k in range(n):
                for q, (t, sn) in enumerate(((0, 0), (1, 1), (2, 0), (3, 1), (3, 0))):
                    d = v(HA0 + 20*k + 4*q, 4)
                    out.append(f"v_mfma_f32_16x16x32_bf16 {d}, {v(UF[kp%3] + 4*t, 4)}, {v(MAT + 40*k + 20*sn + 4*kp, 4)}, {d if kp else 0}")
        return out
    def hidden(odd, n):
        w = 8 if odd else 4
        for kp in range(5):
            a(f"s_waitcnt lgkmcnt({w if kp < 4 else 0})")
            a.ext(interleave(mfh(kp, odd, n), rdh(kp+2, odd) if kp < 3 else []))
    def put(pitch):
        a(f"v_add_u32 v3, v2, v{gP}\nv_add_u32 v4, v2, v{gM}\nv_add_u32 v5, v2, v{gM0}")
        for rr in range(4):
            a(f"ds_write_b32 v3, v{PK+rr} offset:{rr*pitch}")
            a(f"ds_write_b32 v{4 if rr else 5}, v{PK+4+rr} offset:{(3-rr)*pitch}")
    def tile(odd, k, u):
        HA = HA0 + 20*k
        a(f"""s_add_u32 s27, s48, {k}
        s_lshl_b32 s27, s27, 4
        v_add_u32 v7, s27, v{p}
        v_mul_u32_u24 v6, 3277, v7
        v_lshrrev_b32 v6, 16, v6
        v_mul_u32_u24 v2, 20, v6
        v_sub_u32 v7, v7, v2""")
        if odd:
            a(f"v_lshlrev_b32 v2, 7, v6\nv_lshl_add_u32 v2, v7, 2, v2\nv_add_u32 v2, {SB}, v2")
        else:
            a(f"""s_cmp_eq_u32 s49, 0
            s_cselect_b32 s27, 80, 0
            s_add_u32 s27, s27, {SB}
            v_mul_u32_u24 v2, 192, v6
            v_lshl_add_u32 v2, v7, 2, v2
            v_add_u32 v2, s27, v2
            v_cmp_gt_u32 vcc, 4, v6
            v_mov_b32 v15, {SB + 176}
            v_cndmask_b32 v2, v15, v2, vcc""")
        if not odd: a(f"v_cndmask_b32 v{HA+12}, v{HA+12}, v{HA+16}, s[56:57]")
        for op, d, x, y in (("sub", E, HA, HA+4), ("add", E+8, HA, HA+4), ("add", E+4, HA+12, HA+8), ("sub", E+12, HA+12, HA+8)):
            for uu in range(4): a(f"v_{op}_f32 v{d+uu}, v{x+uu}, v{y+uu}")
        for kk, t in enumerate((0, 3, 2, 1)):
            a(f"v_cndmask_b32 v{E+4*kk}, v{E+4*kk}, v{HA+4*t}, s[54:55]")
        for rr in range(4):
            a(f"v_cvt_pk_bf16_f32 v{PK+rr}, v{E+rr}, v{E+4+rr}\nv_cvt_pk_bf16_f32 v{PK+4+rr}, v{E+8+rr}, v{E+12+rr}")
        put(1024 if odd else 768)
        if not odd:
            a(f"""s_cmp_lg_u32 s49, 0
            s_cbranch_scc1 L_b_nd{u}
            v_mul_u32_u24 v2, 192, v6
            v_add_u32 v2, {SB - 192 + 160}, v2
            v_cmp_eq_u32 vcc, 0, v7
            v_cmp_lt_u32 s[28:29], 0, v6
            s_and_b64 vcc, vcc, s[28:29]
            v_cndmask_b32 v2, v15, v2, vcc""")
            put(768)
            a(f"L_b_nd{u}:")
    def mark():
        _bg[0] += 1
        a(f"""s_cmp_lt_u32 s{sWAVE}, 3
        s_cbranch_scc1 L_mk{_bg[0]}
        v_lshlrev_b32 v18, 4, v0
        v_mov_b32 v20, -1
        v_mov_b32 v21, -1
        v_mov_b32 v22, -1
        v_mov_b32 v23, -1
        s_sub_u32 s27, s2, 32
        s_lshl_b32 s29, s27, 7
        s_add_u32 s29, s29, {Z_OFF}
        s_mul_i32 s27, s27, 5
        s_add_u32 s27, s27, s{sWAVE}
        s_sub_u32 s27, s27, 3
        s_lshl_b32 s27, s27, 13
        s_add_u32 s27, s27, {O_OFF}
        s_add_u32 s28, s27, 4096""")
        for k in range(8): a(f"buffer_store_dwordx4 v[20:23], v18, s[{SWS}:{SWS+3}], s{27 + k//4} offen offset:{1024*(k & 3)} sc1")
        a(f"""s_cmp_lg_u32 s{sWAVE}, 7
        s_cbranch_scc1 L_mk{_bg[0]}
        s_mov_b64 exec, 0xff
        buffer_store_dwordx4 v[20:23], v18, s[{SWS}:{SWS+3}], s29 offen sc1
        s_mov_b64 exec, -1
L_mk{_bg[0]}:""")
    B = lambda k: [bg(a, w) for w in cfg["bgw"][k]]
    if cfg.get("xb"):
        bg(a); bg(a); bg(a); a("s_waitcnt vmcnt(0)\ns_branch L_b_end")
    a.ext(rd(0))
    B(0)
    a("s_waitcnt lgkmcnt(0)")
    a.ext(interleave(mf(0), rd(1), per=2))
    B(1)
    a(f"s_waitcnt lgkmcnt(0)\ns_cmp_eq_u32 s{sE}, 0\ns_cbranch_scc1 L_b_ev")
    for odd in (1, 0):
        if not odd: a("L_b_ev:")
        a(f"s_cmp_eq_u32 s{sH}, 0\ns_cbranch_scc1 L_b_s2{odd}")
        a.ext(interleave(mf(1), rd(2) + fin1(0, odd), per=2))
        a("s_waitcnt lgkmcnt(4)")
        a.ext(interleave(mf(2), fin1(1, odd), per=2, start=3))
        a.ext(fin1(2, odd))
        a(f"s_branch L_b_s3{odd}\nL_b_s2{odd}:\ns_nop 3")
        a.ext(interleave(mf(1), fin1(0, odd), per=2, start=3))
        a.ext(fin1(1, odd))
        a(f"L_b_s3{odd}:")
        B(2)
        a("s_waitcnt lgkmcnt(0)\ns_barrier")
        stamp(a, cfg, 3)
        if cfg.get("stamps"): a("s_waitcnt lgkmcnt(0)")
        a.ext(rdh(0, odd) + rdh(1, odd))
        if cfg["pat"] == 0: mark()
        a(f"s_cmp_eq_u32 s50, 0\ns_cbranch_scc1 L_b_h1{odd}")
        hidden(odd, 2); B(3); tile(odd, 0, f"a{odd}"); tile(odd, 1, f"b{odd}")
        a(f"s_branch L_b_end\nL_b_h1{odd}:")
        hidden(odd, 1); B(3); tile(odd, 0, f"c{odd}")
        if odd: a("s_branch L_b_end")
    a("L_b_end:")
    tag_load(a)
    if cfg["pat"] == 1: mark()
    stamp(a, cfg, 4)
    a(f"""s_lshl_b32 s27, s{sWAVE}, 10
    v_lshl_add_u32 v2, v0, 4, s27
    v_add_u32 v3, {SB}, v2
    s_mul_i32 s28, s{sJ}, {VJ}
    s_add_u32 s28, s28, {V_OFF + 32768}
    s_lshl_b32 s27, s{sE}, 15
    s_sub_u32 s28, s28, s27""")
    tag_check(a, 4)
    a(f"""{"s_waitcnt vmcnt(0)" if cfg["pat"] < 2 else ""}
    s_barrier
    s_lshl_b32 s29, s{sJ}, 1
    s_add_u32 s29, s29, s{sE}
    s_lshl_b32 s29, s29, 7""")
    if cfg["pat"] < 2:
        a(f"""s_cmp_lg_u32 s{sWAVE}, 7
        s_cbranch_scc1 L_b_np
        s_add_u32 s27, s29, {FP_OFF}""")
        flag_addr(a, 4, 13, 5); flag_store(a, 4, "s27", 6)
        a("L_b_np:")
    for k in range(4): a(f"ds_read_b128 {v(16+4*k,4)}, v3 offset:{8192*k}")
    for k in range(4):
        if k == 3: a(f"s_cmp_eq_u32 s{sE}, 0\ns_cbranch_scc1 L_b_n6")
        a(f"s_waitcnt lgkmcnt({3-k})\nbuffer_store_dwordx4 {v(16+4*k,4)}, v2, s[{SWS}:{SWS+3}], s28 offen sc1\ns_add_u32 s28, s28, 8192")
    a("L_b_n6:")
    a(f"""s_waitcnt vmcnt(0) lgkmcnt(0)
    s_barrier""")
    stamp(a, cfg, 5)
    a(f"""s_cmp_lg_u32 s{sWAVE}, 0
    s_cbranch_scc1 L_2_ent
    s_add_u32 s27, s29, {FB_OFF}
""")
    flag_addr(a, 2, 13, 3)
    flag_store(a, 2, "s27", 4)
    a("s_branch L_2_ent")
```

```python
import os
from gl import *
RT = 7; STEP = 16*RT - 7
if os.environ.get("BIGRING"):
    XB, XS, NX = 0, 14336, 4
    WB, WS_, NW = 57344, 15360, 6
else:
    XB, XS, NX = 40960, 14336, 3
    WB, WS_, NW = 83968, 15360, 4
MS = 149504
OP = 176
OS = MS - 112*OP
VB, VP = 102400, 2576
OB = 112896
LF = 112800
YB = OS
O_OFF, V_OFF, Z_OFF, FA_OFF, FB_OFF, ST_OFF, WP_OFF = 0, 0x300000, 0x280000, 0x500000, 0x520000, 0x600000, 0x700000
FP_OFF = 0x540000
VJ = 57344
WSREC = 0x800000
BIG = 0x40000000
SPIN = int(os.environ.get('SPIN', 3000))
SX, SW, SWS, SAUX = 4, 8, 12, 16
sWAVE, sXCD, sN = 20, 21, 22
sCB, sT1 = 84, 85
sROT = 98
SWO, SO = 88, 92

def stamp(a, cfg, k, force=False):
    if cfg.get("prof") and k and not force: return
    if cfg.get("stamps"): a(f"{'s_memtime' if cfg['stamps'] == 'cyc' else 's_memrealtime'} s[{60+2*k}:{61+2*k}]")
def stamp_out(a, cfg, n=12):
    if not cfg.get("stamps"): return
    a(f"s_waitcnt lgkmcnt(0)\ns_mul_i32 s58, s2, {8*12}\ns_add_u32 s58, s58, {ST_OFF}\nv_mov_b32 v1, 0")
    for k in range(n):
        a(f"v_mov_b32 v2, s{60+2*k}\nv_mov_b32 v3, s{61+2*k}\nbuffer_store_dwordx2 v[2:3], v1, s[{SWS}:{SWS+3}], s58 offen offset:{8*k}\ns_nop 1")

def p2_decode(a):
    a(f"""s_load_dwordx2 s[{SO}:{SO+1}], s[0:1], 72
    s_and_b32 s{sCB}, s{sN}, 7
    s_lshr_b32 s86, s{sN}, 4
    s_lshl_b32 s86, s86, 3
    s_add_u32 s86, s86, s{sXCD}
    s_sub_u32 s87, 32, s86
    s_cmp_eq_u32 s86, 0
    s_cselect_b32 s87, 16, s87
    s_bitcmp1_b32 s{sN}, 3
    s_cselect_b32 s{sT1}, s87, s86
    s_mov_b32 s{SO+2}, 2621440
    s_mov_b32 s{SO+3}, 0x20000""")

_uid = [0]
sNC = 96
LN = MS + 8192
LG = LF + 8
LY = LF + 16
def poll(a, voff, soff, lo, hi, tmp, sleep=1, tag=None, issued=False):
    _uid[0] += 1; u = _uid[0]
    a(f"""s_mov_b32 exec_lo, {lo}
    s_mov_b32 exec_hi, {hi}
    s_movk_i32 s59, {SPIN}
    {f"s_branch L_pm{u}" if issued else ""}
L_pl{u}:
    buffer_load_dwordx2 {v(tmp,2)}, v{voff}, s[{SWS}:{SWS+3}], {soff} offen sc1
L_pm{u}:
    s_sub_u32 s59, s59, 1
    s_cbranch_scc1 L_pd{u}
    s_waitcnt vmcnt(0)
    v_cmp_ne_u64 vcc, {tag or s(sNC,2)}, {v(tmp,2)}
    s_cbranch_vccz L_pd{u}
    s_mov_b64 exec, vcc
    s_sleep {sleep}
    s_branch L_pl{u}
L_pd{u}:
    s_mov_b64 exec, -1""")

def tag_ptr(a):
    a(f"s_load_dwordx2 s[{SAUX}:{SAUX+1}], s[0:1], 80\ns_mov_b32 s{SAUX+2}, 256")
def tag_load(a):
    a(f"s_load_dwordx2 {s(sNC,2)}, s[{SAUX}:{SAUX+1}], 0")
def tag_check(a, tmp):
    _uid[0] += 1; u = _uid[0]
    a(f"""s_waitcnt lgkmcnt(0)
    s_cmp_lg_u32 s{sNC}, 0
    s_cbranch_scc1 L_tg{u}
    s_movk_i32 s59, {SPIN}
    v_mov_b32 v{tmp+2}, 0
L_th{u}:
    s_sleep 8
    buffer_load_dwordx2 {v(tmp,2)}, v{tmp+2}, s[{SAUX}:{SAUX+3}], 0 offen sc1
    s_waitcnt vmcnt(0)
    v_readfirstlane_b32 s{sNC}, v{tmp}
    v_readfirstlane_b32 s{sNC+1}, v{tmp+1}
    s_sub_u32 s59, s59, 1
    s_cbranch_scc1 L_tg{u}
    s_cmp_eq_u32 s{sNC}, 0
    s_cbranch_scc1 L_th{u}
    s_nop 1
L_tg{u}:""")
def flag_addr(a, vo, sh, t):
    a(f"v_lshrrev_b32 v{vo}, 3, v0\nv_lshlrev_b32 v{vo}, {sh}, v{vo}\nv_and_b32 v{t}, 7, v0\nv_lshl_add_u32 v{vo}, v{t}, 4, v{vo}")
def flag_store(a, vo, soff, tmp):
    for k in range(4): a(f"v_mov_b32 v{tmp+k}, s{sNC + (k & 1)}")
    a(f"buffer_store_dwordx4 {v(tmp,4)}, v{vo}, s[{SWS}:{SWS+3}], {soff} offen sc1")

def wo_setup(a):
    a(f"""v_lshlrev_b32 v26, 4, v0
    s_sub_u32 s27, s{sWAVE}, 4
    s_mul_i32 s39, s27, 5120
    s_mul_i32 s38, s{sCB}, 102400
    s_add_u32 s38, s38, s39
    s_add_u32 s38, s38, {WP_OFF}""")
def wo_issue(a):
    a("s_mov_b32 m0, s39\ns_add_u32 s39, s39, 20480")
    for i in range(4):
        a(f"buffer_load_dwordx4 v26, s[{SWS}:{SWS+3}], s38 offen offset:{1024*i} sc1 lds")
    a(f"""s_add_u32 m0, m0, 4096
    s_add_u32 s38, s38, 4096
    buffer_load_dwordx4 v26, s[{SWS}:{SWS+3}], s38 offen sc1 lds
    s_add_u32 s38, s38, {20480-4096}""")

WR = 156
def wo_load(a, c):
    for i in range(5):
        if i == 4: a("s_add_u32 s38, s38, 4096")
        a(f"buffer_load_dwordx4 {v(WR+20*c+4*i,4)}, v26, s[{SWS}:{SWS+3}], s38 offen offset:{1024*(i & 3)} sc1")
    a(f"s_add_u32 s38, s38, {20480-4096}")
def wo_put(a, c0=0):
    a("v_add_u32 v26, s39, v26\nv_add_u32 v27, 61440, v26")
    for c in range(c0, 5):
        for i in range(5):
            a(f"ds_write_b128 v{26 + (c-c0)//3}, {v(WR+20*c+4*i,4)} offset:{((c-c0) % 3)*20480 + 1024*i}")

LH = LF + 12
LW = LF + 32
def wait_lw(a, t):
    _uid[0] += 1; u = _uid[0]
    a(f"""v_mov_b32 v{t+4}, {LW}
    s_mov_b32 s59, {1 << 17}
L_lw{u}:
    ds_read_b128 {v(t,4)}, v{t+4}
    s_sub_u32 s59, s59, 1
    s_cbranch_scc1 L_lx{u}
    s_waitcnt lgkmcnt(0)
    v_min3_u32 v{t}, v{t}, v{t+1}, v{t+2}
    v_min_u32 v{t}, v{t}, v{t+3}
    v_cmp_eq_u32 vcc, 0, v{t}
    s_cbranch_vccz L_lx{u}
    s_sleep 1
    s_branch L_lw{u}
L_lx{u}:""")

def touch_slot(a, u, slot, vo, srd, so, ss):
    a(f"""s_lshl_b32 s28, s{slot}, 6
    v_add_u32 v3, s28, v0
    s_cmp_ge_u32 s{slot}, 15
    s_cbranch_scc1 L_ts_x{u}
    v_mul_u32_u24 v4, 13108, v3
    v_lshrrev_b32 v4, 16, v4
    v_mul_u32_u24 v4, 640, v4
    v_lshl_add_u32 v{vo}, v3, 7, v4
    s_lshr_b32 s{so}, s{sXCD}, 2
    s_mul_i32 s{so}, s{so}, 640
    s_mov_b32 s{ss}, {64*3840}
    s_mov_b32 s{srd+2}, 2457600
    s_waitcnt lgkmcnt(0)
    s_mov_b32 s{srd}, s{SW}
    s_mov_b32 s{srd+1}, s{SW+1}
    s_branch L_ts_d{u}
L_ts_x{u}:
    v_subrev_u32 v3, 960, v3
    v_mul_u32_u24 v{vo}, 2560, v3
    s_bfe_u32 s28, s{sXCD}, 0x10001
    s_mul_i32 s28, s28, {5*STEP*2}
    s_and_b32 s29, s{sXCD}, 1
    s_add_u32 s28, s28, s29
    s_mul_i32 s{so}, s28, 1280
    s_movk_i32 s{ss}, 128
    s_mov_b32 s{srd+2}, 2621440
    s_waitcnt lgkmcnt(0)
    s_mov_b32 s{srd}, s{SX}
    s_mov_b32 s{srd+1}, s{SX+1}
L_ts_d{u}:""")

def poll80(a, cfg, pre, issued=False):
    _uid[0] += 1; u = _uid[0]
    nh = cfg["nh"]
    a(f"""v_mov_b32 v9, {LG}
    s_cmp_lg_u32 s{sWAVE}, 0
    s_cbranch_scc1 L_gw{u}
    s_mov_b32 exec_lo, {-1 if nh >= 40 else hex((1 << nh) - 1)}
    s_mov_b32 exec_hi, {"0xff" if nh >= 40 else 0}
    s_add_u32 s58, s47, 5120
    s_movk_i32 s59, {SPIN}
    {f"s_branch L_gr{u}" if issued else ""}
L_gp{u}:
    buffer_load_dwordx2 v[22:23], v4, s[{SWS}:{SWS+3}], s47 offen sc1""")
    if nh == 80: a(f"buffer_load_dwordx2 v[18:19], v4, s[{SWS}:{SWS+3}], s58 offen sc1")
    a(f"""L_gr{u}:
    s_sub_u32 s59, s59, 1
    s_cbranch_scc1 L_gq{u}
    s_waitcnt vmcnt(0)
    v_cmp_ne_u64 vcc, v[20:21], v[22:23]""")
    if nh == 80: a(f"v_cmp_ne_u64 s[30:31], v[20:21], v[18:19]\ns_or_b64 vcc, s[30:31], vcc\ns_cbranch_scc0 L_gq{u}")
    else: a(f"s_cbranch_vccz L_gq{u}")
    a(f"""s_mov_b64 exec, vcc
    {f"s_sleep {cfg['sla']}" if cfg["sla"] else ""}
    s_branch L_gp{u}
L_gq{u}:
    s_mov_b64 exec, -1
    ds_write_b32 v9, v9
    s_branch L_gd{u}
L_gw{u}:
    s_mov_b32 s59, {1 << 18}
L_gx{u}:
    ds_read_b32 v10, v9
    s_sub_u32 s59, s59, 1
    s_cbranch_scc1 L_gd{u}
    s_waitcnt lgkmcnt(0)
    v_cmp_eq_u32 vcc, 0, v10
    s_cbranch_vccz L_gd{u}
    s_sleep {cfg.get("slg", 2)}
    s_branch L_gx{u}
L_gd{u}:""")
```

```python
import sys, json
from fz_common import *
import fz_a, fz_b, fz_2

def build(fn, **kw):
    cfg = dict(bars=list(range(20)), D=2, pro=2, init=1, hstart=2, wob=[18, 19], vat=1, vpk=2, s2=-1, hint=4, two=0, nh=20, wdma=2, fprio=2, sla=1, ls=3, cl=8, rdy=[16, 18], bstart=5, rot='0', pat=2, ppk=2, bgw=[[3], [3], [3], [], []])
    cfg.update(kw)
    a = Asm()
    K = NAME + "_kernel"
    a(khead(K))
    a(f"""s_load_dwordx2 s[{SX}:{SX+1}], s[0:1], 0
    s_load_dwordx2 s[{SW}:{SW+1}], s[0:1], 8
    s_load_dwordx2 s[{SWS}:{SWS+1}], s[0:1], 88
    s_load_dwordx2 s[{SAUX}:{SAUX+1}], s[0:1], 64""")
    stamp(a, cfg, 0)
    if cfg.get("stamps"): a("s_mov_b32 s82, 0\ns_mov_b32 s83, 0")
    a(f"""s_cmp_ge_u32 s2, 8
    s_cbranch_scc1 L_npf
    s_getpc_b64 s[28:29]
    v_lshlrev_b32 v2, 7, v0
    v_min_u32 v2, 0xb800, v2
    global_load_dword v39, v2, s[28:29]
L_npf:
    s_cmp_ge_u32 s2, 256
    s_cbranch_scc1 L_end
    v_lshrrev_b32 v1, 6, v0
    s_and_b32 s{sXCD}, s2, 7
    v_readfirstlane_b32 s{sWAVE}, v1
    v_and_b32 v0, 63, v0
    s_lshr_b32 s{sN}, s2, 3
    s_mov_b32 s{SX+2}, 2621440
    s_mov_b32 s{SX+3}, 0x20000
    s_mov_b32 s{SW+2}, 2457600
    s_mov_b32 s{SW+3}, 0x20000
    s_mov_b32 s{SWS+2}, {WSREC}
    s_mov_b32 s{SWS+3}, 0x20000
    s_mov_b32 s{SAUX+3}, 0x20000
    s_mov_b32 s43, 0x20000
    s_lshl_b32 s27, s{sXCD}, 2
    s_lshr_b32 s{sROT}, {cfg["rot"]}, s27
    s_and_b32 s{sROT}, s{sROT}, 15
    s_cmp_lt_u32 s{sN}, 12
    s_cbranch_scc1 L_na""")
    fz_a.decode(a)
    a(f"s_cmp_lt_u32 s{sWAVE}, 4\ns_cbranch_scc1 L_ac")
    fz_a.loaders_head(a, cfg)
    a("L_ac:")
    fz_a.gate_loads(a, cfg)
    a(f"""    s_mul_i32 s27, s{sWAVE}, 20
    s_add_u32 s27, s27, s{sN}
    s_sub_u32 s27, s27, 12
    s_mul_i32 s46, s27, 2731
    s_lshr_b32 s46, s46, 16
    s_mul_i32 s28, s46, 24
    s_sub_u32 s27, s27, s28
    s_add_u32 s46, s46, {cfg.get("i0", 0)}
    s_mov_b32 s47, 1
    s_cmp_lt_u32 s46, {cfg["init"]}
    s_cbranch_scc1 L_tt
    s_branch L_a_comp
L_na:
    {"s_endpgm" if cfg.get("onlya") else ""}
    s_cmp_ge_u32 s{sWAVE}, 6
    s_cbranch_scc1 L_tn
    s_lshl_b32 s27, s{sWAVE}, 2
    s_add_u32 s27, s27, s{sN}
    s_mov_b32 s46, {cfg["hstart"]}
    s_mov_b32 s47, {cfg["bstart"] - cfg["hstart"]}
    s_cmp_lt_u32 s{sN}, 4
    s_cbranch_scc1 L_tt
    s_cmp_ge_u32 s{sWAVE}, 3
    s_cselect_b32 s27, 3, 0
    s_cselect_b32 s47, {1 if cfg["hstart"] - cfg["init"] > 1 else 0}, {1 if cfg["hstart"] > cfg["init"] else 0}
    s_cselect_b32 s46, {cfg["init"] + 1}, {cfg["init"]}
    s_sub_u32 s27, s{sWAVE}, s27
    s_lshl_b32 s27, s27, 3
    s_add_u32 s27, s27, s{sN}
    s_sub_u32 s27, s27, 4
L_tt:""")
    touch_slot(a, "e", 27, 12, 40, 44, 45)
    a(f"""s_add_u32 s46, s46, s{sROT}
L_tl:
    s_sub_u32 s47, s47, 1
    s_cbranch_scc1 L_td
    s_cmp_ge_u32 s46, 10
    s_cselect_b32 s27, 10, 0
    s_sub_u32 s46, s46, s27
    s_mul_i32 s27, s46, s45
    s_add_u32 s27, s27, s44
    buffer_load_dword v39, v12, s[40:43], s27 offen
    s_add_u32 s46, s46, 1
    s_branch L_tl
L_tn:
    s_mov_b32 s42, 0
    s_mov_b32 s44, 0
    s_mov_b32 s45, 0
    v_mov_b32 v12, 0
    s_waitcnt lgkmcnt(0)
    s_mov_b32 s40, s{SX}
    s_mov_b32 s41, s{SX+1}
L_td:
    s_cmp_ge_u32 s{sN}, 12
    s_cbranch_scc1 L_a_comp
    {"s_endpgm" if cfg.get("tonly") else ""}
    s_cmp_ge_u32 s{sN}, 4
    s_cbranch_scc1 L_b1""")
    fz_a.helper(a, cfg)
    fz_a.loaders(a, cfg)
    fz_a.compute(a, cfg)
    fz_b.b1(a, cfg)
    fz_2.p2(a, cfg)
    a(f"L_code_end:\n.fill (0xb880-(L_code_end-{K}))/4, 4, 0xbf810000")
    body = fix_hazards(a.l, report=True)
    hdr = ["; @launch grid=(256,1,1) block=(512,1,1) lds=163840", '.amdgcn_target "amdgcn-amd-amdhsa--gfx950"', ".text"]
    tail = ['.section .rodata,"a"', kd(K, 256, 100)]
    open(fn, "w").write("\n".join(hdr + body + tail) + "\n")

if __name__ == "__main__":
    for arg in sys.argv[1:]:
        n, _, j = arg.partition("=")
        build(n + ".s", **(json.loads(j) if j else {}))
```

```python
from fz_common import *
WA, OW, YR = 26, 29, 28

def comp_setup(a):
    q, g = 13, 14
    a(f"""v_and_b32 v{q}, 15, v0
    v_lshrrev_b32 v{g}, 4, v0
    v_lshlrev_b32 v{WA}, 4, v0
    v_add_u32 v{WA+1}, 51200, v{WA}
    s_mul_i32 s28, s{sWAVE}, {16*OP}
    s_add_u32 s28, s28, {OB}
    v_mul_u32_u24 v6, {OP}, v{q}
    v_lshl_add_u32 v6, v{g}, 3, v6
    v_add_u32 v{OW}, s28, v6""")
    for r in range(3):
        a(f"""v_add_u32 v6, {64*r}, v0
        v_mul_u32_u24 v7, 6554, v6
        v_lshrrev_b32 v7, 16, v7
        v_add_u32 v8, v6, v7
        v_lshl_add_u32 v{30+r}, v8, 4, s28
        v_mul_u32_u24 v7, {40960-160}, v7
        v_lshl_add_u32 v{33+r}, v6, 4, v7""")
    a(f"""s_lshl_b32 s45, s{sWAVE}, 9
    s_add_u32 s45, s45, s{sT1}
    s_mul_i32 s45, s45, 1280
    s_mul_i32 s30, s{sCB}, 160
    s_add_u32 s45, s45, s30
    s_mul_i32 s44, s{sT1}, 81920
    s_mul_i32 s30, s{sWAVE}, 20480
    s_add_u32 s44, s44, s30
    s_add_u32 s44, s44, {O_OFF}            ; o base
    s_lshl_b32 s46, s{sT1}, 2
    s_add_u32 s46, s46, s{sWAVE}
    s_lshl_b32 s46, s46, 6
    s_add_u32 s46, s46, {Z_OFF}            ; z base
    s_lshl_b32 s47, s{sXCD}, 14
    s_add_u32 s47, s47, {FA_OFF}
    s_mul_i32 s30, s{sWAVE}, 5120
    s_add_u32 s30, s30, {YB}
    v_lshlrev_b32 v2, 4, v0
    v_lshlrev_b32 v3, 2, v{q}
    v_lshlrev_b32 v4, 7, v0
    v_add_u32 v{YR}, s30, v2
    v_lshrrev_b32 v6, 5, v0
    v_lshlrev_b32 v6, 9, v6
    v_lshl_add_u32 v6, v{q}, 5, v6
    v_and_b32 v7, 16, v0
    v_add_u32 v2, v6, v7
    s_lshl_b32 s30, s{sWAVE}, 2
    s_add_u32 s30, s30, {LY}
    v_mov_b32 v24, s30
    s_mov_b32 s51, s44
    s_movk_i32 s52, {SPIN}""")

VF, MF, VA, SG, SG0, YW, FV, VS, YF = 90, 60, 68, 73, 74, 75, 76, 77, 80
OF = 40
def load_setup(a):
    q, g = 13, 14
    a(f"""v_lshlrev_b32 v{FV}, 7, v0
    s_lshl_b32 s49, s{sXCD}, 13
    s_add_u32 s49, s49, {FB_OFF}
    s_lshl_b32 s56, s{sXCD}, 14
    s_add_u32 s56, s56, {FA_OFF + 96*128}
    s_mov_b32 s48, 0""")
    for i in range(3):
        a(f"""v_add_u32 v4, {64*i}, v0
        v_mul_u32_u24 v5, 13108, v4
        v_lshrrev_b32 v5, 16, v5
        v_mul_u32_u24 v5, {VJ-80}, v5
        v_lshl_add_u32 v{VS+i}, v4, 4, v5""")
    a(f"""s_sub_u32 s28, 7, s{sCB}
    s_sub_u32 s29, 32, s{sT1}
    s_and_b32 s29, s29, 31
    s_lshl_b32 s43, s29, 3
    s_add_u32 s43, s43, s28
    s_lshl_b32 s43, s43, 7
    s_add_u32 s43, s43, {V_OFF}
    s_lshl_b32 s41, s{sT1}, 3
    s_add_u32 s41, s41, s{sCB}
    s_lshl_b32 s41, s41, 7
    s_add_u32 s41, s41, {V_OFF}            ; class 1
    s_cmp_ge_u32 s{sCB}, 4
    s_cselect_b32 s28, s28, s{sCB}
    s_cselect_b32 s29, s29, s{sT1}
    s_cselect_b32 s40, 4, 0
    s_lshl_b32 s29, s29, 2
    s_add_u32 s28, s28, s29
    s_mul_i32 s28, s28, 192
    s_add_u32 s42, s28, {V_OFF + 32768}    ; class 2
    s_add_u32 s40, s40, s42
    s_add_u32 s40, s40, 80                 ; class 0
    s_lshl_b32 s28, s{sWAVE}, 2
    s_add_u32 s28, s28, {LY - 16}
    v_mov_b32 v{YF}, s28""")

def load_setup2(a):
    q, g = 13, 14
    a(f"""v_and_b32 v{q}, 15, v0
    v_lshrrev_b32 v{g}, 4, v0
    s_sub_u32 s50, s{sWAVE}, 4
    s_lshl_b32 s28, s50, 9
    s_add_u32 s28, s28, s{sT1}
    v_lshl_add_u32 v3, v{q}, 5, s28        ; t
    v_cvt_f32_u32 v4, v3
    v_mul_f32 v4, {fbits(1/2048)}, v4
    v_lshlrev_b32 v5, 2, v{g}
    v_cvt_f32_u32 v5, v5
    v_mul_f32 v5, v4, v5""")
    for k in range(8):
        a(f"v_cos_f32 v7, v5\nv_sin_f32 v6, v5")
        if k == 3: a(f"v_fmac_f32 v5, {fbits(13.0)}, v4")
        elif k < 7: a("v_add_f32 v5, v5, v4")
        a(f"v_cvt_pk_bf16_f32 v{MF+k}, v7, -v6")
    a(f"""v_lshlrev_b32 v6, 31, v0
    v_xor_b32 v6, 0x3f803f80, v6
    v_cmp_gt_u32 vcc, 16, v0
    s_cmp_ge_u32 s{sCB}, 4
    s_cselect_b32 s30, 0x55555555, 0
    v_cndmask_b32 v{MF}, v{MF}, v6, vcc
    s_or_b32 s30, s30, 0x88888888
    s_mov_b32 s31, s30
    s_mov_b32 s28, {VB}
    v_and_b32 v6, 3, v0
    v_mul_u32_u24 v6, {VP}, v6
    v_mul_u32_u24 v7, 320, v{g}
    v_add3_u32 v6, v6, v7, s28
    v_and_b32 v7, 12, v0
    v_sub_u32 v8, 76, v7
    v_cndmask_b32 v7, v7, v8, s[30:31]
    v_add_u32 v{VA}, v6, v7
    v_cndmask_b32 v7, 16, -16, s[30:31]""")
    for t in range(1, 5): a(f"v_add_u32 v{VA+t}, v{VA+t-1}, v7")
    a(f"""v_bfrev_b32 v7, 1
    v_cndmask_b32 v{SG}, 0, v7, s[30:31]
    s_cmp_eq_u32 s{sT1}, 0
    s_cselect_b32 s28, 0xffff0000, -1
    s_and_b32 s30, s30, s28
    v_cndmask_b32 v{SG0}, 0, v7, s[30:31]
    s_mul_i32 s28, s50, 5120
    s_add_u32 s28, s28, {YB}
    v_lshl_add_u32 v{YW}, v0, 4, s28""")

def v_dma(a):
    for c in range(4):
        for i in range(3):
            a(f"s_mov_b32 m0, {VB + c*VP + 1024*i}")
            a("s_mov_b32 exec_hi, 0" if i == 2 else ("s_mov_b32 exec_hi, -1" if i == 0 else "s_nop 0"))
            a(f"buffer_load_dwordx4 v{VS+i}, s[{SWS}:{SWS+3}], s{40+c} offen sc1 lds")
    a("s_mov_b32 exec_hi, -1")

_pk = [0]
def v_peek(a):
    _pk[0] += 1
    a(f"""v_mov_b32 v16, 0
    v_mov_b32 v17, 0
    s_xor_b32 s27, s{sWAVE}, 4
    s_or_b32 s27, s27, s48
    s_cbranch_scc1 L_2_pk{_pk[0]}
    buffer_load_dwordx2 v[16:17], v{FV}, s[{SWS}:{SWS+3}], s49 offen sc1
L_2_pk{_pk[0]}:""")

def v_try(a, cfg, val=1):
    if not cfg.get("vtry", 1): return
    a(f"""v_cmp_ne_u64 vcc, {s(sNC,2)}, v[16:17]
    s_cbranch_vccnz L_2_nt{_pk[0]}
    s_mov_b32 s48, {val}""")
    v_dma(a)
    a(f"L_2_nt{_pk[0]}:")

def old(ks):
    o = [f"buffer_load_dwordx4 {v(OF+4*ks,4)}, v2, s[{SWS}:{SWS+3}], s44 offen offset:{1024*(ks & 3)} sc1"]
    if ks & 3 == 3 and ks < 19: o.append("s_add_u32 s44, s44, 4096")
    return o
def first(a, cfg):
    a(f"buffer_load_dword v16, v3, s[{SWS}:{SWS+3}], s46 offen sc1")
    for ks in range(cfg.get("lead", 8)): a.ext(old(ks))

def p2(a, cfg):
    a(f"""L_2_ent:
    s_cmp_lg_u32 s{sWAVE}, 7
    s_cbranch_scc1 L_2_nr""")
    a(f"""s_lshl_b32 s57, 0x01010101, s{sCB}
    v_lshlrev_b32 v4, 7, v0
    s_lshl_b32 s56, s{sXCD}, 14
    s_add_u32 s56, s56, {FA_OFF + 96*128}""")
    poll(a, 4, "s56", "s57", 0, 2, sleep=8)
    a(f"""L_2_nr:
    s_barrier
    s_cmp_lt_u32 s{sWAVE}, 4
    s_cbranch_scc1 L_2_comp""")
    wo_setup(a)
    for c in range(5): wo_issue(a)
    load_setup(a); load_setup2(a)
    a(f"""v_mov_b32 v2, {LF}
    v_mov_b32 v3, 0
    ds_write_b32 v2, v3
    ds_write_b32 v2, v3 offset:8
    ds_write_b32 v{YF}, v3
    ds_write_b32 v{YF}, v2 offset:16
    s_waitcnt vmcnt(0) lgkmcnt(0)
    s_barrier
L_2_lb:""")
    a(f"""s_cmp_lg_u32 s{sWAVE}, 4
    s_cbranch_scc1 L_2_nv
    s_cmp_lg_u32 s48, 0
    s_cbranch_scc1 L_2_nv""")
    poll(a, FV, "s49", -1, -1, 4, sleep=cfg.get("slb", 8))
    v_dma(a)
    a("s_mov_b32 s48, 2\nL_2_nv:")
    a(f"""v_mov_b32 v2, {LF}
    s_cmp_eq_u32 s48, 1
    s_cbranch_scc1 L_2_vr
    s_cmp_eq_u32 s48, 0
    s_cbranch_scc1 L_2_wf
    s_waitcnt vmcnt(0)
    ds_write_b32 v2, v2
    s_branch L_2_vr
L_2_wf:
    s_mov_b32 s59, {1 << 17}
L_2_wf2:
    ds_read_b32 v3, v2
    s_sub_u32 s59, s59, 1
    s_cbranch_scc1 L_2_vr
    s_waitcnt lgkmcnt(0)
    v_cmp_eq_u32 vcc, 0, v3
    s_cbranch_vccz L_2_vr
    s_sleep 2
    s_branch L_2_wf2
L_2_vr:
    s_waitcnt lgkmcnt(0)""")
    AB = 132
    if cfg.get("stw"): stamp(a, cfg, 9); a("s_waitcnt lgkmcnt(0)")
    mm = lambda t: [f"v_mfma_f32_16x16x32_bf16 {v(AB+4*t,4)}, {v(VF+8*t+4*ks,4)}, {v(MF+4*ks,4)}, {v(AB+4*t,4) if ks else 0}" for ks in range(2)]
    for t in range(6):
        if t < 5:
            for ks in range(2):
                for u in range(4):
                    a(f"ds_read_b32 v{VF+8*t+4*ks+u}, v{VA+t} offset:{(16*ks+u)*80}")
        if t:
            k = t - 1
            a(f"s_waitcnt lgkmcnt({8 if t < 5 else 0})")
            for i in range(8): a(f"v_xor_b32 v{VF+8*k+i}, v{SG if i else SG0}, v{VF+8*k+i}")
            a.ext(mm(k))
    wait_lw(a, 4)
    for t in range(5): a(f"ds_write_b128 v{YW}, {v(AB+4*t,4)} offset:{1024*t}")
    if cfg.get("stw"): stamp(a, cfg, 10)
    a(f"ds_write_b32 v{YF}, v{YF}\ns_waitcnt lgkmcnt(0)")
    if cfg.get("stw"):
        a(f"s_cmp_lg_u32 s{sWAVE}, {cfg['stw']}\ns_cbranch_scc1 L_end"); stamp_out(a, cfg)
    a("L_end:\ns_endpgm")
    NB = 4
    OF, WF, AA, AB = 40, (120, 140, 200, 220), 160, 180
    LEAD = cfg.get("lead", 8)
    a("L_2_comp:")
    a(f"v_mov_b32 v20, s{sNC}\nv_mov_b32 v21, s{sNC+1}")
    comp_setup(a)
    stamp(a, cfg, 6)
    a("s_barrier")
    a(f"s_cmp_lg_u32 s{sWAVE}, 0\ns_cbranch_scc1 L_2_go")
    poll(a, 4, "s47", 1, 0, 22, sleep=cfg.get("slp", 4), tag="v[20:21]")
    a("L_2_go:")
    def reads(st):
        f = WF[st % NB]
        return [f"ds_read_b128 {v(f+4*t,4)}, v{WA + st//10} offset:{(st % 10)*5120 + 1024*t}" for t in range(5)]
    def mfmas(st):
        f = WF[st % NB]
        return [f"v_mfma_f32_16x16x32_bf16 {v(AA+4*t,4)}, {v(f+4*t,4)}, {v(OF+4*st,4)}, {v(AA+4*t,4) if st else 0}" for t in range(5)]
    poll80(a, cfg, False)
    a("L_2_g2:")
    stamp(a, cfg, 8)
    a("L_2_st:")
    first(a, cfg)
    sw = 4*cfg["wdma"] - 4
    if sw < 1: wait_lw(a, 6)
    else: a(f"v_mov_b32 v10, {LW}")
    stamp(a, cfg, 7)
    a.ext(reads(0) + reads(1) + reads(2))
    sig = ["v_lshlrev_b32 v18, 16, v16", f"v_mul_f32 v18, {fbits(-1.4426950408889634)}, v18", "v_exp_f32 v18, v18", "v_add_f32 v18, 1.0, v18", "v_rcp_f32 v18, v18"]
    yb = ["ds_read_b32 v25, v24"] + [f"ds_read_b128 {v(AB+4*t,4)}, v{YR} offset:{1024*t}" for t in range(5)]
    def check(G):
        r = OF + 8*G
        return [f"v_max3_u32 v5, v{16 if G == 0 else r+7}, v{r}, v{r+4}", "v_cmp_eq_u32 vcc, -1, v5"]
    handlers = []
    issued = LEAD
    a(f"s_waitcnt vmcnt({issued - 2})")
    if cfg.get("st2"): stamp(a, cfg, 8)
    a.ext(check(0)); a("s_cbranch_vccnz L_2_h0\nL_2_r0:"); handlers.append((0, issued))
    for st in range(20):
        lg = 0 if st == 0 else (10 if st < 18 else (11, 6)[st-18])
        if sw >= 1 and st == sw: lg = 5
        a(f"s_waitcnt lgkmcnt({lg})")
        rr = reads(st+3) if st < 17 else (yb if st == 17 else [])
        if sw >= 1 and st == sw - 1: rr = ["ds_read_b128 v[6:9], v10"] + rr
        ex = []
        if st % 2 == 0:
            while issued < min(20, st + LEAD + 2): ex += old(issued); issued += 1
            if 10 <= st: ex += [sig[(st-10)//2]]
            if sw >= 1 and st == sw: ex = ["v_min3_u32 v6, v6, v7, v8\nv_min_u32 v6, v6, v9", "v_cmp_eq_u32 vcc, 0, v6"] + ex
        elif st < 19:
            G = st // 2 + 1
            ck = check(G)
            ex = [""]*cfg.get("ckp", 1) + [f"s_waitcnt vmcnt({issued - 2*G - 2})\n" + ck[0]] + ck[1:]
            if "nock" in cfg.get("x2", ""): ex = ["s_nop 0"]*0; post = f"s_waitcnt vmcnt({issued - 2*G - 2})"
        if "nord" in cfg.get("x2", "") and st != 17: rr = []
        if "nold" in cfg.get("x2", ""): ex = [x for x in ex if "buffer_load" not in x]
        fill = []
        for i in range(6): fill += rr[i:i+1] + ex[i:i+1]
        for x in interleave(mfmas(st) if "nomf" not in cfg.get("x2", "") else [], fill, per=2): a(x)
        if sw >= 1 and st == sw: a("s_cbranch_vccnz L_2_lw\nL_2_lr:")
        if st % 2 == 1 and st < 19:
            if "nock" in cfg.get("x2", ""): a(post)
            else: a(f"s_cbranch_vccnz L_2_h{G}")
            a(f"L_2_r{G}:"); handlers.append((G, issued))
    a("L_2_fin:")
    stamp(a, cfg, 9)
    a(f"""s_mov_b32 s59, {1 << 17}
L_2_yw:
    s_waitcnt lgkmcnt(0)
    v_cmp_eq_u32 vcc, 0, v25
    s_cbranch_vccnz L_2_ys
L_2_yo:
    v_cmp_u_f32 vcc, v{AA}, v{AA}
    s_cbranch_vccnz L_2_un
L_2_ok:""")
    for t in range(5):
        for u in (0, 2):
            a(f"v_pk_add_f32 {v(AA+4*t+u,2)}, {v(AA+4*t+u,2)}, {v(AB+4*t+u,2)} neg_lo:[0,1] neg_hi:[0,1]")
        for u in (0, 2):
            a(f"v_pk_fma_f32 {v(AA+4*t+u,2)}, {v(AA+4*t+u,2)}, v[18:19], {v(AB+4*t+u,2)} op_sel_hi:[1,0,1]")
        a(f"v_cvt_pk_bf16_f32 v{AB+4*t}, v{AA+4*t}, v{AA+4*t+1}\nv_cvt_pk_bf16_f32 v{AB+4*t+1}, v{AA+4*t+2}, v{AA+4*t+3}")
        a(f"ds_write_b64 v{OW}, {v(AB+4*t,2)} offset:{32*t}")
    a(f"""ds_read_b128 v[40:43], v30
    ds_read_b128 v[44:47], v31
    ds_read_b128 v[48:51], v32
    s_waitcnt lgkmcnt(2)
    buffer_store_dwordx4 v[40:43], v33, s[{SO}:{SO+3}], s45 offen
    s_waitcnt lgkmcnt(1)
    buffer_store_dwordx4 v[44:47], v34, s[{SO}:{SO+3}], s45 offen
    s_mov_b32 exec_hi, 0
    s_waitcnt lgkmcnt(0)
    buffer_store_dwordx4 v[48:51], v35, s[{SO}:{SO+3}], s45 offen""")
    if cfg.get("stamps") and not cfg.get("stw"):
        a("s_mov_b64 exec, -1\ns_waitcnt vmcnt(0)\ns_barrier"); stamp(a, cfg, 10)
        a(f"s_cmp_lg_u32 s{sWAVE}, 0\ns_cbranch_scc1 L_end"); stamp_out(a, cfg)
    a("s_endpgm")
    for G, n in handlers:
        a(f"L_2_h{G}:\ns_cmp_eq_u32 s52, 0\ns_cbranch_scc1 L_2_r{G}\ns_sub_u32 s52, s52, 1")
        if cfg.get("stamps") and not cfg.get("stw"): a("s_add_u32 s82, s82, 1")
        if G == 0: a(f"buffer_load_dword v16, v3, s[{SWS}:{SWS+3}], s46 offen sc1")
        for ks in range(2*G, n):
            if ks == 2*G or ks % 4 == 0: a(f"s_add_u32 s58, s51, {4096*(ks >> 2)}")
            a(f"buffer_load_dwordx4 {v(OF+4*ks,4)}, v2, s[{SWS}:{SWS+3}], s58 offen offset:{1024*(ks & 3)} sc1")
        a(f"s_waitcnt vmcnt({n - 2*G - 2})")
        a.ext(check(G))
        a(f"s_cbranch_vccnz L_2_h{G}\ns_branch L_2_r{G}")
    if sw >= 1:
        a("L_2_lw:"); wait_lw(a, 6); a("s_branch L_2_lr")
    a(f"L_2_un:\nv_mov_b32 v5, v{OF}")
    for r in range(OF, OF + 80, 2): a(f"v_max3_u32 v5, v5, v{r}, v{r+1}")
    a("""v_cmp_eq_u32 vcc, -1, v5
    s_cbranch_vccz L_2_ok
    s_cmp_eq_u32 s52, 0
    s_cbranch_scc1 L_2_ok
    s_sub_u32 s52, s52, 1
    s_mov_b32 s44, s51
    s_branch L_2_st""")
    a("""L_2_ys:
    s_sub_u32 s59, s59, 1
    s_cbranch_scc1 L_2_yo
    s_sleep 1""")
    a.ext(yb)
    a("s_branch L_2_yw")
```

```python
from fz_common import *
sB, sPAR, sGAM, sP0 = 23, 24, 25, 26
OSR, GO, ZR, ZO = 9, 10, 12, 36
LH2 = MS - 8
assert XB >= 16

def decode(a):
    a(f"""s_sub_u32 s27, s{sN}, 12
    s_lshr_b32 s28, s27, 2
    s_and_b32 s{sPAR}, s{sXCD}, 1
    s_bfe_u32 s29, s{sXCD}, 0x10001
    s_mul_i32 s29, s29, 5
    s_add_u32 s{sB}, s29, s28
    s_mul_i32 s{sP0}, s{sB}, {STEP}
    s_and_b32 s27, s27, 3
    s_and_b32 s29, s{sXCD}, 4
    s_add_u32 s{sGAM}, s29, s27""")

def store_addr(a, t, two, nh):
    a(f"""v_bfe_u32 v{t}, v0, 1, {2 if two else 3}
    v_lshrrev_b32 v{t+1}, 4, v0
    s_sub_u32 s29, s{sWAVE}, 4
    s_lshl_b32 s27, s29, 2
    v_add_u32 v{t+1}, s27, v{t+1}              ; q
    s_xor_b32 s28, s29, 3
    s_lshl_b32 s28, s28, 3
    s_add_u32 s28, s28, {MS}
    v_lshl_add_u32 v{t+3}, v{t}, 4, v{t+1}
    v_lshl_add_u32 v{ZR}, v{t+3}, 5, s28
    v_and_b32 v{t+2}, 1, v0
    v_bfe_u32 v{t}, v0, 3, {1 if two else 0}
    v_mul_u32_u24 v{OSR}, {OP}, v{t+3}
    v_lshl_add_u32 v{OSR}, v{t+2}, 4, v{OSR}
    v_lshl_add_u32 v{OSR}, v{t}, 5, v{OSR}
    v_add_u32 v{OSR}, {OS}, v{OSR}
    v_lshlrev_b32 v{t+2}, 4, v{t+2}
    v_lshl_add_u32 v{t+2}, v{t}, 9, v{t+2}
    s_cmp_eq_u32 s{sB}, 0
    s_cselect_b32 s28, 0, 7
    s_sub_u32 s29, 1024, s{sP0}
    s_min_u32 s29, s29, 112
    s_cmp_eq_u32 s{sGAM}, 0
    s_cselect_b32 s27, {'0x00550055' if two else '0x55555555'}, 0""")
    for k in range(2 if two else 1):
        a(f"""v_cmp_le_u32 vcc, s28, v{t+3}
        v_cmp_gt_u32 s[30:31], s29, v{t+3}
        v_add_u32 v{t+1}, s{sP0}, v{t+3}           ; P
        s_and_b64 vcc, vcc, s[30:31]
        v_lshl_add_u32 v{t+1}, v{t+1}, 1, s{sPAR}  ; t
        v_and_b32 v{t}, 31, v{t+1}
        v_mul_u32_u24 v{GO+k}, 81920, v{t}
        v_lshrrev_b32 v{ZO+k}, 5, v{t+1}
        v_lshl_add_u32 v{ZO+k}, v{t}, 6, v{ZO+k}
        v_lshlrev_b32 v{ZO+k}, 2, v{ZO+k}
        v_lshrrev_b32 v{t}, 9, v{t+1}
        v_mul_u32_u24 v{t}, 20480, v{t}
        v_bfe_u32 v{t+1}, v{t+1}, 5, 4
        v_lshl_add_u32 v{t}, v{t+1}, 5, v{t}
        v_add3_u32 v{GO+k}, v{GO+k}, v{t}, v{t+2}
        v_mov_b32 v{t}, {BIG}
        v_cndmask_b32 v{GO+k}, v{t}, v{GO+k}, vcc
        s_and_b32 vcc_lo, vcc_lo, s27
        s_and_b32 vcc_hi, vcc_hi, s27
        v_add_u32 v{t+3}, 64, v{t+3}
        v_cndmask_b32 v{ZO+k}, v{t}, v{ZO+k}, vcc""")
    a(f"""s_mov_b32 s54, {Z_OFF}
    s_lshl_b32 s27, s{sB}, 3
    s_add_u32 s27, s27, s{sGAM}
    s_and_b32 s29, s27, {80//nh - 1}
    s_cselect_b32 s29, {BIG}, 0
    s_lshr_b32 s27, s27, {(80//nh).bit_length() - 1}
    s_lshl_b32 s28, s{sPAR}, 7
    s_add_u32 s27, s27, s28
    s_lshl_b32 s27, s27, 7
    s_add_u32 s27, s27, s29
    s_add_u32 s55, s27, {FA_OFF}
    v_lshrrev_b32 v38, 3, v0
    v_lshlrev_b32 v38, 15, v38
    v_and_b32 v{t+1}, 7, v0
    v_cmp_gt_u32 vcc, 32, v0
    v_lshl_add_u32 v38, v{t+1}, 4, v38
    s_mul_i32 s53, s{sGAM}, 2560
    v_cndmask_b32 v38, v{t}, v38, vcc
    s_add_u32 s53, s53, {O_OFF}""")

def final_store(a, cfg, k):
    two = cfg["two"]
    D = 100 + 14*k; n = 3 if two else 5; w = 2 if two else 1
    for r in range(n): a(f"ds_read_b128 {v(D+4*r,4)}, v{OSR} offset:{64*OP*k + 32*w*r}")
    a(f"ds_read_b32 v{D+4*n}, v{ZR} offset:{2048*k}")
    for r in range(n):
        if two and r == 2: a("s_mov_b32 exec_lo, 0x00ff00ff\ns_mov_b32 exec_hi, 0x00ff00ff")
        a(f"s_waitcnt lgkmcnt({n-r})")
        for u in range(4): a(f"v_min_u32 v{D+4*r+u}, -2, v{D+4*r+u}")
        a(f"buffer_store_dwordx4 {v(D+4*r,4)}, v{GO+k}, s[{SWS}:{SWS+3}], s53 offen offset:{512*w*r} sc1")
    a(f"""s_cmp_lg_u32 s{sGAM}, 0
    s_cbranch_scc1 L_a_nz{k}
    s_waitcnt lgkmcnt(0)
    buffer_store_dword v{D+4*n}, v{ZO+k}, s[{SWS}:{SWS+3}], s54 offen sc1
L_a_nz{k}:
    s_mov_b64 exec, -1""")

def gate_loads(a, cfg):
    a(f"""s_cmp_eq_u32 s{sGAM}, 0
    s_cselect_b32 s{SAUX+2}, 1280, 0
    s_lshl_b32 s27, s{sWAVE}, 7
    v_lshl_add_u32 v242, v0, 1, s27
    s_add_u32 s28, s{sWAVE}, s{sROT}
    v_lshlrev_b32 v241, 1, v0
    s_waitcnt lgkmcnt(0)""")
    for i in range(3):
        a(f"""s_cmp_ge_u32 s28, 10
        s_cselect_b32 s27, 10, 0
        s_sub_u32 s28, s28, s27
        s_lshl_b32 s27, s28, 7
        buffer_load_ushort v{248+2*i}, v241, s[{SAUX}:{SAUX+3}], s27 offen
        s_add_u32 s28, s28, 4""")

def compute(a, cfg):
    bars = cfg["bars"]
    XA0, XA1, WM, WX, MSW, MSR, OSW = 2, 3, 4, 6, 8, 9, 10
    KTR, INC, INCW, OST = 13, 14, 15, 11
    CC, CP, MP, MC, MG0, ONES = 16, 20, 24, 25, 28, 32
    FR = (40, 84); ACC = 128; T = 240
    a("L_a_comp:")
    q, g, t0, t1 = 240, 241, 242, 243
    for i in range(3): a(f"v_mov_b32 v{249+2*i}, 0")
    a(f"""s_mov_b32 s28, {MS}
    v_lshl_add_u32 v247, v{t0}, 2, s28""")
    a(f"""v_and_b32 v{q}, 15, v0
    v_lshrrev_b32 v{g}, 4, v0
    v_lshrrev_b32 v{t0}, 1, v{q}
    v_xor_b32 v{t0}, v{t0}, v{g}
    v_lshlrev_b32 v{t0}, 4, v{t0}
    v_lshl_add_u32 v{XA0}, v{q}, 7, v{t0}
    v_add_u32 v{XA0}, {XB}, v{XA0}
    v_xor_b32 v{XA1}, 64, v{XA0}
    v_lshrrev_b32 v{t0}, 5, v0
    v_bfe_u32 v{t1}, v0, 2, 3
    v_lshl_add_u32 v{t0}, v{t0}, 4, v{t1}      ; sigma0
    v_mul_u32_u24 v{t0}, 480, v{t0}
    s_mul_i32 s27, s{sWAVE}, 40
    s_add_u32 s28, s27, {WB}
    v_add_u32 v{t0}, s28, v{t0}
    v_and_b32 v{t1}, 3, v0
    v_lshl_add_u32 v{WM}, v{t1}, 3, v{t0}
    v_add_u32 v{WM+1}, {3*WS_}, v{WM}
    v_cmp_eq_u32 vcc, 3, v{t1}
    v_mul_u32_u24 v{t1}, 160, v{t1}
    v_add3_u32 v{WX}, v{t0}, v{t1}, 32
    v_add_u32 v{WX+1}, 3840, v{WX}
    v_bfe_u32 v{t0}, v0, 2, 2
    v_lshl_add_u32 v{t0}, v{g}, 3, v{t0}
    v_lshlrev_b32 v{t0}, 3, v{t0}
    v_add_u32 v{t0}, {MS}, v{t0}
    v_cndmask_b32 v{WX}, v{WX}, v{t0}, vcc
    v_add_u32 v{t0}, 32, v{t0}
    v_cndmask_b32 v{WX+1}, v{WX+1}, v{t0}, vcc
    v_mov_b32 v{t0}, 0x100
    v_mov_b32 v{INC}, {WS_}
    v_mov_b32 v{INCW}, {-(NW-1)*WS_}
    v_cndmask_b32 v{INC}, v{INC}, v{t0}, vcc
    v_cndmask_b32 v{INCW}, v{INCW}, v{t0}, vcc""")
    a_main = a; a = Asm()
    p2_decode(a)
    a(f"""
    s_mul_i32 s28, s{sWAVE}, {RT*512}
    s_add_u32 s28, s28, {MS}
    v_lshrrev_b32 v{t0}, 2, v{q}
    v_lshl_add_u32 v{t1}, v{q}, 5, s28
    v_xor_b32 v{MSW}, v{t0}, v{g}
    v_lshl_add_u32 v{MSW}, v{MSW}, 3, v{t1}
    v_xor_b32 v{KTR}, 1, v{t0}
    v_lshl_add_u32 v{KTR}, v{KTR}, 3, v{t1}
    v_and_b32 v{t0}, 60, v0
    v_xor_b32 v{t1}, 2, v{g}
    v_or_b32 v{t0}, v{t0}, v{t1}
    v_lshl_add_u32 v{MSR}, v{t0}, 3, s28
    v_mul_u32_u24 v{t0}, {OP}, v{q}
    v_lshl_add_u32 v{t0}, v{g}, 3, v{t0}
    s_add_u32 s28, s27, {OS}
    v_add_u32 v{OSW}, s28, v{t0}
    v_mul_u32_u24 v{t0}, {16*OP - 8}, v{g}
    v_add3_u32 v{OST}, v{OSW}, v{t0}, 32""")
    a(f"v_lshlrev_b32 v{t0}, 2, v{g}\nv_sub_u32 v{t0}, v{t0}, v{q}\nv_mov_b32 v30, {fbits(-1e30)}\nv_mov_b32 v31, 0")
    for r in range(4):
        a(f"""v_add_u32 v{t1}, {r+7}, v{t0}
        v_cmp_gt_u32 vcc, 8, v{t1}
        v_cmp_le_i32 s[30:31], 16, v{t1}
        v_mov_b32 v{ONES+r}, 0x3f803f80
        v_cndmask_b32 v{CC+r}, v30, v31, vcc
        v_cndmask_b32 v{CP+r}, v30, v31, s[30:31]""")
    a(f"""v_cndmask_b32 v{MP}, 0, -1, s[30:31]
    v_cmp_gt_u32 vcc, 16, v0
    v_not_b32 v{MC}, v{MP}
    v_cndmask_b32 v{MG0}, 0, -1, vcc""")
    HA, TG, FP = 38, 30, 29
    a(f"""v_mov_b32 v{TG}, {LN}
    v_mov_b32 v{HA}, {LH2}
    v_lshlrev_b32 v{FP}, 7, v0
    s_lshl_b32 s47, s{sXCD}, 14
    s_add_u32 s47, s47, {FA_OFF}
    s_add_u32 s58, s47, 5120
""")
    def hint(k):
        if cfg["hint"] == k: a(f"ds_write_b32 v{HA}, v{HA}")
    c = 20**-0.5 * 1.4426950408889634
    a(f"s_mov_b32 s32, {fbits(c)}\ns_mov_b32 s33, {fbits(c)}\ns_mov_b32 s34, {fbits(-c)}")
    a_main.ext([x for x in a.l if x.startswith("s_load")])
    later = [x for x in a.l if not x.startswith((";", "s_load"))]; a = a_main
    if cfg["cl"] == 0: a.ext(later); later = []
    a("s_waitcnt vmcnt(0)")
    for i in range(3): a(f"ds_write_b64 v247, {v(248+2*i,2)} offset:{2048*i}")
    a("s_waitcnt lgkmcnt(0)")

    def reads(st):
        f = FR[st & 1]; out = []
        sl = st % NW; hi = sl // 3; off = (sl % 3) * WS_
        for j, so in enumerate((0, 160, None, 320)):
            for h in range(2):
                if so is None:
                    out.append(f"ds_read_b64_tr_b16 {v(f+28+4*j+2*h, 2)}, v{WX+h}")
                else:
                    out.append(f"ds_read_b64_tr_b16 {v(f+28+4*j+2*h, 2)}, v{WM+hi} offset:{off + h*3840 + so}")
        xs = ((st >> 1) % NX) * XS
        xr = [f"ds_read_b128 {v(f+4*i, 4)}, v{XA0 + (st & 1)} offset:{xs + i*2048}" for i in range(RT)]
        inc = INCW if sl == NW-1 else INC
        up = [f"v_add_u32{'_e64' if cfg.get('e64', 1) else ''} v{WX+h}, v{WX+h}, v{inc}" for h in range(2)] if st < 19 else []
        if "noup" in cfg.get("exp", ""): up = []
        if "nord" in cfg.get("exp", ""): return up
        return xr[:1] + out + xr[1:] + up
    def mf(st, i):
        f = FR[st & 1]; out = []
        for j in ((2, 0, 1, 3) if not (cfg.get('xm') and 0 < st < 18) else (0, 1, 3)):
            d = v(ACC + 16*i + 4*j, 4); cc = d if st else "0"
            x, w = v(f+4*i, 4), v(f+28+4*j, 4)
            out.append(f"v_mfma_f32_16x16x32_bf16 {d}, {x}, {w}, {cc}" if j == 3 else f"v_mfma_f32_16x16x32_bf16 {d}, {w}, {x}, {cc}")
        return out
    a("s_barrier"); stamp(a, cfg, 1)
    a.ext(reads(0))
    a(".p2align 3")
    for st in range(18):
        a("s_waitcnt lgkmcnt(0)")
        a("s_barrier" if st + 1 in bars else "s_nop 0")
        if cfg.get("prof") and st % 2 == 0: stamp(a, cfg, 1 + st//2, True)
        if st == cfg.get("cst", [99, 9])[1]: stamp(a, cfg, 2)
        if st == cfg.get("cst", [99, 9])[0]: stamp(a, cfg, 1)
        ex = [f"ds_read_b64 {v(TG,2)}, v{TG}"] if st == 13 else []
        ex += later[:cfg["cl"]]; later = later[cfg["cl"]:]
        assert st < 12 or not later
        mm = sum((mf(st, i) for i in range(RT)), [])
        if cfg.get("jm") == 1: mm = [mm[4*i + j] for j in range(4) for i in range(RT)]
        if cfg.get("jm") == 2: mm = [mm[4*(i if j % 2 == 0 else RT-1-i) + j] for j in range(4) for i in range(RT)]
        if cfg.get("jm") == 3: mm = [mm[4*i + (j if i % 2 == 0 else 3-j)] for i in range(RT) for j in range(4)]
        a.ext(interleave(mm, reads(st+1) + ex))
    mark0 = len(a.l)
    VPK, VT = FR[1], FR[0]
    A = lambda i, j, r=0: ACC + 16*i + 4*j + r
    cv = lambda d, s0: f"v_cvt_pk_bf16_f32 v{d}, v{s0}, v{s0+1}"
    def pack(i):
        o = [cv(A(i,2,0), A(i,2,0)), cv(A(i,2,1), A(i,2,2)),
             f"ds_write_b64 v{MSW}, {v(A(i,2),2)} offset:{512*i}",
             cv(A(i,0,0), A(i,0,0)), cv(A(i,0,1), A(i,0,2)),
             cv(A(i,1,0), A(i,1,0)), cv(A(i,1,1), A(i,1,2)),
             f"ds_read_b64 {v(A(i,1,2),2)}, v{KTR} offset:{512*i}",
             f"v_and_b32 v{A(i,0,2)}, v{MG0}, v{A(i,2,0)}", f"v_and_b32 v{A(i,0,3)}, v{MG0}, v{A(i,2,1)}",
             f"ds_read_b64_tr_b16 {v(VT+2+2*i, 2)}, v{MSR} offset:{512*i}",
             cv(VPK+2+2*i, A(i,3,0)), cv(VPK+3+2*i, A(i,3,2))]
        if i == 0: o += [f"v_mov_b32 v{r}, 0" for r in (VPK, VPK+1, VT, VT+1)]
        return o
    def smf(i):
        o = [f"v_mfma_f32_16x16x32_bf16 {v(A(i,2),4)}, {v(A(i,1),4)}, {v(A(i,0),4)}, {v(CC,4)}"]
        if i: o.append(f"v_mfma_f32_16x16x32_bf16 {v(A(i,3),4)}, {v(A(i-1,1),4)}, {v(A(i,0),4)}, {v(CP,4)}")
        return o
    def lmax(i):
        o = [f"v_max_f32 v{A(i,2,r)}, v{A(i,2,r)}, v{A(i,3,r)}" for r in range(4)] if i else []
        return o + [f"v_max3_f32 v{T+2*i}, v{A(i,2,0)}, v{A(i,2,1)}, v{A(i,2,2)}", f"v_max_f32 v{T+2*i}, v{T+2*i}, v{A(i,2,3)}"]
    a("s_waitcnt lgkmcnt(0)")
    a("s_barrier" if 19 in bars else "s_nop 0")
    if cfg.get("prof"): stamp(a, cfg, 10, True)
    a.ext(interleave(mf(18,0) + mf(18,1) + mf(18,2), reads(19), per=2))
    a("s_waitcnt lgkmcnt(0)\ns_barrier")
    a.ext(mf(19,0))
    for k in range(4):
        mm = mf(18, 3+k) + mf(19, 1+k)
        a.ext(interleave(mm, pack(k), per=2, start=1))
    a.ext(interleave(mf(19,5) + mf(19,6), pack(4), per=2, start=1))
    stamp(a, cfg, 3)
    m = lambda i: T + 2*i
    def xmax(i):
        return [f"v_permlane16_swap_b32 v{m(i)}, v{m(i+1)}", f"v_permlane16_swap_b32 v{m(i+2)}, v{m(i+3)}",
                f"v_max_f32 v{m(i)}, v{m(i)}, v{m(i+1)}", f"v_max_f32 v{m(i+2)}, v{m(i+2)}, v{m(i+3)}", None, None,
                f"v_permlane32_swap_b32 v{m(i)}, v{m(i+2)}", f"v_max_f32 v{m(i)}, v{m(i)}, v{m(i+2)}",
                f"v_mul_f32 v{m(i+2)}, s34, v{m(i)}", f"v_mul_f32 v{m(i)}, s34, v{m(i)}", None, None,
                f"v_permlane32_swap_b32 v{m(i)}, v{m(i+2)}",
                f"v_mov_b32 v{m(i+1)}, v{m(i)}", f"v_mov_b32 v{m(i+3)}, v{m(i+2)}", None,
                f"v_permlane16_swap_b32 v{m(i)}, v{m(i+1)}", f"v_permlane16_swap_b32 v{m(i+2)}, v{m(i+3)}"]
    def fill(main, f):
        f = list(f); out = []
        for x in main:
            if x is not None: out.append(x)
            elif f: out.append(f.pop(0))
        return out + f
    sub = lambda i: [f"v_pk_fma_f32 {v(A(i,2,2*u),2)}, {v(A(i,2,2*u),2)}, s[32:33], {v(m(i),2)} op_sel_hi:[1,1,0]" for u in range(2)]
    def prob(i):
        return [f"v_exp_f32 v{A(i,2,r)}, v{A(i,2,r)}" for r in range(4)] + [cv(m(i), A(i,2,0)), cv(m(i)+1, A(i,2,2))] + \
               [f"v_and_b32 v{A(i,0,u)}, v{MP}, v{m(i)+u}" for u in range(2)] + [f"v_and_b32 v{A(i,0,2+u)}, v{MC}, v{m(i)+u}" for u in range(2)]
    def pv(i):
        return [f"v_mfma_f32_16x16x32_bf16 {v(A(i,1),4)}, {v(ONES,4)}, {v(A(i,0),4)}, 0",
                f"v_mfma_f32_16x16x32_bf16 {v(A(i,2),4)}, {v(VPK+2*i,4)}, {v(A(i,0),4)}, 0",
                f"v_mfma_f32_16x16x32_bf16 {v(A(i,3),4)}, {v(VT+2*i,4)}, {v(A(i,0),4)}, 0"]
    rc = lambda k: f"v_rcp_f32 v{m(k)}, v{A(k,1)}"
    TL = 64
    def fin(k):
        d = TL + 4*(k >> 2); rm = 1 << (k & 3)
        if k == RT - 1: rm = 12
        return [f"v_pk_mul_f32 {v(A(k,2,2*u),2)}, {v(A(k,2,2*u),2)}, {v(m(k),2)} op_sel_hi:[1,0]" for u in range(2)] + \
               [cv(A(k,0,0), A(k,2,0)), cv(A(k,0,1), A(k,2,2)), f"ds_write_b64 v{OSW}, {v(A(k,0),2)} offset:{16*OP*k}"] + \
               [f"v_mul_f32_dpp v{d+r}, v{A(k,3,r)}, v{m(k)} quad_perm:[0,1,2,3] row_mask:{hex(rm)} bank_mask:0xf" for r in range(4)]
    def pp(i, w):
        p = prob(i); a.ext(p[:2] + w[:1] + p[2:4] + w[1:2] + p[4:7] + w[2:] + p[7:])
    def tails(ks):
        d = TL + ks[0]
        a(cv(d, d)); a(cv(d+1, d+2))
        if ks[0]: a("s_mov_b32 exec_hi, 0xffff")
        a(f"ds_write_b64 v{OST}, {v(d,2)} offset:{16*OP*ks[0]}")
        if ks[0]: a("s_mov_b32 exec_hi, -1")
    lw = lambda n: a(f"s_waitcnt lgkmcnt({0 if cfg.get('stamps') else n})")
    if cfg.get("xa"): a(f"ds_write_b32 v{HA}, v{HA}\ns_branch L_xa")
    lw(3)
    a.ext(interleave(smf(0) + smf(1) + smf(2) + smf(3), pack(5), per=2))
    a.ext(lmax(0) + lmax(1))
    lw(3)
    a.ext(interleave(smf(4), lmax(2), per=3))
    p6 = pack(6)
    a.ext(lmax(3) + p6[:2] + fill(xmax(0), p6[2:]))
    hint(0)
    for i in range(4): a.ext(sub(i))
    a("s_waitcnt lgkmcnt(0)")
    w = smf(5) + smf(6); p = prob(0)
    a.ext(p[:1] + w[:1] + p[1:2] + w[1:2] + p[2:3] + w[2:3] + p[3:4] + w[3:] + p[4:])
    for i in range(1, 4): pp(i, pv(i-1))
    hint(1)
    w = pv(3); l4 = lmax(4)
    a.ext([rc(0), rc(1)] + w[:1] + l4[:2] + w[1:2] + l4[2:4] + w[2:] + l4[4:] + [rc(2)])
    a.ext(fin(0) + [rc(3)] + fin(1) + fin(2) + fin(3))
    tails(range(4))
    a.ext(lmax(5) + lmax(6) + [f"v_mov_b32 v{m(7)}, v{m(6)}"])
    if cfg["two"]: a("s_waitcnt lgkmcnt(0)\ns_barrier")
    hint(2)
    a.ext(fill(xmax(4), []))
    for i in range(4, RT): a.ext(sub(i))
    a.ext(prob(4))
    hint(3)
    pp(5, pv(4)); pp(6, pv(5))
    w = pv(6)
    hint(4)
    def peek(k):
        if cfg["peek"] != k: return
        nh = cfg["nh"]
        a(f"""s_cmp_lg_u32 s{sWAVE}, 0
        s_cbranch_scc1 L_a_npk
        s_mov_b32 exec_lo, {-1 if nh >= 40 else hex((1 << nh) - 1)}
        s_mov_b32 exec_hi, {"0xff" if nh >= 40 else 0}
        buffer_load_dwordx2 v[22:23], v{FP}, s[{SWS}:{SWS+3}], s47 offen sc1""")
        if nh == 80: a(f"buffer_load_dwordx2 v[18:19], v{FP}, s[{SWS}:{SWS+3}], s58 offen sc1")
        a("s_mov_b64 exec, -1\nL_a_npk:")
    peek(4)
    a("L_xa:")
    a.ext([rc(4)] + w[:1] + [rc(5)] + w[1:])
    a.ext(fin(4) + [rc(6)] + fin(5) + fin(6))
    tails(range(4, RT))
    hint(5); peek(5)
    xa = cfg.get("xat", "")
    sec = a.l[mark0:]
    import re
    if "e64" in xa:
        sec = [re.sub(r"^(v_(?:and_b32|max_f32|mov_b32|mul_f32|exp_f32|rcp_f32|permlane16_swap_b32|permlane32_swap_b32)) ", r"\1_e64 ", x) for x in sec]
    if "nodsw" in xa: sec = [x for x in sec if not x.startswith("ds_write_b64")]
    if "noosw" in xa: sec = [x for x in sec if not x.startswith(f"ds_write_b64 v{OSW},")]
    if "nopk" in xa: sec = [x for x in sec if not x.startswith("v_pk")]
    if "noexp" in xa: sec = [x for x in sec if not x.startswith("v_exp")]
    if "nocvt" in xa: sec = [x for x in sec if not x.startswith("v_cvt")]
    if "noperm" in xa: sec = [x for x in sec if not x.startswith("v_perm")]
    a.l[mark0:] = sec
    stamp(a, cfg, 4)
    a("s_waitcnt lgkmcnt(0)")
    a("s_barrier")
    peek(6)
    stamp(a, cfg, 6)
    if cfg.get("stopf"):
        a(f"s_cmp_lg_u32 s{sWAVE}, 0\ns_cbranch_scc1 L_end"); stamp_out(a, cfg); a("s_endpgm")
    a(f"v_mov_b32 v20, v{TG}\nv_mov_b32 v21, v{TG+1}")
    import fz_2
    fz_2.comp_setup(a)
    if cfg["peek"]:
        poll80(a, cfg, False, issued=True)
        a("s_branch L_2_g2")
    else: a("s_branch L_2_go")

def loader_fin(a, cfg):
    import fz_2
    h = cfg["hint"]
    def send(wait):
        a(f"s_cmp_lg_u32 s{sWAVE}, 7\ns_cbranch_scc1 L_a_hy")
        if wait:
            a(f"""v_mov_b32 v86, {LH2}
            s_mov_b32 s59, {1 << 17}
L_a_hw:
            ds_read_b32 v87, v86
            s_sub_u32 s59, s59, 1
            s_cbranch_scc1 L_a_hx
            s_waitcnt lgkmcnt(0)
            v_cmp_eq_u32 vcc, 0, v87
            s_cbranch_vccz L_a_hx
            s_sleep 1
            s_branch L_a_hw
L_a_hx:""")
        flag_store(a, 38, "s55", 84)
        a("L_a_hy:")
    a(f"""L_a_fin:
    v_mov_b32 v2, {LF}
    v_mov_b32 v4, 0
    ds_write_b32 v{fz_2.YF}, v4
    ds_write_b32 v{fz_2.YF}, v4 offset:16
    ds_write_b32 v2, v4
    ds_write_b32 v2, v4 offset:8""")
    if cfg.get("stb") == 50: stamp(a, cfg, 1)
    dbg = cfg.get("stb") == 50
    if cfg["two"]:
        if h < 2: send(True)
        a("s_waitcnt lgkmcnt(0)\ns_barrier")
        if dbg: stamp(a, cfg, 3); a("s_waitcnt lgkmcnt(0)")
        if h == 2: send(False)
        final_store(a, cfg, 0)
        if dbg: stamp(a, cfg, 4)
        if 2 < h < 6: send(True)
    elif h < 6: send(True)
    if cfg.get("fprio"): a(f"s_setprio {cfg['fprio']}")
    a("s_waitcnt lgkmcnt(0)\ns_barrier")
    if cfg["v2"]: fz_2.v_peek(a)
    if cfg.get("stopf"): a("s_endpgm")
    if dbg: stamp(a, cfg, 5); a("s_waitcnt lgkmcnt(0)")
    if h == 6: send(False)
    final_store(a, cfg, 1 if cfg['two'] else 0)
    if dbg: stamp(a, cfg, 6)
    a(f"""s_waitcnt vmcnt({6 if cfg["two"] else 5}) lgkmcnt(0)
    s_cmp_eq_u32 s48, 0
    s_cbranch_scc1 L_a_nlf
    ds_write_b32 v2, v2
L_a_nlf:""")
    if cfg["v2"]: fz_2.v_try(a, {}, 2)
    if not cfg.get('xw'): wo_put(a, cfg['wdma'])
    a(f"ds_write_b32 v{fz_2.YF}, v2 offset:16")
    if dbg: a("s_waitcnt lgkmcnt(0)"); stamp(a, cfg, 7); a("s_waitcnt vmcnt(0)"); stamp(a, cfg, 8)
    if cfg.get("fprio"): a("s_setprio 0")
    a("s_branch L_2_lb")

def wissue(a, st, pre=None):
    a(f"s_add_u32 m0, s37, {(st % NW) * WS_}")
    for i in range(5):
        if pre: pre()
        a(f"buffer_load_dwordx4 v{20+i}, s[{SW}:{SW+3}], s36 offen lds")
        a("s_add_u32 m0, m0, 1024" if i < 4 else f"s_add_u32 s36, s36, {32*3840}")
    if st & 1: a("s_cmp_eq_u32 s36, s33\ns_cselect_b32 s36, s32, s36")
def xissue(a, c):
    a(f"s_mov_b32 m0, {XB + (c % NX)*XS}\ns_add_u32 s37, s36, {128*c}")
    for i in range(2*RT):
        a(f"buffer_load_dwordx4 v{20 + (i & 1)}, s[{SX}:{SX+3}], s37 offen lds")
        if i < 2*RT-1: a("s_add_u32 m0, m0, 1024\ns_add_u32 s37, s37, 20480")

def xissue_h(a, u, pre=None):
    c, hf = u >> 1, u & 1
    if hf == 0: a("s_add_u32 s36, s36, 128\ns_cmp_eq_u32 s36, s33\ns_cselect_b32 s36, s32, s36")
    a(f"s_mov_b32 m0, {XB + (c % NX)*XS + hf*RT*1024}\ns_add_u32 s37, s36, {hf*RT*20480}")
    for i in range(hf*RT, hf*RT + RT):
        if pre: pre()
        a(f"buffer_load_dwordx4 v{20 + (i & 1)}, s[{SX}:{SX+3}], s37 offen lds")
        if i < hf*RT + RT - 1: a("s_add_u32 m0, m0, 1024\ns_add_u32 s37, s37, 20480")

def loaders_head(a, cfg):
    if cfg.get("lprio"): a(f"s_setprio {cfg['lprio']}")
    a(f"""s_cmp_lg_u32 s{sWAVE}, 7
    s_cbranch_scc1 L_a_wl
    v_lshrrev_b32 v2, 3, v0
    v_and_b32 v3, 7, v0
    v_lshrrev_b32 v4, 4, v0
    v_xor_b32 v3, v3, v4
    v_mul_u32_u24 v2, 2560, v2
    v_lshl_add_u32 v20, v3, 4, v2
    v_xor_b32 v21, 64, v20
    s_lshl_b32 s36, s{sP0}, 1
    s_add_u32 s36, s36, s{sPAR}
    s_mul_i32 s32, s36, 1280
    s_add_u32 s33, s32, 1280
    s_lshl_b32 s36, s{sROT}, 7
    s_add_u32 s36, s36, s32
    s_mov_b32 m0, {XB}
    s_mov_b32 s37, s36
    s_movk_i32 s27, {RT}
    s_waitcnt lgkmcnt(0)""")
    if cfg.get("stw"): stamp(a, cfg, 1)
    a(f"""L_a_x0:
    buffer_load_dwordx4 v20, s[{SX}:{SX+3}], s37 offen lds
    s_add_u32 m0, m0, 1024
    s_add_u32 s37, s37, 20480
    buffer_load_dwordx4 v21, s[{SX}:{SX+3}], s37 offen lds
    s_add_u32 m0, m0, 1024
    s_add_u32 s37, s37, 20480
    s_sub_u32 s27, s27, 1
    s_cmp_lg_u32 s27, 0
    s_cbranch_scc1 L_a_x0
    s_branch L_a_xl
L_a_wl:
    s_sub_u32 s27, s{sWAVE}, 4
    s_mul_i32 s28, s27, 320
    v_add_u32 v3, s28, v0
    s_mul_i32 s32, s{sGAM}, 160
    s_add_u32 s33, s32, {640*3840}
    s_mul_i32 s36, s{sROT}, {64*3840}
    s_add_u32 s36, s36, s32
    s_mul_i32 s37, s27, 5120
    s_add_u32 s37, s37, {WB}
    s_movk_i32 s28, 2185
    s_movk_i32 s29, 6554
    s_movk_i32 s30, 1120
    s_movk_i32 s31, {4*3840}""")
    for i in range(5):
        a(f"""v_mul_u32_u24 v4, s28, v3
        v_mul_u32_u24 v5, s29, v3
        v_lshrrev_b32 v5, 16, v5
        v_mul_u32_u24 v5, s30, v5
        v_lshl_add_u32 v5, v3, 4, v5
        v_bfe_u32 v6, v4, 18, 1
        v_bfe_u32 v4, v4, 19, 1
        v_sub_u32 v4, v6, v4
        v_mad_i32_i24 v{20+i}, s31, v4, v5""")
        if i < 4: a("v_add_u32 v3, 64, v3")
    a("s_waitcnt lgkmcnt(0)")
    if cfg.get("stw"): stamp(a, cfg, 1)
    wissue(a, 0)
    a("s_branch L_a_w2")

def loaders(a, cfg):
    bars = cfg["bars"]; D = cfg["D"]
    nb = lambda st: min([b for b in bars if b > st] + [20])
    ops = []
    def run(issue, nper, per_steps, nslots, first):
        nonlocal ops
        half = first and cfg.get("xh", 1)
        ops = []; n = 20 // per_steps; issued = 0; wo = 0; hu = 2
        atoms = []
        def slot():
            k = 0
            while atoms and k < (cfg["ls"] if not first else cfg["ls"] - 1):
                x = atoms.pop(0); a.ext(x); k += len(x)
        def go():
            nonlocal issued
            if "nodma" not in cfg.get("exp", ""): issue(a, issued, slot)
            ops.extend([issued]*nper); issued += 1
        def goh():
            nonlocal issued, hu
            if "nodma" not in cfg.get("exp", ""): xissue_h(a, hu, slot)
            ops.extend([hu >> 1]*RT); hu += 1; issued = hu >> 1
        ops.extend([0]*nper); issued = 1
        stamp(a, cfg, 2) if cfg.get("stw") else None
        if half:
            while hu < cfg["pro"] + 1: goh()
        else:
            while issued*per_steps < cfg["pro"]: go()
        import fz_2
        later = Asm()
        tag_ptr(later); p2_decode(later); store_addr(later, 32, cfg['two'], cfg['nh']); wo_setup(later); fz_2.load_setup(later)
        if cfg['s2'] == -1: fz_2.load_setup2(later)
        for x in later.l:
            if x.startswith("s_cselect"): atoms[-1].append(x)
            else: atoms.append([x])
        if cfg["ls"] == 0:
            for x in atoms: a.ext(x)
            atoms.clear()
        wo_any = (lambda c: wo_issue(a) if c < cfg['wdma'] else wo_load(a, c)) if not cfg.get('xw') else (lambda c: None)
        def rdy_check():
            if not first: return
            a("s_waitcnt lgkmcnt(0)")
            for r_ in (28, 30, 44, 46): a(f"s_xor_b64 s[{r_}:{r_+1}], s[{r_}:{r_+1}], {s(sNC,2)}")
            a(f"""s_or_b64 s[28:29], s[28:29], s[30:31]
            s_or_b64 s[44:45], s[44:45], s[46:47]
            s_or_b64 s[28:29], s[28:29], s[44:45]
            s_cbranch_scc0 L_a_rdy
            s_lshl_b32 s57, 0x01010101, s{sCB}""")
            poll(a, fz_2.FV, "s56", "s57", 0, 84, sleep=4)
            a("L_a_rdy:")
        for b in bars:
            if b == cfg["rdy"][1]: rdy_check()
            last = (nb(b) - 1) // per_steps
            assert issued > last
            k = max(i for i, t in enumerate(ops) if t == last)
            a(f"s_waitcnt vmcnt({len(ops) - 1 - k})")
            if cfg.get("stw") and 0 <= b - cfg.get("stb", 0) < 6: stamp(a, cfg, 3 + b - cfg.get("stb", 0))
            a("s_barrier")
            if b == cfg["rdy"][0]: assert not atoms
            if first and b == cfg["rdy"][0]:
                a(f"s_lshl_b32 s57, s{sCB}, 7\ns_add_u32 s57, s57, s56")
                for k_, r_ in enumerate((28, 30, 44, 46)):
                    a(f"s_load_dwordx2 s[{r_}:{r_+1}], s[{SWS}:{SWS+1}], s57")
                    if k_ < 3: a("s_add_u32 s57, s57, 1024")
            D = cfg["D"] + (1 if b >= cfg.get("dup", 99) else 0)
            if half:
                D = min(D, cfg.get("dx", 9))
                while hu < 20 and hu < nb(b) + D + 1 and (hu >> 1) < b//2 + nslots: goh()
            else:
                while issued < n and issued*per_steps < nb(b) + D and issued < b//per_steps + nslots: go()
            if b == cfg.get("tl", 8): a("s_waitcnt lgkmcnt(0)"); tag_load(a)
            if b == 10:
                tag_check(a, 84)
                if not first:
                    late = [[f"v_mov_b32 v84, s{sNC}", f"v_mov_b32 v85, s{sNC+1}", f"v_mov_b32 v86, {LN}"], ["ds_write_b64 v86, v[84:85]", f"v_mov_b32 v87, {LH2}", "v_mov_b32 v88, 0"], ["ds_write_b32 v87, v88"]]
                    if cfg["ls"]: atoms[:0] = late
                    else: a.ext(sum(late, []))
            if b == 12 and not first: a("s_waitcnt lgkmcnt(0)")
            if b == cfg["s2"]: fz_2.load_setup2(a)
            if b in cfg["wob"]:
                assert b >= cfg["rdy"][1]
                wo_any(wo); ops.extend(["wo"]*5); wo += 1
        if cfg["rdy"][1] == 20: rdy_check()
        a("s_barrier")
        npre = 5 - wo; ph = 0 if cfg['pat'] >= 2 else -1
        pk = min(npre, cfg["vpk"] if not first else cfg["ppk"]); nv = min(npre, pk + cfg["vat"])
        assert wo + pk >= cfg['wdma']
        for k in range(pk): wo_any(wo + k)
        if not first: fz_2.v_peek(a)
        else: a((f"s_add_u32 s57, s49, {FP_OFF - FB_OFF}" if cfg["pat"] < 5 else "s_mov_b32 s57, s56") + f"\ns_mov_b32 exec_hi, {ph}\nbuffer_load_dwordx2 v[84:85], v{fz_2.FV}, s[{SWS}:{SWS+3}], s57 offen sc1\ns_mov_b32 exec_hi, -1")
        for k in range(pk, nv): wo_any(wo + k)
        if cfg["s2"] == 20: fz_2.load_setup2(a)
        if not first:
            a(f"s_waitcnt vmcnt({0 if cfg.get('xw') else 5*(nv - pk)})"); fz_2.v_try(a, cfg)
        else:
            a(f"s_waitcnt vmcnt({0 if cfg.get('xw') else 5*(nv - pk)})\ns_mov_b32 exec_hi, {ph}\nv_cmp_ne_u64 vcc, {s(sNC,2)}, v[84:85]\ns_mov_b32 exec_hi, -1\ns_cbranch_vccz L_a_mk")
            poll(a, fz_2.FV, "s57", -1, ph, 84, sleep=2)
            a("L_a_mk:")
        for k in range(nv, npre): wo_any(wo + k)
    a("L_a_w2:")
    run(wissue, 5, 1, NW, False)
    a("s_branch L_a_fin\nL_a_xl:")
    run(xissue, 2*RT, 2, NX, True)
    loader_fin(a, cfg)

def helper(a, cfg):
    a(f"""L_h_o:
    ; re-lay wo in MFMA fragment order (5 waves, one k-step each); workgroups 0..7 also clear one replica of
    s_load_dwordx2 s[{SAUX}:{SAUX+1}], s[0:1], 80
    s_load_dwordx2 s[{SWO}:{SWO+1}], s[0:1], 16
    s_mov_b32 s{SAUX+2}, 256
    s_mov_b32 s{SWO+2}, 819200
    s_mov_b32 s{SWO+3}, 0x20000""")
    p2_decode(a)
    a(f"""v_mov_b32 v3, 0
    s_cmp_ge_u32 s{sWAVE}, 5
    s_cbranch_scc1 L_h_f""")
    for i in range(5):
        a(f"""v_add_u32 v7, {64*i}, v0
        v_mul_u32_u24 v4, 6554, v7
        v_lshrrev_b32 v4, 16, v4
        v_mul_u32_u24 v5, 1120, v4
        v_lshl_add_u32 v5, v7, 4, v5
        v_bfe_u32 v6, v4, 2, 1
        v_bfe_u32 v4, v4, 3, 1
        v_sub_u32 v4, v6, v4
        v_mul_i32_i24 v4, {4*1280}, v4
        v_add_u32 v{26+i}, v5, v4""")
    a(f"""s_mul_i32 s27, s{sN}, 5
    s_add_u32 s27, s27, s{sWAVE}           ; k-step
    s_mul_i32 s38, s27, {32*1280}
    s_mul_i32 s28, s{sXCD}, 160
    s_add_u32 s38, s38, s28
    s_mul_i32 s39, s{sWAVE}, 5120
    s_mov_b32 m0, s39
    s_mul_i32 s28, s{sXCD}, 20
    s_add_u32 s28, s28, s27
    s_mul_i32 s30, s28, 5120
    s_add_u32 s30, s30, {WP_OFF}
    s_add_u32 s31, s30, 4096
    v_lshrrev_b32 v6, 5, v0
    v_bfe_u32 v7, v0, 2, 3
    v_lshl_add_u32 v6, v6, 4, v7
    v_mul_u32_u24 v6, 160, v6
    v_and_b32 v7, 3, v0
    v_lshl_add_u32 v6, v7, 3, v6
    v_add_u32 v6, s39, v6
    v_lshlrev_b32 v5, 4, v0
    s_waitcnt vmcnt({cfg.get("hw", 9)}) lgkmcnt(0)""")
    for i in range(5):
        a(f"buffer_load_dwordx4 v{26+i}, s[{SWO}:{SWO+3}], s38 offen lds")
        if i < 4: a("s_add_u32 m0, m0, 1024")
    a("s_waitcnt vmcnt(0)")
    for t in range(5):
        for h in range(2): a(f"ds_read_b64_tr_b16 {v(40+4*t+2*h,2)}, v6 offset:{h*1280 + 32*t}")
    a("s_waitcnt lgkmcnt(0)")
    for t in range(5):
        a(f"buffer_store_dwordx4 {v(40+4*t,4)}, v5, s[{SWS}:{SWS+3}], s{30 + t//4} offen offset:{1024*(t & 3)} sc1")
    a(f"""L_h_f:
L_h_p:
    s_waitcnt lgkmcnt(0)
""")
    def marks(bar):
        a(f"""; write the "not yet produced" pattern over 1/32 of the branch-A hand-off buffer
        v_lshlrev_b32 v12, 4, v0
        v_mov_b32 v8, -1
        v_mov_b32 v9, -1
        v_mov_b32 v10, -1
        v_mov_b32 v11, -1
        s_lshl_b32 s30, s2, 3
        s_add_u32 s30, s30, s{sWAVE}
        s_lshl_b32 s31, s30, 5
        s_add_u32 s31, s31, {Z_OFF}
        s_mul_i32 s30, s30, 10240
        s_add_u32 s30, s30, {O_OFF}""")
        if bar: a("s_barrier")
        for k in range(0 if cfg.get('xp') else 10):
            a(f"buffer_store_dwordx4 v[8:11], v12, s[{SWS}:{SWS+3}], s30 offen offset:{1024*(k & 3)} sc1")
            if k & 3 == 3: a("s_add_u32 s30, s30, 4096")
        a(f"""s_cmp_lg_u32 s{sWAVE}, 0
        s_cbranch_scc1 L_h_nz
        s_mov_b64 exec, 0xffff
        buffer_store_dwordx4 v[8:11], v12, s[{SWS}:{SWS+3}], s31 offen sc1
        s_mov_b64 exec, -1
L_h_nz:""")
    if cfg["pat"] >= 5: marks(cfg["pat"] == 6)
    stamp(a, cfg, 4)
    a(f"s_cmp_lg_u32 s{sWAVE}, 0\ns_cbranch_scc1 L_h_t0")
    tag_load(a)
    a("L_h_t0:\ns_waitcnt vmcnt(0) lgkmcnt(0)\ns_barrier")
    stamp(a, cfg, 5)
    a(f"s_cmp_eq_u32 s{sWAVE}, 0\ns_cbranch_scc1 L_h_t1")
    tag_load(a)
    a("L_h_t1:")
    tag_check(a, 2)
    a(f"""s_cmp_lg_u32 s{sWAVE}, 0
    s_cbranch_scc1 L_h_nf
    s_lshl_b32 s27, s2, 7
    s_add_u32 s27, s27, {FA_OFF + 96*128}""")
    flag_addr(a, 2, 14, 3)
    flag_store(a, 2, "s27", 4)
    a("L_h_nf:")
    if cfg["pat"] == 2:
        marks(True)
        a("s_waitcnt vmcnt(0)\ns_barrier")
        stamp(a, cfg, 3)
        a(f"""s_cmp_lg_u32 s{sWAVE}, 6
        s_cbranch_scc1 L_2_ent
        s_lshl_b32 s27, s2, 7
        s_add_u32 s27, s27, {FP_OFF}""")
        flag_addr(a, 2, 13, 3)
        flag_store(a, 2, "s27", 4)
    a("s_branch L_2_ent")
```

```python
from fz_common import *
UB, SB = 81920, 122880
sJ, sT, sH, sE, sBETA = 23, 24, 25, 26, 33
SBG = 40

def gen_tile(a, dst, vE, vD, tmp, plain=False):
    A, B, K, th = tmp, tmp + 8, tmp + 16, tmp + 18
    for m, S in ((0, A), (1, B)):
        for j in range(4):
            if m == 0: a(f"v_mul_f32 v{th+j}, v{vE}, v{vD+j}")
            else: a(f"v_add_f32 v{th+j}, v{K+1}, v{th+j}")
        if m == 0: a(f"v_mul_f32 v{K+1}, 0x41800000, v{vE}")
        for j in range(4): a(f"v_cos_f32 v{S+j}, v{th+j}\nv_sin_f32 v{S+4+j}, v{th+j}")
    a(f"v_cos_f32 v{K}, v{K+1}")
    def pack(m, S):
        d = dst + 4*(m >> 1) + 2*(m & 1)
        a(f"v_cvt_pk_bf16_f32 v{d}, v{S}, v{S+1}\nv_cvt_pk_bf16_f32 v{d+1}, v{S+2}, v{S+3}")
        a(f"v_cvt_pk_bf16_f32 v{d+20}, v{S+4}, v{S+5}\nv_cvt_pk_bf16_f32 v{d+21}, v{S+6}, v{S+7}")
    pack(0, A)
    a(f"v_add_f32 v{K}, v{K}, v{K}")
    pack(1, B)
    for m in range(2, 10):
        P, C = (A, B) if m % 2 == 0 else (B, A)
        for u in range(8 if plain else 0): a(f"v_fma_f32 v{P+u}, v{C+u}, v{K}, -v{P+u}")
        for u in range(0 if plain else 4):
            a(f"v_pk_fma_f32 {v(P+2*u,2)}, {v(C+2*u,2)}, {v(K,2)}, {v(P+2*u,2)} op_sel_hi:[1,0,1] neg_lo:[0,0,1] neg_hi:[0,0,1]")
        pack(m, P)

_bg = [0]
def bg(a, who=3):
    _bg[0] += 1
    if who != 3: a(f"s_cmp_lt_u32 s{sWAVE}, 3\ns_cbranch_scc{who - 1} L_bg{_bg[0]}")
    a(f"""s_sub_i32 s46, s46, 1
    s_cmp_lt_i32 s46, 0
    s_cbranch_scc1 L_bg{_bg[0]}
    s_cmp_ge_u32 s47, 10
    s_cselect_b32 s27, 10, 0
    s_sub_u32 s47, s47, s27
    s_mul_i32 s27, s47, s45
    s_add_u32 s27, s27, s44
    buffer_load_dword v1, v12, s[{SBG}:{SBG+3}], s27 offen
    s_add_u32 s47, s47, 2
L_bg{_bg[0]}:""")

def b1(a, cfg):
    MAT = 40
    GF = 120
    TMP = 216
    c0 = cfg.get("bstart", 5)
    a(f"""L_b1:
    s_sub_u32 s{sBETA}, s{sN}, 4""")
    a(f"""s_cmp_ge_u32 s{sWAVE}, 3
    s_cselect_b32 s27, {c0+1}, {c0}
    s_add_u32 s47, s27, s{sROT}
    s_sub_u32 s46, 11, s27
    s_lshr_b32 s46, s46, 1
    s_cmp_ge_u32 s{sWAVE}, 6
    s_cselect_b32 s46, 0, s46
    s_lshr_b32 s{sJ}, s{sBETA}, 1
    s_lshl_b32 s{sJ}, s{sJ}, 3
    s_add_u32 s{sJ}, s{sJ}, s{sXCD}
    s_and_b32 s{sE}, s{sBETA}, 1
    s_and_b32 s{sT}, s{sWAVE}, 3
    s_lshr_b32 s{sH}, s{sWAVE}, 2
    s_sub_u32 s27, 2048, s{sJ}
    s_cmp_eq_u32 s{sJ}, 0
    s_cselect_b32 s27, 32, s27
    s_cselect_b32 s28, 64, -64
    s_cmp_eq_u32 s{sH}, 0
    s_cselect_b32 s27, s{sJ}, s27
    s_cselect_b32 s28, 64, s28
    s_lshl_b32 s29, s{sT}, 3
    v_lshrrev_b32 v2, 3, v0
    v_add_u32 v2, s29, v2
    v_mul_i32_i24 v2, s28, v2
    v_add_u32 v2, s27, v2
    v_lshrrev_b32 v3, 4, v0
    v_lshlrev_b32 v3, 1, v3
    v_and_b32 v4, 7, v0
    v_xor_b32 v3, v3, v4
    v_mul_u32_u24 v2, 1280, v2
    v_lshl_add_u32 v15, v3, 4, v2
    s_mul_i32 s30, s{sE}, 640
    s_lshl_b32 s31, s{sWAVE}, 10
    s_lshl_b32 s29, s30, 6
    s_add_u32 m0, s29, s31""")
    nx = [0]
    def xdma(n):
        for _ in range(n):
            a(f"buffer_load_dwordx4 v15, s[{SX}:{SX+3}], s30 offen lds")
            nx[0] += 1
            if nx[0] == 5:
                a(f"s_xor_b32 s30, s{sE}, 1\ns_mul_i32 s30, s30, 640\ns_lshl_b32 s34, s30, 6\ns_add_u32 m0, s34, s31")
            else:
                a("s_add_u32 m0, m0, 8192\ns_add_u32 s30, s30, 128")
    xdma(cfg["bx"][0])
    a_main = a; a = Asm()
    p2_decode(a); tag_ptr(a)
    p, g = 13, 14
    a(f"""v_and_b32 v{p}, 15, v0
    v_lshrrev_b32 v{g}, 4, v0
    s_mul_i32 s35, s{sE}, 0x80008000""")
    for i in range(2):
        a(f"""s_and_b32 s{sT}, s{sWAVE}, 1
        s_lshl_b32 s{sT}, s{sT}, 1
        s_add_u32 s{sT}, s{sT}, {i}
        s_add_u32 s27, s{sT}, 1
        s_and_b32 s27, s27, 2                  ; T in (1,2)
        s_cselect_b32 s48, 0x41800000, 0
        s_cselect_b32 s49, {fbits(-0.25)}, 0
        s_mov_b32 s50, 0
        s_mov_b32 s51, 1.0
        s_mov_b32 s53, 1.0
        s_and_b32 s27, s{sT}, 1
        s_cselect_b32 s52, -1.0, 1.0
        s_mov_b32 s54, s52
        s_cmp_lg_u32 s{sJ}, 0
        s_cbranch_scc1 L_b_g{i}
        s_and_b32 s27, s{sT}, 1
        s_cselect_b32 s49, {fbits(-0.25)}, 0
        s_cselect_b32 s53, 0, 1.0
        s_cmp_ge_u32 s{sT}, 2
        s_cselect_b32 s50, {fbits(1/64)}, 0
        s_cselect_b32 s51, 0, 1.0
        s_cselect_b32 s52, s52, 0
        s_cselect_b32 s54, 1.0, -1.0
        s_and_b32 s27, s{sT}, 1
        s_cselect_b32 s54, s54, 0
    L_b_g{i}:
        v_cvt_f32_u32 v4, v{p}
        v_cmp_eq_u32 vcc, 0, v{p}
        v_mov_b32 v5, s49
        v_fmac_f32 v5, s50, v4                 ; phi (p != 0)
        v_mov_b32 v6, s48
        v_cndmask_b32 v4, v4, v6, vcc          ; P
        v_mul_f32 v4, {fbits(1/32)}, v4
        v_cndmask_b32 v5, v5, 0, vcc
        v_mov_b32 v6, s51
        v_mov_b32 v7, s53
        v_cndmask_b32 v6, v6, v7, vcc          ; A0
        v_mov_b32 v7, s52
        v_mov_b32 v8, s54
        v_cndmask_b32 v7, v7, v8, vcc          ; A1
        v_lshrrev_b32 v8, 1, v{g}
        v_and_b32 v9, 1, v{g}
        v_lshlrev_b32 v9, 2, v9
        v_lshl_add_u32 v8, v8, 4, v9
        v_cvt_f32_u32 v8, v8
        v_fmac_f32 v5, v4, v8""")
        for sl in range(8):
            a(f"v_cos_f32 v{TMP+sl}, v5")
            if sl == 3: a(f"v_fmac_f32 v5, {fbits(5.0)}, v4")
            elif sl < 7: a("v_add_f32 v5, v5, v4")
        a(f"""v_cmp_neq_f32 vcc, 0, v6
        v_cmp_neq_f32 s[28:29], 0, v7
        v_ashrrev_i32 v8, 31, v7
        v_cndmask_b32 v6, 0, -1, vcc
        v_cndmask_b32 v7, 0, -1, s[28:29]
        v_and_b32 v8, 0x80008000, v8""")
        for u in range(4): a(f"v_cvt_pk_bf16_f32 v{TMP+8+u}, v{TMP+2*u}, v{TMP+2*u+1}")
        for u in range(4):
            a(f"v_and_b32 v{GF+16*i+u}, v6, v{TMP+8+u}\nv_bitop3_b32 v{GF+16*i+4+u}, v{TMP+8+u}, v7, v8 bitop3:0x6a")
        for u in range(8): a(f"v_xor_b32 v{GF+16*i+8+u}, s35, v{GF+16*i+u}")
    XA, AR, AI, UW, SG = 2, 6, 7, 16, 17
    a(f"""v_bfe_u32 v10, v0, 2, 3
    v_lshrrev_b32 v11, 5, v0
    v_lshl_add_u32 v11, v11, 4, v10
    v_lshlrev_b32 v11, 7, v11
    v_and_b32 v10, 6, v10                  ; swizzle
    v_bfe_u32 v8, v0, 1, 1
    s_and_b32 s27, s{sWAVE}, 2
    v_or_b32 v8, s27, v8
    v_xor_b32 v10, v10, v8
    v_lshl_add_u32 v11, v10, 4, v11
    v_and_b32 v10, 1, v0
    v_lshl_add_u32 v{XA}, v10, 3, v11
    s_lshl_b32 s28, s{sH}, 13
    v_add_u32 v{XA}, s28, v{XA}
    v_xor_b32 v{XA+1}, 64, v{XA}
    v_add_u32 v{XA+2}, 40960, v{XA}
    v_add_u32 v{XA+3}, 40960, v{XA+1}
    s_lshl_b32 s27, s27, 2
    s_lshl_b32 s28, s{sH}, 11
    s_add_u32 s27, s27, s28
    s_mul_i32 s28, s{sT}, 5120
    s_add_u32 s27, s27, s28
    s_add_u32 s27, s27, {UB}
    v_lshl_add_u32 v10, v0, 4, s27
    v_add_u32 v11, 20480, v10
    v_subrev_u32 v{UW}, 5120, v10
    s_cmp_eq_u32 s{sE}, 0
    s_cselect_b64 vcc, -1, 0
    s_xor_b32 s27, s{sT}, 3
    s_or_b32 s27, s27, s{sJ}
    s_cselect_b32 s28, 0, 0x00010001
    s_or_b32 vcc_lo, vcc_lo, s28
    s_or_b32 vcc_hi, vcc_hi, s28
    v_cndmask_b32 v{AR}, v11, v10, vcc
    v_cndmask_b32 v{AI}, v10, v11, vcc
    v_mov_b32 v10, s35
    v_cndmask_b32 v{SG}, 0, v10, vcc""")
    a(f"""s_sub_u32 s27, 3, s{sE}
    s_cmp_lt_u32 s{sWAVE}, s27
    s_cselect_b32 s50, 1, 0
    s_cselect_b32 s49, 0, 2
    s_mul_i32 s28, s{sE}, 5
    s_add_u32 s28, s28, s{sWAVE}
    s_sub_u32 s28, s28, 3
    s_lshl_b32 s29, s{sWAVE}, 1
    s_cmp_lg_u32 s50, 0
    s_cselect_b32 s48, s29, s28
    s_cmp_lg_u32 s{sE}, 0
    s_cselect_b32 s49, 1, s49
    v_lshlrev_b32 v8, 2, v{g}
    v_cvt_f32_u32 v24, v8
    v_add_f32 v25, 1.0, v24
    v_add_f32 v26, 2.0, v24
    v_add_f32 v27, 2.0, v25""")
    def gen(k, plain=False):
        a(f"""s_lshl_b32 s27, s48, 6
        s_add_u32 s27, s27, s49
        s_add_u32 s27, s27, {64*k}
        v_lshl_add_u32 v28, v{p}, 2, s27
        v_cvt_f32_u32 v28, v28
        v_mul_f32 v28, {fbits(1/640)}, v28""")
        gen_tile(a, MAT + 40*k, 28, 24, TMP, plain)
    gen(0)
    L = a.l; a = a_main; since = -cfg["bx"][1]
    for i_, x in enumerate(L):
        a(x); since += 1
        if since >= cfg["bx"][2] and nx[0] < 10 and x.startswith("v_") and all(t.startswith("v_") for t in L[i_+1:i_+3]):
            xdma(1); since = 0
    xdma(10 - nx[0])
    if not cfg["g2"]:
        a("s_cmp_eq_u32 s50, 0\ns_cbranch_scc1 L_b_gd"); gen(1); a("L_b_gd:")
    gP, gM, gM0, UA = 8, 9, 10, 11
    a(f"""s_lshl_b32 s51, s{sE}, 8
    s_add_u32 s51, s51, 768
    s_lshl_b32 s27, s51, 2
    v_mul_u32_u24 v{gP}, s27, v{g}
    s_mul_i32 s27, s51, 29
    v_sub_u32 v{gM}, s27, v{gP}
    v_cmp_eq_u32 s[54:55], 0, v{g}
    s_mul_i32 s27, s51, 13
    v_mov_b32 v{gM0}, s27
    s_cmp_eq_u32 s{sJ}, 0
    v_cndmask_b32 v{gM0}, v{gM}, v{gM0}, s[54:55]
    s_cselect_b64 s[56:57], s[54:55], 0
    s_lshr_b32 s27, s49, 1
    s_mul_i32 s27, s27, 20480
    s_add_u32 s27, s27, {UB}
    v_lshl_add_u32 v{UA}, v0, 4, s27""")
    stamp(a, cfg, 1)
    a("s_waitcnt vmcnt(0) lgkmcnt(0)")
    for w in cfg["bgw"][4]: bg(a, w)
    a("s_barrier")
    stamp(a, cfg, 2)
    if cfg.get("stamps"): a("s_waitcnt lgkmcnt(0)")
    XF = (152, 184); AC = (216, 232); T = 248
    cv = lambda d, s0: f"v_cvt_pk_bf16_f32 v{d}, v{s0}, v{s0+1}"
    def rd(tp):
        out = []
        for r in range(4):
            cb = (10*r + 2*tp) // 4; reg = XA + ((r + tp) & 1) + 2*(cb // 5)
            for ks in range(2):
                for h in range(2):
                    out.append(f"ds_read_b64_tr_b16 {v(XF[tp&1] + 8*r + 4*ks + 2*h, 2)}, v{reg} offset:{(cb % 5)*8192 + ks*4096 + h*1024}")
        return out
    def mf(tp):
        out = []
        for r0 in (0, 2):
            for ks in range(2):
                for r in (r0, r0+1):
                    for i in range(2):
                        d = v(AC[tp&1] + 8*i + 4*(r & 1), 4)
                        neg = ((0, 1, 1, 0), (0, 0, 1, 1))[i][r]
                        out.append(f"v_mfma_f32_16x16x32_bf16 {d}, {v(XF[tp&1] + 8*r + 4*ks, 4)}, {v(GF + 16*i + 8*neg + 4*ks, 4)}, {d if (ks or r0) else 0}")
        return out
    def fin1(tp, odd):
        out = []
        for i in range(2):
            c = AC[tp & 1] + 8*i; P = c
            if not odd:
                out += [f"v_add_f32 v{T+4+u}, v{c+u}, v{c+4+u}" for u in range(4)] + [f"v_sub_f32 v{c+4+u}, v{c+u}, v{c+4+u}" for u in range(4)]
                P = T + 4
            out += [cv(c, P), cv(c+1, P+2), cv(c+2, c+4), cv(c+3, c+6)]
            if i and odd: out += [f"v_xor_b32 v{c+2}, v{SG}, v{c+2}", f"v_xor_b32 v{c+3}, v{SG}, v{c+3}"]
            if i: out += [f"ds_write_b64 v{AR}, {v(c,2)} offset:{1024*tp}", f"ds_write_b64 v{AI}, {v(c+2,2)} offset:{1024*tp}"]
            else: out += [f"ds_write_b64 v{UW}, {v(c,2)} offset:{1024*tp}", f"ds_write_b64 v{UW}, {v(c+2,2)} offset:{20480 + 1024*tp}"]
        return out
    UF = (120, 152, 184); HA0 = 216; E = 120; PK = 136
    def rdh(kp, odd):
        return [f"ds_read_b128 {v(UF[kp%3] + 16*ab + 4*t, 4)}, v{UA} offset:{ab*20480 + (5*t + kp)*1024}" for ab in range(2 if odd else 1) for t in range(4)]
    def mfh(kp, odd, n):
        out = []
        if odd:
            for ab in range(2):
                for k in range(n):
                    for t in range(4):
                        d = v(HA0 + 20*k + 4*t, 4)
                        out.append(f"v_mfma_f32_16x16x32_bf16 {d}, {v(UF[kp%3] + 16*ab + 4*t, 4)}, {v(MAT + 40*k + 20*ab + 4*kp, 4)}, {d if (kp or ab) else 0}")
        else:
            for k in range(n):
                for q, (t, sn) in enumerate(((0, 0), (1, 1), (2, 0), (3, 1), (3, 0))):
                    d = v(HA0 + 20*k + 4*q, 4)
                    out.append(f"v_mfma_f32_16x16x32_bf16 {d}, {v(UF[kp%3] + 4*t, 4)}, {v(MAT + 40*k + 20*sn + 4*kp, 4)}, {d if kp else 0}")
        return out
    def hidden(odd, n):
        w = 8 if odd else 4
        for kp in range(5):
            a(f"s_waitcnt lgkmcnt({w if kp < 4 else 0})")
            a.ext(interleave(mfh(kp, odd, n), rdh(kp+2, odd) if kp < 3 else []))
    def put(pitch):
        a(f"v_add_u32 v3, v2, v{gP}\nv_add_u32 v4, v2, v{gM}\nv_add_u32 v5, v2, v{gM0}")
        for rr in range(4):
            a(f"ds_write_b32 v3, v{PK+rr} offset:{rr*pitch}")
            a(f"ds_write_b32 v{4 if rr else 5}, v{PK+4+rr} offset:{(3-rr)*pitch}")
    def tile(odd, k, u):
        HA = HA0 + 20*k
        a(f"""s_add_u32 s27, s48, {k}
        s_lshl_b32 s27, s27, 4
        v_add_u32 v7, s27, v{p}
        v_mul_u32_u24 v6, 3277, v7
        v_lshrrev_b32 v6, 16, v6
        v_mul_u32_u24 v2, 20, v6
        v_sub_u32 v7, v7, v2""")
        if odd:
            a(f"v_lshlrev_b32 v2, 7, v6\nv_lshl_add_u32 v2, v7, 2, v2\nv_add_u32 v2, {SB}, v2")
        else:
            a(f"""s_cmp_eq_u32 s49, 0
            s_cselect_b32 s27, 80, 0
            s_add_u32 s27, s27, {SB}
            v_mul_u32_u24 v2, 192, v6
            v_lshl_add_u32 v2, v7, 2, v2
            v_add_u32 v2, s27, v2
            v_cmp_gt_u32 vcc, 4, v6
            v_mov_b32 v15, {SB + 176}
            v_cndmask_b32 v2, v15, v2, vcc""")
        if not odd: a(f"v_cndmask_b32 v{HA+12}, v{HA+12}, v{HA+16}, s[56:57]")
        for op, d, x, y in (("sub", E, HA, HA+4), ("add", E+8, HA, HA+4), ("add", E+4, HA+12, HA+8), ("sub", E+12, HA+12, HA+8)):
            for uu in range(4): a(f"v_{op}_f32 v{d+uu}, v{x+uu}, v{y+uu}")
        for kk, t in enumerate((0, 3, 2, 1)):
            a(f"v_cndmask_b32 v{E+4*kk}, v{E+4*kk}, v{HA+4*t}, s[54:55]")
        for rr in range(4):
            a(f"v_cvt_pk_bf16_f32 v{PK+rr}, v{E+rr}, v{E+4+rr}\nv_cvt_pk_bf16_f32 v{PK+4+rr}, v{E+8+rr}, v{E+12+rr}")
        put(1024 if odd else 768)
        if not odd:
            a(f"""s_cmp_lg_u32 s49, 0
            s_cbranch_scc1 L_b_nd{u}
            v_mul_u32_u24 v2, 192, v6
            v_add_u32 v2, {SB - 192 + 160}, v2
            v_cmp_eq_u32 vcc, 0, v7
            v_cmp_lt_u32 s[28:29], 0, v6
            s_and_b64 vcc, vcc, s[28:29]
            v_cndmask_b32 v2, v15, v2, vcc""")
            put(768)
            a(f"L_b_nd{u}:")
    def mark():
        _bg[0] += 1
        a(f"""s_cmp_lt_u32 s{sWAVE}, 3
        s_cbranch_scc1 L_mk{_bg[0]}
        v_lshlrev_b32 v18, 4, v0
        v_mov_b32 v20, -1
        v_mov_b32 v21, -1
        v_mov_b32 v22, -1
        v_mov_b32 v23, -1
        s_sub_u32 s27, s2, 32
        s_lshl_b32 s29, s27, 7
        s_add_u32 s29, s29, {Z_OFF}
        s_mul_i32 s27, s27, 5
        s_add_u32 s27, s27, s{sWAVE}
        s_sub_u32 s27, s27, 3
        s_lshl_b32 s27, s27, 13
        s_add_u32 s27, s27, {O_OFF}
        s_add_u32 s28, s27, 4096""")
        for k in range(8): a(f"buffer_store_dwordx4 v[20:23], v18, s[{SWS}:{SWS+3}], s{27 + k//4} offen offset:{1024*(k & 3)} sc1")
        a(f"""s_cmp_lg_u32 s{sWAVE}, 7
        s_cbranch_scc1 L_mk{_bg[0]}
        s_mov_b64 exec, 0xff
        buffer_store_dwordx4 v[20:23], v18, s[{SWS}:{SWS+3}], s29 offen sc1
        s_mov_b64 exec, -1
L_mk{_bg[0]}:""")
    B = lambda k: [bg(a, w) for w in cfg["bgw"][k]]
    if cfg.get("xb"):
        bg(a); bg(a); bg(a); a("s_waitcnt vmcnt(0)\ns_branch L_b_end")
    a.ext(rd(0))
    B(0)
    a("s_waitcnt lgkmcnt(0)")
    a.ext(interleave(mf(0), rd(1), per=2))
    B(1)
    a(f"s_waitcnt lgkmcnt(0)\ns_cmp_eq_u32 s{sE}, 0\ns_cbranch_scc1 L_b_ev")
    for odd in (1, 0):
        if not odd: a("L_b_ev:")
        a(f"s_cmp_eq_u32 s{sH}, 0\ns_cbranch_scc1 L_b_s2{odd}")
        a.ext(interleave(mf(1), rd(2) + fin1(0, odd), per=2))
        a("s_waitcnt lgkmcnt(4)")
        a.ext(interleave(mf(2), fin1(1, odd), per=2, start=3))
        a.ext(fin1(2, odd))
        a(f"s_branch L_b_s3{odd}\nL_b_s2{odd}:\ns_nop 3")
        a.ext(interleave(mf(1), fin1(0, odd), per=2, start=3))
        a.ext(fin1(1, odd))
        if cfg["g2"]:
            a(f"s_cmp_eq_u32 s50, 0\ns_cbranch_scc1 L_b_s3{odd}"); gen(1, cfg["g2"] == 2)
        a(f"L_b_s3{odd}:")
        B(2)
        a("s_waitcnt lgkmcnt(0)\ns_barrier")
        stamp(a, cfg, 3)
        if cfg.get("stamps"): a("s_waitcnt lgkmcnt(0)")
        a.ext(rdh(0, odd) + rdh(1, odd))
        if cfg["pat"] == 0: mark()
        a(f"s_cmp_eq_u32 s50, 0\ns_cbranch_scc1 L_b_h1{odd}")
        hidden(odd, 2); B(3); tile(odd, 0, f"a{odd}"); tile(odd, 1, f"b{odd}")
        a(f"s_branch L_b_end\nL_b_h1{odd}:")
        hidden(odd, 1); B(3); tile(odd, 0, f"c{odd}")
        if odd: a("s_branch L_b_end")
    a("L_b_end:")
    tag_load(a)
    if cfg["pat"] == 1: mark()
    stamp(a, cfg, 4)
    a(f"""s_lshl_b32 s27, s{sWAVE}, 10
    v_lshl_add_u32 v2, v0, 4, s27
    v_add_u32 v3, {SB}, v2
    s_mul_i32 s28, s{sJ}, {VJ}
    s_add_u32 s28, s28, {V_OFF + 32768}
    s_lshl_b32 s27, s{sE}, 15
    s_sub_u32 s28, s28, s27""")
    tag_check(a, 4)
    a(f"""{"s_waitcnt vmcnt(0)" if cfg["pat"] < 2 else ""}
    s_barrier
    s_lshl_b32 s29, s{sJ}, 1
    s_add_u32 s29, s29, s{sE}
    s_lshl_b32 s29, s29, 7""")
    if cfg["pat"] < 2:
        a(f"""s_cmp_lg_u32 s{sWAVE}, 7
        s_cbranch_scc1 L_b_np
        s_add_u32 s27, s29, {FP_OFF}""")
        flag_addr(a, 4, 13, 5); flag_store(a, 4, "s27", 6)
        a("L_b_np:")
    for k in range(4): a(f"ds_read_b128 {v(16+4*k,4)}, v3 offset:{8192*k}")
    for k in range(4):
        if k == 3: a(f"s_cmp_eq_u32 s{sE}, 0\ns_cbranch_scc1 L_b_n6")
        a(f"s_waitcnt lgkmcnt({3-k})\nbuffer_store_dwordx4 {v(16+4*k,4)}, v2, s[{SWS}:{SWS+3}], s28 offen sc1\ns_add_u32 s28, s28, 8192")
    a("L_b_n6:")
    a(f"""s_waitcnt vmcnt(0) lgkmcnt(0)
    s_barrier""")
    stamp(a, cfg, 5)
    a(f"""s_cmp_lg_u32 s{sWAVE}, 0
    s_cbranch_scc1 L_2_ent
    s_add_u32 s27, s29, {FB_OFF}
""")
    flag_addr(a, 2, 13, 3)
    flag_store(a, 2, "s27", 4)
    a("s_branch L_2_ent")
```

```python
import sys, json
from fz_common import *
import fz_a, fz_b, fz_2

def build(fn, **kw):
    cfg = dict(bars=list(range(20)), D=2, pro=2, init=1, hstart=3, wob=[18, 19], vat=1, vpk=3, s2=-1, hint=4, two=0, v2=1, bx=[1, 30, 30], g2=1, hw=1, ft=2, peek=4, nh=20, wdma=2, fprio=2, sla=1, ls=3, cl=8, rdy=[16, 18], bstart=6, rot='0', pat=2, ppk=3, bgw=[[1], [2], [3], [], []])
    cfg.update(kw)
    a = Asm()
    K = NAME + "_kernel"
    a(khead(K))
    a(f"""s_load_dwordx2 s[{SX}:{SX+1}], s[0:1], 0
    s_load_dwordx2 s[{SW}:{SW+1}], s[0:1], 8""")
    stamp(a, cfg, 0)
    a(f"""v_lshrrev_b32 v1, 6, v0
    s_lshr_b32 s{sN}, s2, 3
    s_cbranch_scc1 L_npf
    s_getpc_b64 s[28:29]
    v_lshlrev_b32 v2, 7, v0
    v_min_u32 v2, 0xb800, v2
    global_load_dword v39, v2, s[28:29]
L_npf:
    v_readfirstlane_b32 s{sWAVE}, v1
    s_cmp_ge_u32 s{sN}, 32
    s_cbranch_scc1 L_end
    v_and_b32 v0, 63, v0
    s_and_b32 s{sXCD}, s2, 7""")
    if cfg["ft"]:
        a(f"""s_cmp_eq_u32 s{sWAVE}, 1
        s_cbranch_scc1 L_fx
        s_cmp_lg_u32 s{sWAVE}, 0
        s_cbranch_scc1 L_fd
        v_lshrrev_b32 v3, 3, v0
        v_and_b32 v4, 7, v0
        v_min_u32 v4, 4, v4
        v_mad_u32_u24 v3, v3, 10, v4
        s_lshr_b32 s28, s{sXCD}, 2
        s_lshl4_add_u32 s27, s{sN}, s28
        s_mul_i32 s27, s27, 5
        v_add_lshl_u32 v3, v3, s27, 7
        s_waitcnt lgkmcnt(0)
        global_load_dword v39, v3, s[{SW}:{SW+1}]
        s_branch L_fd
L_fx:
        s_and_b32 s27, s{sN}, {15 if cfg["ft"] == 2 else 31}
        s_cmp_ge_u32 s27, {9 if cfg["ft"] == 2 else 18}
        s_cbranch_scc1 L_fd
        s_lshl_b32 s27, s27, {6 if cfg["ft"] == 2 else 5}
        s_and_b32 s28, s{sXCD}, 2
        s_mulk_i32 s28, {5*STEP}
        s_and_b32 s29, s{sXCD}, 1
        s_add_u32 s28, s28, s29
        s_lshl1_add_u32 s27, s27, s28
        {"v_lshl_add_u32 v3, v0, 1, s27" if cfg["ft"] == 2 else "v_and_b32 v3, 62, v0"}
        {"" if cfg["ft"] == 2 else "v_add_u32 v3, s27, v3"}
        v_min_u32 v3, 0x7ff, v3
        s_lshr_b32 s28, s{sN}, {4 if cfg["ft"] == 2 else 5}
        v_mad_u32_u24 v3, v3, 10, s28
        v_lshlrev_b32 v3, 7, v3
        s_waitcnt lgkmcnt(0)
        global_load_dword v39, v3, s[{SX}:{SX+1}]
L_fd:""")
    if cfg.get("stamps"): a("s_mov_b32 s82, 0\ns_mov_b32 s83, 0")
    a(f"""s_load_dwordx2 s[{SWS}:{SWS+1}], s[0:1], 88
    s_load_dwordx2 s[{SAUX}:{SAUX+1}], s[0:1], 64
    s_lshl3_add_u32 s27, s2, s{sWAVE}
    s_cmpk_lg_u32 s27, 71
    s_cbranch_scc1 L_ntg
    s_load_dwordx2 s[28:29], s[0:1], 80
    s_memrealtime s[34:35]
    v_mov_b32 v3, 0
    s_mov_b64 exec, 1
    s_waitcnt lgkmcnt(0)
    s_or_b32 s34, s34, 1
    v_mov_b32 v4, s34
    v_mov_b32 v5, s35
    global_store_dwordx2 v3, v[4:5], s[28:29] sc1
    s_mov_b64 exec, -1
L_ntg:
    s_mov_b32 s{SX+2}, 2621440
    s_mov_b32 s{SX+3}, 0x20000
    s_mov_b32 s{SW+2}, 2457600
    s_mov_b32 s{SW+3}, 0x20000
    s_mov_b32 s{SWS+2}, {WSREC}
    s_mov_b32 s{SWS+3}, 0x20000
    s_mov_b32 s{SAUX+3}, 0x20000
    s_mov_b32 s43, 0x20000
    s_lshl_b32 s27, s{sXCD}, 2
    s_lshr_b32 s{sROT}, {cfg["rot"]}, s27
    s_and_b32 s{sROT}, s{sROT}, 15
    s_cmp_lt_u32 s{sN}, 12
    s_cbranch_scc1 L_na""")
    fz_a.decode(a)
    a(f"s_cmp_lt_u32 s{sWAVE}, 4\ns_cbranch_scc1 L_ac")
    fz_a.loaders_head(a, cfg)
    a("L_ac:")
    fz_a.gate_loads(a, cfg)
    a(f"""    s_mul_i32 s27, s{sWAVE}, 20
    s_add_u32 s27, s27, s{sN}
    s_sub_u32 s27, s27, 12
    s_mul_i32 s46, s27, 2731
    s_lshr_b32 s46, s46, 16
    s_mul_i32 s28, s46, 24
    s_sub_u32 s27, s27, s28
    s_add_u32 s46, s46, {cfg.get("i0", 0)}
    s_mov_b32 s47, 1
    s_cmp_lt_u32 s46, {cfg["init"] if not cfg["ft"] else 0}
    s_cbranch_scc1 L_tt
    s_branch L_a_comp
L_na:
    {"s_endpgm" if cfg.get("onlya") else ""}
    s_cmp_ge_u32 s{sWAVE}, 6
    s_cbranch_scc1 L_tn
    s_lshl_b32 s27, s{sWAVE}, 2
    s_add_u32 s27, s27, s{sN}
    s_mov_b32 s46, {cfg["hstart"]}
    s_mov_b32 s47, {cfg["bstart"] - cfg["hstart"]}
    s_cmp_lt_u32 s{sN}, 4
    s_cbranch_scc1 L_tt
    s_cmp_ge_u32 s{sWAVE}, 3
    s_cselect_b32 s27, 3, 0
    s_cselect_b32 s47, {1 if cfg["hstart"] - cfg["init"] > 1 else 0}, {1 if cfg["hstart"] > cfg["init"] else 0}
    s_cselect_b32 s46, {cfg["init"] + 1}, {cfg["init"]}
    s_sub_u32 s27, s{sWAVE}, s27
    s_lshl_b32 s27, s27, 3
    s_add_u32 s27, s27, s{sN}
    s_sub_u32 s27, s27, 4
L_tt:""")
    touch_slot(a, "e", 27, 12, 40, 44, 45)
    a(f"""s_add_u32 s46, s46, s{sROT}
L_tl:
    s_sub_u32 s47, s47, 1
    s_cbranch_scc1 L_td
    s_cmp_ge_u32 s46, 10
    s_cselect_b32 s27, 10, 0
    s_sub_u32 s46, s46, s27
    s_mul_i32 s27, s46, s45
    s_add_u32 s27, s27, s44
    buffer_load_dword v39, v12, s[40:43], s27 offen
    s_add_u32 s46, s46, 1
    s_branch L_tl
L_tn:
    s_mov_b32 s42, 0
    s_mov_b32 s44, 0
    s_mov_b32 s45, 0
    v_mov_b32 v12, 0
    s_waitcnt lgkmcnt(0)
    s_mov_b32 s40, s{SX}
    s_mov_b32 s41, s{SX+1}
L_td:
    s_cmp_ge_u32 s{sN}, 12
    s_cbranch_scc1 L_a_comp
    {"s_endpgm" if cfg.get("tonly") else ""}
    s_cmp_ge_u32 s{sN}, 4
    s_cbranch_scc1 L_b1""")
    fz_a.helper(a, cfg)
    fz_a.loaders(a, cfg)
    fz_a.compute(a, cfg)
    fz_b.b1(a, cfg)
    fz_2.p2(a, cfg)
    a(f"L_code_end:\n.fill (0xb880-(L_code_end-{K}))/4, 4, 0xbf810000")
    body = fix_hazards(a.l, report=True)
    hdr = ["; @launch grid=(256,1,1) block=(512,1,1) lds=163840", '.amdgcn_target "amdgcn-amd-amdhsa--gfx950"', ".text"]
    tail = ['.section .rodata,"a"', kd(K, 256, 100)]
    open(fn, "w").write("\n".join(hdr + body + tail) + "\n")

if __name__ == "__main__":
    for arg in sys.argv[1:]:
        n, _, j = arg.partition("=")
        build(n + ".s", **(json.loads(j) if j else {}))
```
